```python
import torch

def _softmax(x, axis=-1):
    return torch.softmax(x, dim=axis)
def _gelu(x):
    return torch.nn.functional.gelu(x, approximate="tanh")
def _silu(x):
    return torch.nn.functional.silu(x)
def _sigmoid(x):
    return torch.sigmoid(x)
def _layernorm(x, axis=-1, eps=1e-5):
    m = x.mean(dim=axis, keepdim=True)
    v = x.var(dim=axis, keepdim=True, unbiased=False)
    return (x - m) / torch.sqrt(v + eps)
def _scatter_add(tgt, idx, src, axis=0):
    return tgt.clone().index_add_(axis, idx, src)
def _segment_sum(src, seg, n):
    out = torch.zeros((n,) + src.shape[1:], dtype=src.dtype)
    return out.index_add_(0, seg, src)
def _pad(x, pw):
    flat = tuple(v for pair in reversed(pw) for v in pair)
    return torch.nn.functional.pad(x, flat)

kernel_name = 'standalone__linear_kernel_rfa__decode'

def setup_inputs():

    _w = (lambda a: (lambda t: t.to(torch.bfloat16) if t.is_floating_point() else t)(torch.as_tensor(a)))
    B, H, Sq, Sk, D, M = 2, 32, 1, 4096, 128, 64
    return {
        "q": _w((lambda *s: torch.randn(*s, dtype=torch.bfloat16) * 0.4)(B, H, Sq, D)),
        "k": _w((lambda *s: torch.randn(*s, dtype=torch.bfloat16) * 1.6)(B, H, Sk, D)),
        "v": _w((lambda *s: torch.randn(*s, dtype=torch.bfloat16) * 1.6)(B, H, Sk, D)),
        "omega": _w((lambda *s: torch.randn(*s, dtype=torch.bfloat16) * 1.6)(M, D)),
    }

def reference(q, k, v, omega):
    d = q.shape[-1]
    m = omega.shape[0]
    scale = float(d) ** -0.25
    qs = q * scale
    ks = k * scale
    q_proj = torch.einsum("bhsd,md->bhsm", qs, omega)
    k_proj = torch.einsum("bhsd,md->bhsm", ks, omega)
    q_sq = 0.5 * torch.einsum("bhsd,bhsd->bhs", qs, qs)[..., None]
    k_sq = 0.5 * torch.einsum("bhsd,bhsd->bhs", ks, ks)[..., None]
    inv_sqrt_m = float(m) ** -0.5
    phi_q = torch.exp(q_proj - q_sq) * inv_sqrt_m + 1e-6
    phi_k = torch.exp(k_proj - k_sq) * inv_sqrt_m + 1e-6
    kv = torch.einsum("bhsm,bhsd->bhmd", phi_k, v)
    z  = torch.einsum("bhsm->bhm", phi_k)
    num = torch.einsum("bhqm,bhmd->bhqd", phi_q, kv)
    den = torch.einsum("bhqm,bhm->bhq", phi_q, z)[..., None] + 1e-6
    return num / den
```

```python
import re

TRANS = ("v_exp_f32", "v_log_f32", "v_rcp_f32", "v_rsq_f32", "v_sqrt_f32", "v_sin_f32", "v_cos_f32")

def regs_of(op):
    op = op.strip()
    op = op.lstrip("-")
    m = re.fullmatch(r"abs\((.*)\)", op)
    if m: op = m.group(1)
    m = re.fullmatch(r"([vas])(\d+)", op)
    if m: return [(m.group(1), int(m.group(2)))]
    m = re.fullmatch(r"([vas])\[(\d+):(\d+)\]", op)
    if m: return [(m.group(1), i) for i in range(int(m.group(2)), int(m.group(3)) + 1)]
    if op in ("vcc", "vcc_lo", "vcc_hi"): return [("s", "vcc")]
    if op in ("exec", "exec_lo", "exec_hi"): return [("s", "exec")]
    if op == "m0": return [("s", "m0")]
    return []

class Ins:
    def __init__(self, text):
        self.text = text
        t = text.split(";")[0].strip()
        parts = t.split(None, 1)
        self.op = parts[0]
        rest = parts[1] if len(parts) > 1 else ""
        ops = [o.strip() for o in rest.split(",")] if rest else []
        clean = []
        depth = 0; cur = ""
        for ch in rest:
            if ch == "[": depth += 1
            if ch == "]": depth -= 1
            if ch == "," and depth == 0:
                clean.append(cur.strip()); cur = ""
            else: cur += ch
        if cur.strip(): clean.append(cur.strip())
        if clean:
            last = clean[-1].split()
            clean[-1] = last[0]
            self.mods = last[1:]
        else:
            self.mods = []
        self.ops = clean
        op = self.op
        self.kind = "other"
        self.rd = []; self.wr = []; self.srcc = []; self.ab = []
        if op.startswith("v_mfma"):
            self.kind = "mfma"
            self.wr = regs_of(clean[0])
            self.ab = regs_of(clean[1]) + regs_of(clean[2])
            self.srcc = regs_of(clean[3])
            self.rd = self.ab + self.srcc
            if op.endswith("_f32") and op in ("v_mfma_f32_16x16x4_f32",):
                self.cls = "sgemm"; self.passes = 8
            elif op == "v_mfma_f32_32x32x2_f32":
                self.cls = "sgemm"; self.passes = 16
            elif "16x16x32" in op or "16x16x16" in op:
                self.cls = "xdl"; self.passes = 4
            elif "32x32x16" in op or "32x32x8" in op:
                self.cls = "xdl"; self.passes = 8
            else: raise ValueError(op)
        elif op.startswith("v_"):
            self.kind = "valu"
            base = op.replace("_e32", "").replace("_e64", "")
            if base in TRANS: self.kind = "trans"
            if base.startswith("v_dot"): self.kind = "dot"
            self.base = base
            if base.startswith("v_cmp"):
                self.wr = regs_of(clean[0]); self.rd = sum((regs_of(o) for o in clean[1:]), [])
            elif base.startswith("v_permlane") :
                self.wr = regs_of(clean[0]) + regs_of(clean[1]); self.rd = list(self.wr)
            elif base in ("v_add_co_u32", "v_addc_co_u32", "v_sub_co_u32", "v_div_scale_f32"):
                self.wr = regs_of(clean[0]) + regs_of(clean[1]); self.rd = sum((regs_of(o) for o in clean[2:]), [])
            else:
                self.wr = regs_of(clean[0]); self.rd = sum((regs_of(o) for o in clean[1:]), [])
                if base in ("v_fmac_f32", "v_dot2c_f32_bf16", "v_writelane_b32"): self.rd += self.wr
                if base == "v_cndmask_b32" and len(clean) == 3: self.rd += [("s", "vcc")]
        elif op.startswith("ds_read") or op.startswith("ds_bpermute") or op.startswith("ds_swizzle"):
            self.kind = "ds"
            self.wr = regs_of(clean[0]); self.rd = sum((regs_of(o) for o in clean[1:]), [])
        elif op.startswith("ds_"):
            self.kind = "ds"
            self.rd = sum((regs_of(o) for o in clean), [])
        elif op.startswith("buffer_") or op.startswith("global_"):
            self.kind = "vmem"
            allr = [regs_of(o) for o in clean]
            lds = "lds" in self.mods or "_lds_" in op
            if lds:
                self.rd = sum(allr, []) + [("s", "m0")]
            elif "load" in op:
                self.wr = allr[0]; self.rd = sum(allr[1:], [])
            elif "atomic" in op and "sc0" in self.mods:
                self.wr = allr[0]; self.rd = sum(allr, []) if op.startswith("buffer_") else sum(allr[1:], [])
            else:
                self.rd = sum(allr, [])
                self.wide_store = ("x4" in op or "x3" in op)
            self.lds = lds
        elif op.startswith("s_"):
            self.kind = "salu"
            if op in ("s_nop", "s_waitcnt", "s_barrier", "s_branch", "s_endpgm", "s_setprio", "s_sleep") or op.startswith("s_cbranch"):
                pass
            elif op.startswith("s_cmp"):
                self.rd = sum((regs_of(o) for o in clean), [])
            else:
                self.wr = regs_of(clean[0]); self.rd = sum((regs_of(o) for o in clean[1:]), [])
                if "saveexec" in op: self.wr += [("s", "exec")]
    def states(self):
        if self.op == "s_nop": return int(self.ops[0], 0) + 1
        return 1

XDL_VALU = {2: 5, 4: 8, 8: 12, 16: 20}
XDL_SRCC_OVL = {2: 4, 4: 6, 8: 10, 16: 18}
SG_VALU = {2: 4, 4: 6, 8: 10, 16: 18}
SG_SRCC_OVL = {2: 2, 4: 4, 8: 8, 16: 16}
XDL_WAR = {2: 1, 4: 3, 8: 7, 16: 15}

def isvalu(i): return i.kind in ("valu", "trans", "dot")

def need(p, c):
    n = 0
    pw = set(p.wr); cr = set(c.rd); cw = set(c.wr)
    vec = lambda s: {r for r in s if r[0] in "va" and r[0] != "s"}
    sc = lambda s: {r for r in s if r[0] == "s"}
    if p.kind == "mfma":
        D = vec(pw)
        if c.kind == "mfma":
            if D & set(c.ab):
                n = max(n, (XDL_VALU if p.cls == "xdl" else SG_VALU)[p.passes])
            if D & set(c.srcc):
                exact = (p.wr == c.srcc and p.cls == c.cls and p.passes == c.passes)
                if not exact:
                    if p.cls == "xdl": n = max(n, XDL_SRCC_OVL[p.passes])
                    elif c.cls == "sgemm": n = max(n, SG_SRCC_OVL[p.passes])
            elif D & cw:
                n = max(n, XDL_SRCC_OVL[p.passes])
        elif isvalu(c) or c.kind in ("ds", "vmem"):
            if D & (cr | cw):
                n = max(n, (XDL_VALU if p.cls == "xdl" else SG_VALU)[p.passes])
        if p.cls == "xdl" and (isvalu(c) or c.kind in ("ds", "vmem")) and set(p.srcc) & cw:
            n = max(n, XDL_WAR[p.passes])
    if isvalu(p):
        if c.kind == "mfma" and vec(pw) & cr:
            n = max(n, 3 if p.kind == "dot" else 2)
        if c.kind == "mfma" and ("s", "exec") in pw: n = max(n, 4)
        if p.kind == "trans" and (isvalu(c)) and c.kind != "trans" and vec(pw) & cr: n = max(n, 1)
        if p.kind == "trans" and c.kind == "trans" and vec(pw) & cr: n = max(n, 1)
        if p.kind == "dot":
            if c.kind == "dot" and c.base == p.base:
                srcab = set(regs_of(c.ops[1]) + regs_of(c.ops[2]))
                if vec(pw) & srcab: n = max(n, 3)
            elif vec(pw) & (cr | cw): n = max(n, 3)
        if isvalu(c):
            if c.base.startswith("v_permlane") and vec(pw) & cr: n = max(n, 2)
            if c.base in ("v_readfirstlane_b32", "v_readlane_b32") and vec(pw) & cr: n = max(n, 1)
            if sc(pw) & cr: n = max(n, 2)
            if c.base in ("v_readlane_b32", "v_writelane_b32") and sc(pw) & cr: n = max(n, 4)
            if c.base == "v_div_fmas_f32" and ("s", "vcc") in pw: n = max(n, 4)
            if any("row_" in m or "quad_perm" in m or "wave_" in m for m in c.mods) and vec(pw) & cr: n = max(n, 2)
            if "sdwa" in p.op and vec(pw) & (cr | cw): n = max(n, 1)
        if c.kind == "vmem" and sc(pw) & cr: n = max(n, 5)
        if c.kind == "salu" and sc(pw) & cr: n = max(n, 1)
    if p.kind == "salu":
        if ("s", "m0") in pw and c.kind == "vmem" and getattr(c, "lds", False): n = max(n, 1)
    if p.kind == "vmem" and getattr(p, "wide_store", False):
        if vec(set(p.rd)) & cw: n = max(n, 2)
    return n

class Asm:
    def __init__(self):
        self.lines = []
        self.hist = []
        self.nops = 0
    def raw(self, text):
        self.lines.append(text)
    def label(self, name, flush=True):
        if flush: self.flush()
        self.lines.append(name + ":")
    def flush(self):
        req = 0; dist = 0
        for p in reversed(self.hist):
            w = 0
            if p.kind == "mfma": w = (XDL_VALU if p.cls == "xdl" else SG_VALU)[p.passes]
            elif isvalu(p):
                w = 3 if p.kind == "dot" else 2
                if any(r[0] == "s" for r in p.wr): w = 5
            elif p.kind == "salu" and ("s", "m0") in p.wr: w = 1
            elif p.kind == "vmem" and getattr(p, "wide_store", False): w = 2
            req = max(req, w - dist)
            dist += p.states()
            if dist > 24: break
        self._nop(req)
        self.hist = []
    def _nop(self, n):
        while n > 0:
            k = min(n, 16)
            i = Ins("s_nop %d" % (k - 1))
            self.lines.append("    " + i.text); self.hist.append(i); self.nops += k
            n -= k
    def __call__(self, text):
        for t in text.strip().split("\n"):
            t = t.strip()
            if not t or t.startswith(";"):
                if t: self.lines.append("    " + t)
                continue
            c = Ins(t)
            req = 0; dist = 0
            for p in reversed(self.hist):
                req = max(req, need(p, c) - dist)
                dist += p.states()
                if dist > 24: break
            self._nop(req)
            self.lines.append("    " + t); self.hist.append(c)
    def text(self):
        return "\n".join(self.lines) + "\n"

def interleave(main, side, ratio, lead=0):
    out = []; si = 0
    for k, m in enumerate(main):
        if k >= lead and (k - lead) % ratio == 0 and si < len(side):
            out.append(side[si]); si += 1
        out.append(m)
    out += side[si:]
    return out
```

```python
import sys, struct
from asmlib import Asm, interleave

NAME = "standalone__linear_kernel_rfa__decode"
def f2u(x): return struct.unpack("<I", struct.pack("<f", x))[0]

def gen(nt=" nt", wgmap="xcd", keymap="contig"):
    a = Asm()
    VK = [1, 2, 3, 4]
    VV = [5, 6]
    RK = [8, 9, 10, 11]
    RV = list(range(12, 20))
    NH = 20
    LANE = 21
    ONES = 24
    C = 28
    PQ = 32
    WPK = 40
    WD = 44
    SQD = 52
    SQA = 60
    KR = 64
    PR = 96
    PH = 128
    T = 144
    ACC = 152
    DEN = 184
    OM = 192
    SK, SV, SO = 4, 8, 12
    sQ, sOUT, sDBG, sWS = 16, 20, 22, 24
    sW, sHEAD, sPART, sOFF, sOFF2, sLB, sIT = 26, 27, 28, 29, 30, 31, 32
    sMASK, sSCALE, sL2E, sT, sT2 = 33, 34, 35, 36, 37
    sM = [40, 41, 42, 43]
    OMB = 131072; RED = 147456; REDS = 576
    LDS = RED + 8 * REDS
    STEP = 8192 if keymap == "contig" else 65536

    hdr = open("cdna_kernels/%s.s.ref" % NAME).read().split("; Override launch")[0]
    a.raw(hdr.rstrip())
    a.raw("; @launch grid=(256,1,1) block=(512,1,1) lds=%d" % LDS)
    a.raw('.amdgcn_target "amdgcn-amd-amdhsa--gfx950"\n.text\n.globl %s_kernel\n.p2align 8\n.type %s_kernel,@function' % (NAME, NAME))
    a.label(NAME + "_kernel")
    a(f"""
    s_load_dwordx2 s[{SK}:{SK+1}], s[0:1], 8
    s_load_dwordx2 s[{SV}:{SV+1}], s[0:1], 16
    s_load_dwordx2 s[{SO}:{SO+1}], s[0:1], 24
    s_load_dwordx2 s[{sQ}:{sQ+1}], s[0:1], 0
    s_load_dwordx4 s[{sOUT}:{sOUT+3}], s[0:1], 32
    s_load_dwordx2 s[{sWS}:{sWS+1}], s[0:1], 48
    s_cmp_ge_u32 s2, 256
    s_cbranch_scc1 L_end
    v_lshrrev_b32 v7, 6, v0
    v_and_b32 v{LANE}, 63, v0
    v_readfirstlane_b32 s{sW}, v7
    v_lshrrev_b32 v22, 4, v{LANE}          ; q = lane>>4
    v_and_b32 v23, 15, v{LANE}             ; n = lane&15
    s_mov_b32 s{SK+2}, 0x4000000
    s_mov_b32 s{SK+3}, 0x20000
    s_mov_b32 s{SV+2}, 0x4000000
    s_mov_b32 s{SV+3}, 0x20000
    s_mov_b32 s{SO+2}, 16384
    s_mov_b32 s{SO+3}, 0x20000
    """)
    if wgmap == "xcd":
        a(f"""
        s_and_b32 s{sHEAD}, s2, 7
        s_lshr_b32 s{sT}, s2, 5
        s_lshl_b32 s{sT}, s{sT}, 3
        s_or_b32 s{sHEAD}, s{sHEAD}, s{sT}
        s_lshr_b32 s{sPART}, s2, 3
        s_and_b32 s{sPART}, s{sPART}, 3
        """)
    else:
        a(f"""
        s_lshr_b32 s{sHEAD}, s2, 2
        s_and_b32 s{sPART}, s2, 3
        """)
    a(f"""
    v_xor_b32 v7, v22, v23
    v_lshlrev_b32 v7, 4, v7
    v_lshl_add_u32 v{VK[0]}, v22, 8, v7
    v_xor_b32 v{VK[1]}, 64, v{VK[0]}
    v_xor_b32 v{VK[2]}, 0x80, v{VK[0]}
    v_xor_b32 v{VK[3]}, 0xc0, v{VK[0]}
    v_lshlrev_b32 v7, 1, v22
    v_xor_b32 v7, v7, v23
    v_lshlrev_b32 v7, 4, v7
    v_lshl_add_u32 v{VV[0]}, v22, 8, v7
    v_xor_b32 v{VV[1]}, 0x80, v{VV[0]}
    s_lshl_b32 s{sOFF}, s{sHEAD}, 20
    s_lshl_b32 s{sT}, s{sPART}, 18
    s_add_u32 s{sOFF}, s{sOFF}, s{sT}
    s_lshl_b32 s{sT}, s{sW}, {15 if keymap == "contig" else 13}
    s_add_u32 s{sOFF}, s{sOFF}, s{sT}
    s_add_u32 s{sOFF2}, s{sOFF}, 4096
    s_lshl_b32 s{sLB}, s{sW}, 14
    s_mov_b32 s{sM[0]}, s{sLB}
    s_add_u32 s{sM[1]}, s{sLB}, 4096
    s_add_u32 s{sM[2]}, s{sLB}, 8192
    s_add_u32 s{sM[3]}, s{sLB}, 12288
    s_lshl_b32 s{sT}, s{sW}, 11
    s_add_u32 s{sT2}, s{sT}, {OMB}
    s_mov_b32 m0, s{sT2}
    s_and_b32 s{sT2}, s{sW}, 1
    s_lshl_b32 s{sT2}, s{sT2}, 7
    v_xor_b32 v{T}, s{sT2}, v{VK[0]}
    v_xor_b32 v{T+1}, s{sT2}, v{VK[1]}
    s_lshl_b32 s{sT2}, s{sHEAD}, 8
    v_lshl_add_u32 v{T+2}, v22, 4, s{sT2}
    s_waitcnt lgkmcnt(0)
    buffer_load_dwordx4 v{T}, s[{SO}:{SO+3}], s{sT} offen lds
    buffer_load_dwordx4 v{T+1}, s[{SO}:{SO+3}], s{sT} offen offset:1024 lds
    """)
    for j in range(4):
        a(f"global_load_dwordx4 v[{KR+4*j}:{KR+4*j+3}], v{T+2}, s[{sQ}:{sQ+1}] offset:{64*j}")
    def dmaK():
        o = []
        for tl in range(2):
            o.append(f"s_mov_b32 m0, s{sM[tl]}")
            for i in range(4):
                o.append(f"buffer_load_dwordx4 v{VK[i]}, s[{SK}:{SK+3}], s{[sOFF, sOFF2][tl]} offen offset:{1024*i}{nt} lds")
        return o
    def dmaV():
        o = []
        for tl in range(2):
            o.append(f"s_mov_b32 m0, s{sM[2+tl]}")
            for i in range(4):
                o.append(f"buffer_load_dwordx4 v{VV[i&1]}, s[{SV}:{SV+3}], s{[sOFF, sOFF2][tl]} offen offset:{1024*i}{nt} lds")
        return o
    for x in dmaK() + dmaV(): a(x)
    a(f"""
    s_add_u32 s{sOFF}, s{sOFF}, {STEP}
    s_add_u32 s{sOFF2}, s{sOFF2}, {STEP}
    v_xor_b32 v7, v22, v23
    v_lshlrev_b32 v7, 4, v7
    v_lshl_add_u32 v7, v23, 8, v7              ; n*256 + ((q^n)*16)
    v_add_u32 v{RK[0]}, s{sLB}, v7
    v_xor_b32 v{RK[1]}, 64, v{RK[0]}
    v_xor_b32 v{RK[2]}, 0x80, v{RK[0]}
    v_xor_b32 v{RK[3]}, 0xc0, v{RK[0]}
    v_add_u32 v{T+4}, {OMB}, v7
    v_xor_b32 v{T+5}, 64, v{T+4}
    v_xor_b32 v{T+6}, 0x80, v{T+4}
    v_xor_b32 v{T+7}, 0xc0, v{T+4}
    v_lshrrev_b32 v7, 2, v{LANE}
    v_and_b32 v{T}, 7, v7
    v_lshlrev_b32 v{T}, 5, v{T}
    v_lshl_add_u32 v{T}, v7, 8, v{T}
    v_and_b32 v7, 3, v{LANE}
    v_lshl_add_u32 v{T}, v7, 3, v{T}
    v_add_u32 v{RV[0]}, s{sLB}, v{T}
    """)
    for t in range(1, 8):
        a(f"v_xor_b32 v{RV[t]}, {hex(32*t)}, v{RV[0]}")
    a(f"""
    s_mov_b32 s{sMASK}, 0xffff0000
    s_mov_b32 s{sSCALE}, {hex(f2u(128.0 ** -0.25))}
    s_mov_b32 s{sL2E}, 0x3fb8aa3b
    v_mov_b32 v{NH}, -0.5
    """)
    for i in range(4): a(f"v_mov_b32 v{ONES+i}, 0x3f803f80")
    for i in range(36): a(f"v_mov_b32 v{ACC+i}, 0")
    for i in range(16): a(f"v_mov_b32 v{KR+16+i}, 0")
    a(f"""
    s_mov_b32 s{sIT}, -1
    s_waitcnt vmcnt(20)
    s_barrier
    """)
    for t in range(4):
        for j in range(4):
            r = OM + 16 * t + 4 * j
            a(f"ds_read_b128 v[{r}:{r+3}], v{T+4+j} offset:{4096*t}")
    a("s_waitcnt vmcnt(16) lgkmcnt(0)")
    a.flush()
    a("s_branch L_phi")
    a.label("L_loop")
    a("s_waitcnt vmcnt(12)")
    for j in range(4): a(f"ds_read_b128 v[{KR+4*j}:{KR+4*j+3}], v{RK[j]}")
    a("s_waitcnt vmcnt(8)")
    for j in range(4): a(f"ds_read_b128 v[{KR+16+4*j}:{KR+16+4*j+3}], v{RK[j]} offset:4096")
    a(f"s_cmp_eq_u32 s{sIT}, 3")
    a("s_waitcnt lgkmcnt(0)")
    a("s_cbranch_scc1 L_phi")
    for x in dmaK(): a(x)
    a.label("L_phi")
    def scale(tl, j):
        o = []
        for r in range(4):
            x = KR + 16 * tl + 4 * j + r
            t0 = T + 2 * (r & 1); t1 = t0 + 1
            o += [f"v_lshlrev_b32 v{t0}, 16, v{x}",
                  f"v_and_b32 v{t1}, s{sMASK}, v{x}",
                  f"v_mul_f32 v{t0}, s{sSCALE}, v{t0}",
                  f"v_mul_f32 v{t1}, s{sSCALE}, v{t1}",
                  f"v_cvt_pk_bf16_f32 v{x}, v{t0}, v{t1}"]
        for r in range(4):
            x = KR + 16 * tl + 4 * j + r
            acc = SQA + 2 * tl + (r & 1)
            if j == 0 and r < 2: o.append(f"v_dot2_f32_bf16 v{acc}, v{x}, v{x}, 0")
            else: o.append(f"v_dot2_f32_bf16 v{acc}, v{x}, v{x}, v{acc}")
        return o
    def projm(tl, j):
        o = []
        for t in range(4):
            d = PR + 16 * tl + 4 * t
            om = OM + 16 * t + 4 * j
            k = KR + 16 * tl + 4 * j
            c = "0" if j == 0 else f"v[{d}:{d+3}]"
            o.append(f"v_mfma_f32_16x16x32_bf16 v[{d}:{d+3}], v[{om}:{om+3}], v[{k}:{k+3}], {c}")
        return o
    def sqsum(tl):
        acc = SQA + 2 * tl
        return [f"v_add_f32 v{acc}, v{acc}, v{acc+1}"]
    def sqm(tl):
        acc = SQA + 2 * tl; d = SQD + 4 * tl
        return [f"v_mfma_f32_16x16x4_f32 v[{d}:{d+3}], v{NH}, v{acc}, 0"]
    def phi(tl):
        d = SQD + 4 * tl
        o = [f"v_cvt_pk_bf16_f32 v{d}, 0, v{d}"]
        for t in range(4):
            p = [PR + 16 * tl + 4 * t + r for r in range(4)]
            for x in p: o.append(f"v_cvt_pk_bf16_f32 v{x}, 0, v{x}")
            for x in p: o.append(f"v_add_f32 v{x}, v{d}, v{x}")
            for x in p: o.append(f"v_cvt_pk_bf16_f32 v{x}, 0, v{x}")
            for x in p: o.append(f"v_mul_f32 v{x}, s{sL2E}, v{x}")
            for x in p: o.append(f"v_exp_f32 v{x}, v{x}")
            h = PH + 8 * tl + 2 * t
            o.append(f"v_cvt_pk_bf16_f32 v{h}, v{p[0]}, v{p[1]}")
            o.append(f"v_cvt_pk_bf16_f32 v{h+1}, v{p[2]}, v{p[3]}")
        return o
    def wm(tl):
        d = WD + 4 * tl; h = PH + 8 * tl
        return [f"v_mfma_f32_16x16x32_bf16 v[{d}:{d+3}], v[{h}:{h+3}], v[{PQ}:{PQ+3}], v[{C}:{C+3}]",
                f"v_mfma_f32_16x16x32_bf16 v[{d}:{d+3}], v[{h+4}:{h+7}], v[{PQ+4}:{PQ+7}], v[{d}:{d+3}]"]
    steps = [(tl, j) for tl in range(2) for j in range(4)]
    body = scale(0, 0)
    for i in range(1, 8):
        tl, j = steps[i]
        side = projm(*steps[i - 1])
        main = scale(tl, j)
        if steps[i - 1] == (0, 3):
            main = main[:4] + sqsum(0) + main[4:]
            side = side + sqm(0)
        body += interleave(main, side, 5, lead=2)
    ph0 = phi(0)
    ph0 = ph0[:4] + sqsum(1) + ph0[4:]
    body += interleave(ph0, projm(1, 3) + sqm(1), 4, lead=1)
    for x in body: a(x)
    a(f"s_cmp_eq_u32 s{sIT}, -1")
    a.flush()
    a("s_cbranch_scc1 L_qpost")
    body = interleave(phi(1), wm(0), 6, lead=3)
    for x in body: a(x)
    a(f"v_cvt_pk_bf16_f32 v{WPK}, v{WD}, v{WD+1}")
    a(f"v_cvt_pk_bf16_f32 v{WPK+1}, v{WD+2}, v{WD+3}")
    for x in wm(1): a(x)
    a(f"s_cmp_eq_u32 s{sIT}, 3")
    a("s_waitcnt vmcnt(8)")
    a("s_cbranch_scc0 L_vrd")
    a("s_waitcnt vmcnt(0)")
    a.label("L_vrd", flush=False)
    for t in range(8):
        r = PR + 4 * t
        a(f"ds_read_b64_tr_b16 v[{r}:{r+1}], v{RV[t]} offset:8192")
        a(f"ds_read_b64_tr_b16 v[{r+2}:{r+3}], v{RV[t]} offset:12288")
    a(f"v_cvt_pk_bf16_f32 v{WPK+2}, v{WD+4}, v{WD+5}")
    a(f"v_cvt_pk_bf16_f32 v{WPK+3}, v{WD+6}, v{WD+7}")
    a(f"v_mfma_f32_16x16x32_bf16 v[{DEN}:{DEN+3}], v[{ONES}:{ONES+3}], v[{WPK}:{WPK+3}], v[{DEN}:{DEN+3}]")
    a("s_waitcnt lgkmcnt(0)")
    a("s_cbranch_scc1 L_pv")
    for x in dmaV(): a(x)
    a(f"s_add_u32 s{sOFF}, s{sOFF}, {STEP}")
    a(f"s_add_u32 s{sOFF2}, s{sOFF2}, {STEP}")
    a.label("L_pv", flush=False)
    for t in range(8):
        r = PR + 4 * t; d = ACC + 4 * t
        a(f"v_mfma_f32_16x16x32_bf16 v[{d}:{d+3}], v[{r}:{r+3}], v[{WPK}:{WPK+3}], v[{d}:{d+3}]")
    a(f"s_add_u32 s{sIT}, s{sIT}, 1")
    a(f"s_cmp_lt_u32 s{sIT}, 4")
    a("s_cbranch_scc1 L_loop")
    a(f"""
    s_mul_i32 s{sT}, s{sW}, {REDS}
    s_add_u32 s{sT}, s{sT}, {RED}
    v_lshrrev_b32 v{T}, 4, v{LANE}
    v_lshl_add_u32 v{T}, v{T}, 4, s{sT}
    s_mov_b32 exec_lo, 0x00010001
    s_mov_b32 exec_hi, 0x00010001
    """)
    a(f"ds_write_b32 v{T}, v{DEN} offset:512")
    for t in range(8):
        d = ACC + 4 * t
        a(f"ds_write_b128 v{T}, v[{d}:{d+3}] offset:{64*t}")
    a(f"""
    s_mov_b64 exec, -1
    s_cmp_eq_u32 s{sW}, 0
    s_waitcnt lgkmcnt(0)
    s_barrier
    s_cbranch_scc0 L_end
    v_lshlrev_b32 v{T}, 3, v{LANE}
    v_mov_b32 v{T+1}, {RED}
    v_add_u32 v{T}, {RED}, v{T}
    """)
    for w in range(8):
        a(f"ds_read_b64 v[{KR+2*w}:{KR+2*w+1}], v{T} offset:{REDS*w}")
        a(f"ds_read_b32 v{KR+16+w}, v{T+1} offset:{REDS*w+512}")
    a(f"""
    s_lshl_b32 s{sT}, s{sHEAD}, 12
    v_lshlrev_b32 v{T+2}, 4, v{LANE}
    v_add_u32 v{T+2}, s{sT}, v{T+2}
    s_lshl_b32 s{sT2}, s{sPART}, 10
    v_add_u32 v{T+3}, s{sT2}, v{T+2}
    s_lshl_b32 s{sT}, s{sHEAD}, 2
    v_mov_b32 v{T+4}, s{sT}
    v_mov_b32 v{T+5}, 1
    s_waitcnt lgkmcnt(0)
    """)
    for st in (4, 2, 1):
        for w in range(st):
            o = (PR, PR + 1, PR + 2) if st == 1 else (KR + 2 * w, KR + 2 * w + 1, KR + 16 + w)
            a(f"v_add_f32 v{o[0]}, v{KR+2*w}, v{KR+2*(w+st)}")
            a(f"v_add_f32 v{o[1]}, v{KR+2*w+1}, v{KR+2*(w+st)+1}")
            a(f"v_add_f32 v{o[2]}, v{KR+16+w}, v{KR+16+w+st}")
    a(f"""
    v_mov_b32 v{PR+3}, v{PR+2}
    global_store_dwordx4 v{T+3}, v[{PR}:{PR+3}], s[{sWS}:{sWS+1}] sc1
    s_waitcnt vmcnt(0)
    s_mov_b64 exec, 1
    global_atomic_add v{T+6}, v{T+4}, v{T+5}, s[{sDBG}:{sDBG+1}] sc0
    s_waitcnt vmcnt(0)
    v_readfirstlane_b32 s{sT}, v{T+6}
    s_mov_b64 exec, -1
    s_cmp_eq_u32 s{sT}, 3
    s_cbranch_scc0 L_end
    """)
    for p in range(4):
        a(f"global_load_dwordx4 v[{KR+4*p}:{KR+4*p+3}], v{T+2}, s[{sWS}:{sWS+1}] offset:{1024*p} sc1")
    a(f"""
    s_lshl_b32 s{sT}, s{sHEAD}, 8
    v_lshl_add_u32 v{T}, v{LANE}, 2, s{sT}
    s_waitcnt vmcnt(0)
    """)
    for i in range(3):
        a(f"v_add_f32 v{KR+i}, v{KR+i}, v{KR+4+i}")
        a(f"v_add_f32 v{KR+8+i}, v{KR+8+i}, v{KR+12+i}")
    for i in range(3):
        a(f"v_add_f32 v{KR+i}, v{KR+i}, v{KR+8+i}")
    a(f"""
    v_add_f32 v{KR+2}, {hex(f2u(1e-6))}, v{KR+2}
    v_rcp_f32 v{KR+2}, v{KR+2}
    v_mul_f32 v{KR}, v{KR}, v{KR+2}
    v_mul_f32 v{KR+1}, v{KR+1}, v{KR+2}
    v_cvt_pk_bf16_f32 v{KR}, v{KR}, v{KR+1}
    global_store_dword v{T}, v{KR}, s[{sOUT}:{sOUT+1}]
    """)
    a.label("L_end")
    a("s_endpgm")
    a.label("L_qpost")
    a(f"v_mov_b32 v{T+2}, {hex(f2u(1e-6) - (3 << 23))}")
    a(f"s_mov_b32 s{sT}, {hex(f2u(0.015625))}")
    for i in range(8):
        x = PH + i
        a(f"""
        v_lshlrev_b32 v{T}, 16, v{x}
        v_and_b32 v{T+1}, s{sMASK}, v{x}
        v_fma_f32 v{T}, v{T}, s{sT}, v{T+2}
        v_fma_f32 v{T+1}, v{T+1}, s{sT}, v{T+2}
        v_cvt_pk_bf16_f32 v{PQ+i}, v{T}, v{T+1}
        """)
    a(f"v_mfma_f32_16x16x32_bf16 v[{C}:{C+3}], v[{ONES}:{ONES+3}], v[{PQ}:{PQ+3}], 0")
    a(f"v_mfma_f32_16x16x32_bf16 v[{C}:{C+3}], v[{ONES}:{ONES+3}], v[{PQ+4}:{PQ+7}], v[{C}:{C+3}]")
    for i in range(4): a(f"v_mul_f32 v{C+i}, {hex(f2u(1e-6) + (3 << 23))}, v{C+i}")
    a(f"s_mov_b32 s{sIT}, 0")
    a.flush()
    a("s_branch L_loop")
    a.raw(f""".section .rodata,"a"
.p2align 6
.amdhsa_kernel {NAME}_kernel
  .amdhsa_next_free_vgpr 256
  .amdhsa_next_free_sgpr 64
  .amdhsa_accum_offset 256
  .amdhsa_group_segment_fixed_size 0
  .amdhsa_kernarg_size 56
  .amdhsa_user_sgpr_count 2
  .amdhsa_user_sgpr_kernarg_segment_ptr 1
  .amdhsa_system_sgpr_workgroup_id_x 1
.end_amdhsa_kernel""")
    return a

if __name__ == "__main__":
    out = sys.argv[1]
    kw = dict(x.split("=") for x in sys.argv[2:])
    if "nt" in kw: kw["nt"] = "" if kw["nt"] == "0" else " " + kw["nt"].replace("+", " ")
    a = gen(**kw)
    open(out, "w").write(a.text())
    print("wrote", out, "nops inserted:", a.nops)
```

```python
import sys, struct
from asmlib import Asm, interleave

NAME = "standalone__linear_kernel_rfa__decode"
def f2u(x): return struct.unpack("<I", struct.pack("<f", x))[0]

def gen(nt=" nt", wgmap="xcd", keymap="contig", diag="0"):
    diag = int(diag)
    a = Asm()
    VK = [1, 2, 3, 4]
    VV = [5, 6]
    RK = [8, 9, 10, 11]
    RV = list(range(12, 20))
    NH = 20
    LANE = 21
    ONES = 24
    C = 28
    PQ = 32
    WPK = 40
    WD = 44
    SQD = 52
    SQA = 60
    KR = 64
    PR = 96
    PH = 128
    T = 144
    ACC = 152
    DEN = 184
    OM = 192
    SK, SV, SO = 4, 8, 12
    sQ, sOUT, sDBG, sWS = 16, 20, 22, 24
    sW, sHEAD, sPART, sOFF, sOFF2, sLB, sIT = 26, 27, 28, 29, 30, 31, 32
    sMASK, sSCALE, sL2E, sT, sT2 = 33, 34, 35, 36, 37
    sM = [40, 41, 42, 43]
    OMB = 131072; RED = 147456; REDS = 576
    LDS = RED + 8 * REDS
    STEP = 8192 if keymap == "contig" else 65536

    sST = 44
    def stamp(i):
        if diag: a(f"s_memrealtime s[{sST+2*i}:{sST+2*i+1}]")
    hdr = open("cdna_kernels/%s.s.ref" % NAME).read().split("; Override launch")[0]
    a.raw(hdr.rstrip())
    a.raw("; @launch grid=(256,1,1) block=(512,1,1) lds=%d" % LDS)
    a.raw('.amdgcn_target "amdgcn-amd-amdhsa--gfx950"\n.text\n.globl %s_kernel\n.p2align 8\n.type %s_kernel,@function' % (NAME, NAME))
    a.label(NAME + "_kernel")
    stamp(0)
    a(f"""
    s_load_dwordx2 s[{SK}:{SK+1}], s[0:1], 8
    s_load_dwordx2 s[{SV}:{SV+1}], s[0:1], 16
    s_load_dwordx2 s[{SO}:{SO+1}], s[0:1], 24
    s_load_dwordx2 s[{sQ}:{sQ+1}], s[0:1], 0
    s_load_dwordx4 s[{sOUT}:{sOUT+3}], s[0:1], 32
    s_load_dwordx2 s[{sWS}:{sWS+1}], s[0:1], 48
    s_cmp_ge_u32 s2, 256
    s_cbranch_scc1 L_end
    v_lshrrev_b32 v7, 6, v0
    v_and_b32 v{LANE}, 63, v0
    v_readfirstlane_b32 s{sW}, v7
    v_lshrrev_b32 v22, 4, v{LANE}          ; q = lane>>4
    v_and_b32 v23, 15, v{LANE}             ; n = lane&15
    s_mov_b32 s{SK+2}, 0x4000000
    s_mov_b32 s{SK+3}, 0x20000
    s_mov_b32 s{SV+2}, 0x4000000
    s_mov_b32 s{SV+3}, 0x20000
    s_mov_b32 s{SO+2}, 16384
    s_mov_b32 s{SO+3}, 0x20000
    """)
    if wgmap == "xcd":
        a(f"""
        s_and_b32 s{sHEAD}, s2, 7
        s_lshr_b32 s{sT}, s2, 5
        s_lshl_b32 s{sT}, s{sT}, 3
        s_or_b32 s{sHEAD}, s{sHEAD}, s{sT}
        s_lshr_b32 s{sPART}, s2, 3
        s_and_b32 s{sPART}, s{sPART}, 3
        """)
    else:
        a(f"""
        s_lshr_b32 s{sHEAD}, s2, 2
        s_and_b32 s{sPART}, s2, 3
        """)
    a(f"""
    v_xor_b32 v7, v22, v23
    v_lshlrev_b32 v7, 4, v7
    v_lshl_add_u32 v{VK[0]}, v22, 8, v7
    v_xor_b32 v{VK[1]}, 64, v{VK[0]}
    v_xor_b32 v{VK[2]}, 0x80, v{VK[0]}
    v_xor_b32 v{VK[3]}, 0xc0, v{VK[0]}
    v_lshlrev_b32 v7, 1, v22
    v_xor_b32 v7, v7, v23
    v_lshlrev_b32 v7, 4, v7
    v_lshl_add_u32 v{VV[0]}, v22, 8, v7
    v_xor_b32 v{VV[1]}, 0x80, v{VV[0]}
    s_lshl_b32 s{sOFF}, s{sHEAD}, 20
    s_lshl_b32 s{sT}, s{sPART}, 18
    s_add_u32 s{sOFF}, s{sOFF}, s{sT}
    s_lshl_b32 s{sT}, s{sW}, {15 if keymap == "contig" else 13}
    s_add_u32 s{sOFF}, s{sOFF}, s{sT}
    s_add_u32 s{sOFF2}, s{sOFF}, 4096
    s_lshl_b32 s{sLB}, s{sW}, 14
    s_mov_b32 s{sM[0]}, s{sLB}
    s_add_u32 s{sM[1]}, s{sLB}, 4096
    s_add_u32 s{sM[2]}, s{sLB}, 8192
    s_add_u32 s{sM[3]}, s{sLB}, 12288
    s_lshl_b32 s{sT}, s{sW}, 11
    s_add_u32 s{sT2}, s{sT}, {OMB}
    s_mov_b32 m0, s{sT2}
    s_and_b32 s{sT2}, s{sW}, 1
    s_lshl_b32 s{sT2}, s{sT2}, 7
    v_xor_b32 v{T}, s{sT2}, v{VK[0]}
    v_xor_b32 v{T+1}, s{sT2}, v{VK[1]}
    s_lshl_b32 s{sT2}, s{sHEAD}, 8
    v_lshl_add_u32 v{T+2}, v22, 4, s{sT2}
    s_waitcnt lgkmcnt(0)
    buffer_load_dwordx4 v{T}, s[{SO}:{SO+3}], s{sT} offen lds
    buffer_load_dwordx4 v{T+1}, s[{SO}:{SO+3}], s{sT} offen offset:1024 lds
    """)
    stamp(1)
    for j in range(4):
        a(f"global_load_dwordx4 v[{KR+4*j}:{KR+4*j+3}], v{T+2}, s[{sQ}:{sQ+1}] offset:{64*j}")
    def dmaK():
        o = []
        for tl in range(2):
            o.append(f"s_mov_b32 m0, s{sM[tl]}")
            for i in range(4):
                o.append(f"buffer_load_dwordx4 v{VK[i]}, s[{SK}:{SK+3}], s{[sOFF, sOFF2][tl]} offen offset:{1024*i}{nt} lds")
        return o
    def dmaV():
        o = []
        for tl in range(2):
            o.append(f"s_mov_b32 m0, s{sM[2+tl]}")
            for i in range(4):
                o.append(f"buffer_load_dwordx4 v{VV[i&1]}, s[{SV}:{SV+3}], s{[sOFF, sOFF2][tl]} offen offset:{1024*i}{nt} lds")
        return o
    for x in dmaK() + dmaV(): a(x)
    a(f"""
    s_add_u32 s{sOFF}, s{sOFF}, {STEP}
    s_add_u32 s{sOFF2}, s{sOFF2}, {STEP}
    v_xor_b32 v7, v22, v23
    v_lshlrev_b32 v7, 4, v7
    v_lshl_add_u32 v7, v23, 8, v7              ; n*256 + ((q^n)*16)
    v_add_u32 v{RK[0]}, s{sLB}, v7
    v_xor_b32 v{RK[1]}, 64, v{RK[0]}
    v_xor_b32 v{RK[2]}, 0x80, v{RK[0]}
    v_xor_b32 v{RK[3]}, 0xc0, v{RK[0]}
    v_add_u32 v{T+4}, {OMB}, v7
    v_xor_b32 v{T+5}, 64, v{T+4}
    v_xor_b32 v{T+6}, 0x80, v{T+4}
    v_xor_b32 v{T+7}, 0xc0, v{T+4}
    v_lshrrev_b32 v7, 2, v{LANE}
    v_and_b32 v{T}, 7, v7
    v_lshlrev_b32 v{T}, 5, v{T}
    v_lshl_add_u32 v{T}, v7, 8, v{T}
    v_and_b32 v7, 3, v{LANE}
    v_lshl_add_u32 v{T}, v7, 3, v{T}
    v_add_u32 v{RV[0]}, s{sLB}, v{T}
    """)
    for t in range(1, 8):
        a(f"v_xor_b32 v{RV[t]}, {hex(32*t)}, v{RV[0]}")
    a(f"""
    s_mov_b32 s{sMASK}, 0xffff0000
    s_mov_b32 s{sSCALE}, {hex(f2u(128.0 ** -0.25))}
    s_mov_b32 s{sL2E}, 0x3fb8aa3b
    v_mov_b32 v{NH}, -0.5
    """)
    for i in range(4): a(f"v_mov_b32 v{ONES+i}, 0x3f803f80")
    for i in range(36): a(f"v_mov_b32 v{ACC+i}, 0")
    for i in range(16): a(f"v_mov_b32 v{KR+16+i}, 0")
    a(f"""
    s_mov_b32 s{sIT}, -1
    s_waitcnt vmcnt(20)
    s_barrier
    """)
    for t in range(4):
        for j in range(4):
            r = OM + 16 * t + 4 * j
            a(f"ds_read_b128 v[{r}:{r+3}], v{T+4+j} offset:{4096*t}")
    a("s_waitcnt vmcnt(16) lgkmcnt(0)")
    stamp(2)
    a.flush()
    a("s_branch L_phi")
    a.label("L_loop")
    a("s_waitcnt vmcnt(12)")
    for j in range(4): a(f"ds_read_b128 v[{KR+4*j}:{KR+4*j+3}], v{RK[j]}")
    a("s_waitcnt vmcnt(8)")
    for j in range(4): a(f"ds_read_b128 v[{KR+16+4*j}:{KR+16+4*j+3}], v{RK[j]} offset:4096")
    a(f"s_cmp_eq_u32 s{sIT}, 3")
    a("s_waitcnt lgkmcnt(0)")
    a("s_cbranch_scc1 L_phi")
    for x in dmaK(): a(x)
    a.label("L_phi")
    def scale(tl, j):
        o = []
        for r in range(4):
            x = KR + 16 * tl + 4 * j + r
            t0 = T + 2 * (r & 1); t1 = t0 + 1
            o += [f"v_lshlrev_b32 v{t0}, 16, v{x}",
                  f"v_and_b32 v{t1}, s{sMASK}, v{x}",
                  f"v_mul_f32 v{t0}, s{sSCALE}, v{t0}",
                  f"v_mul_f32 v{t1}, s{sSCALE}, v{t1}",
                  f"v_cvt_pk_bf16_f32 v{x}, v{t0}, v{t1}"]
        for r in range(4):
            x = KR + 16 * tl + 4 * j + r
            acc = SQA + 2 * tl + (r & 1)
            if j == 0 and r < 2: o.append(f"v_dot2_f32_bf16 v{acc}, v{x}, v{x}, 0")
            else: o.append(f"v_dot2_f32_bf16 v{acc}, v{x}, v{x}, v{acc}")
        return o
    def projm(tl, j):
        o = []
        for t in range(4):
            d = PR + 16 * tl + 4 * t
            om = OM + 16 * t + 4 * j
            k = KR + 16 * tl + 4 * j
            c = "0" if j == 0 else f"v[{d}:{d+3}]"
            o.append(f"v_mfma_f32_16x16x32_bf16 v[{d}:{d+3}], v[{om}:{om+3}], v[{k}:{k+3}], {c}")
        return o
    def sqsum(tl):
        acc = SQA + 2 * tl
        return [f"v_add_f32 v{acc}, v{acc}, v{acc+1}"]
    def sqm(tl):
        acc = SQA + 2 * tl; d = SQD + 4 * tl
        return [f"v_mfma_f32_16x16x4_f32 v[{d}:{d+3}], v{NH}, v{acc}, 0"]
    def phi(tl):
        d = SQD + 4 * tl
        o = [f"v_cvt_pk_bf16_f32 v{d}, 0, v{d}"]
        for t in range(4):
            p = [PR + 16 * tl + 4 * t + r for r in range(4)]
            for x in p: o.append(f"v_cvt_pk_bf16_f32 v{x}, 0, v{x}")
            for x in p: o.append(f"v_add_f32 v{x}, v{d}, v{x}")
            for x in p: o.append(f"v_cvt_pk_bf16_f32 v{x}, 0, v{x}")
            for x in p: o.append(f"v_mul_f32 v{x}, s{sL2E}, v{x}")
            for x in p: o.append(f"v_exp_f32 v{x}, v{x}")
            h = PH + 8 * tl + 2 * t
            o.append(f"v_cvt_pk_bf16_f32 v{h}, v{p[0]}, v{p[1]}")
            o.append(f"v_cvt_pk_bf16_f32 v{h+1}, v{p[2]}, v{p[3]}")
        return o
    def wm(tl):
        d = WD + 4 * tl; h = PH + 8 * tl
        return [f"v_mfma_f32_16x16x32_bf16 v[{d}:{d+3}], v[{h}:{h+3}], v[{PQ}:{PQ+3}], v[{C}:{C+3}]",
                f"v_mfma_f32_16x16x32_bf16 v[{d}:{d+3}], v[{h+4}:{h+7}], v[{PQ+4}:{PQ+7}], v[{d}:{d+3}]"]
    steps = [(tl, j) for tl in range(2) for j in range(4)]
    body = scale(0, 0)
    for i in range(1, 8):
        tl, j = steps[i]
        side = projm(*steps[i - 1])
        main = scale(tl, j)
        if steps[i - 1] == (0, 3):
            main = main[:4] + sqsum(0) + main[4:]
            side = side + sqm(0)
        body += interleave(main, side, 5, lead=2)
    ph0 = phi(0)
    ph0 = ph0[:4] + sqsum(1) + ph0[4:]
    body += interleave(ph0, projm(1, 3) + sqm(1), 4, lead=1)
    for x in body: a(x)
    a(f"s_cmp_eq_u32 s{sIT}, -1")
    a.flush()
    a("s_cbranch_scc1 L_qpost")
    body = interleave(phi(1), wm(0), 6, lead=3)
    for x in body: a(x)
    a(f"v_cvt_pk_bf16_f32 v{WPK}, v{WD}, v{WD+1}")
    a(f"v_cvt_pk_bf16_f32 v{WPK+1}, v{WD+2}, v{WD+3}")
    for x in wm(1): a(x)
    a(f"s_cmp_eq_u32 s{sIT}, 3")
    a("s_waitcnt vmcnt(8)")
    a("s_cbranch_scc0 L_vrd")
    a("s_waitcnt vmcnt(0)")
    a.label("L_vrd", flush=False)
    for t in range(8):
        r = PR + 4 * t
        a(f"ds_read_b64_tr_b16 v[{r}:{r+1}], v{RV[t]} offset:8192")
        a(f"ds_read_b64_tr_b16 v[{r+2}:{r+3}], v{RV[t]} offset:12288")
    a(f"v_cvt_pk_bf16_f32 v{WPK+2}, v{WD+4}, v{WD+5}")
    a(f"v_cvt_pk_bf16_f32 v{WPK+3}, v{WD+6}, v{WD+7}")
    a(f"v_mfma_f32_16x16x32_bf16 v[{DEN}:{DEN+3}], v[{ONES}:{ONES+3}], v[{WPK}:{WPK+3}], v[{DEN}:{DEN+3}]")
    a("s_waitcnt lgkmcnt(0)")
    a("s_cbranch_scc1 L_pv")
    for x in dmaV(): a(x)
    a(f"s_add_u32 s{sOFF}, s{sOFF}, {STEP}")
    a(f"s_add_u32 s{sOFF2}, s{sOFF2}, {STEP}")
    a.label("L_pv", flush=False)
    for t in range(8):
        r = PR + 4 * t; d = ACC + 4 * t
        a(f"v_mfma_f32_16x16x32_bf16 v[{d}:{d+3}], v[{r}:{r+3}], v[{WPK}:{WPK+3}], v[{d}:{d+3}]")
    a(f"s_add_u32 s{sIT}, s{sIT}, 1")
    a(f"s_cmp_lt_u32 s{sIT}, 4")
    a("s_cbranch_scc1 L_loop")
    stamp(5)
    a(f"""
    s_mul_i32 s{sT}, s{sW}, {REDS}
    s_add_u32 s{sT}, s{sT}, {RED}
    v_lshrrev_b32 v{T}, 4, v{LANE}
    v_lshl_add_u32 v{T}, v{T}, 4, s{sT}
    s_mov_b32 exec_lo, 0x00010001
    s_mov_b32 exec_hi, 0x00010001
    """)
    a(f"ds_write_b32 v{T}, v{DEN} offset:512")
    for t in range(8):
        d = ACC + 4 * t
        a(f"ds_write_b128 v{T}, v[{d}:{d+3}] offset:{64*t}")
    a(f"""
    s_mov_b64 exec, -1
    s_cmp_eq_u32 s{sW}, 0
    s_waitcnt lgkmcnt(0)
    s_barrier
    s_cbranch_scc0 L_end
    v_lshlrev_b32 v{T}, 3, v{LANE}
    v_mov_b32 v{T+1}, {RED}
    v_add_u32 v{T}, {RED}, v{T}
    """)
    for w in range(8):
        a(f"ds_read_b64 v[{KR+2*w}:{KR+2*w+1}], v{T} offset:{REDS*w}")
        a(f"ds_read_b32 v{KR+16+w}, v{T+1} offset:{REDS*w+512}")
    a(f"""
    s_lshl_b32 s{sT}, s{sHEAD}, 12
    v_lshlrev_b32 v{T+2}, 4, v{LANE}
    v_add_u32 v{T+2}, s{sT}, v{T+2}
    s_lshl_b32 s{sT2}, s{sPART}, 10
    v_add_u32 v{T+3}, s{sT2}, v{T+2}
    s_lshr_b32 s{sT}, s{sHEAD}, 1
    s_lshl_b32 s{sT}, s{sT}, 2
    s_add_u32 s{sT}, s{sT}, 128
    v_mov_b32 v{T+4}, s{sT}
    s_and_b32 s38, s{sHEAD}, 1
    s_lshl_b32 s38, s38, 4
    s_lshl_b32 s{sT}, 1, s38
    v_mov_b32 v{T+5}, s{sT}
    s_waitcnt lgkmcnt(0)
    """)
    for st in (4, 2, 1):
        for w in range(st):
            o = (PR, PR + 1, PR + 2) if st == 1 else (KR + 2 * w, KR + 2 * w + 1, KR + 16 + w)
            a(f"v_add_f32 v{o[0]}, v{KR+2*w}, v{KR+2*(w+st)}")
            a(f"v_add_f32 v{o[1]}, v{KR+2*w+1}, v{KR+2*(w+st)+1}")
            a(f"v_add_f32 v{o[2]}, v{KR+16+w}, v{KR+16+w+st}")
    a(f"""
    v_mov_b32 v{PR+3}, v{PR+2}
    global_store_dwordx4 v{T+3}, v[{PR}:{PR+3}], s[{sWS}:{sWS+1}] sc1
    s_waitcnt vmcnt(0)
    s_mov_b64 exec, 1
    global_atomic_add v{T+6}, v{T+4}, v{T+5}, s[{sDBG}:{sDBG+1}] sc0
    s_waitcnt vmcnt(0)
    v_readfirstlane_b32 s{sT}, v{T+6}
    s_mov_b64 exec, -1
    s_lshr_b32 s{sT}, s{sT}, s38
    s_and_b32 s{sT}, s{sT}, 0xffff
    s_cmp_eq_u32 s{sT}, 3
    s_cbranch_scc0 L_fin
    """)
    for p in range(4):
        a(f"global_load_dwordx4 v[{KR+4*p}:{KR+4*p+3}], v{T+2}, s[{sWS}:{sWS+1}] offset:{1024*p} sc1")
    a(f"""
    s_lshl_b32 s{sT}, s{sHEAD}, 8
    v_lshl_add_u32 v{T}, v{LANE}, 2, s{sT}
    s_waitcnt vmcnt(0)
    """)
    for i in range(3):
        a(f"v_add_f32 v{KR+i}, v{KR+i}, v{KR+4+i}")
        a(f"v_add_f32 v{KR+8+i}, v{KR+8+i}, v{KR+12+i}")
    for i in range(3):
        a(f"v_add_f32 v{KR+i}, v{KR+i}, v{KR+8+i}")
    a(f"""
    v_add_f32 v{KR+2}, {hex(f2u(1e-6))}, v{KR+2}
    v_rcp_f32 v{KR+2}, v{KR+2}
    v_mul_f32 v{KR}, v{KR}, v{KR+2}
    v_mul_f32 v{KR+1}, v{KR+1}, v{KR+2}
    v_cvt_pk_bf16_f32 v{KR}, v{KR}, v{KR+1}
    global_store_dword v{T}, v{KR}, s[{sOUT}:{sOUT+1}]
    """)
    a.label("L_fin")
    if diag:
        a("s_waitcnt vmcnt(0)")
        stamp(6)
        a("s_waitcnt lgkmcnt(0)")
        a("s_mov_b64 exec, 1")
        a(f"v_mov_b32 v{T}, 0")
        for i in range(7):
            a(f"v_mov_b32 v{T+1}, s{sST+2*i}")
            a(f"v_not_b32 v{T+2}, v{T+1}")
            a(f"global_atomic_umax v{T}, v{T+1}, s[{sDBG}:{sDBG+1}] offset:{8*i+4}")
            a(f"global_atomic_umax v{T}, v{T+2}, s[{sDBG}:{sDBG+1}] offset:{8*i}")
            a("s_waitcnt vmcnt(0)")
    a.label("L_end")
    a("s_endpgm")
    a.label("L_qpost")
    a(f"v_mov_b32 v{T+2}, {hex(f2u(1e-6) - (3 << 23))}")
    a(f"s_mov_b32 s{sT}, {hex(f2u(0.015625))}")
    for i in range(8):
        x = PH + i
        a(f"""
        v_lshlrev_b32 v{T}, 16, v{x}
        v_and_b32 v{T+1}, s{sMASK}, v{x}
        v_fma_f32 v{T}, v{T}, s{sT}, v{T+2}
        v_fma_f32 v{T+1}, v{T+1}, s{sT}, v{T+2}
        v_cvt_pk_bf16_f32 v{PQ+i}, v{T}, v{T+1}
        """)
    a(f"v_mfma_f32_16x16x32_bf16 v[{C}:{C+3}], v[{ONES}:{ONES+3}], v[{PQ}:{PQ+3}], 0")
    a(f"v_mfma_f32_16x16x32_bf16 v[{C}:{C+3}], v[{ONES}:{ONES+3}], v[{PQ+4}:{PQ+7}], v[{C}:{C+3}]")
    for i in range(4): a(f"v_mul_f32 v{C+i}, {hex(f2u(1e-6) + (3 << 23))}, v{C+i}")
    a(f"s_mov_b32 s{sIT}, 0")
    stamp(3)
    if diag: a("s_waitcnt vmcnt(12)"); stamp(4); a("s_waitcnt lgkmcnt(0)")
    a.flush()
    a("s_branch L_loop")
    a.raw(f""".section .rodata,"a"
.p2align 6
.amdhsa_kernel {NAME}_kernel
  .amdhsa_next_free_vgpr 256
  .amdhsa_next_free_sgpr 64
  .amdhsa_accum_offset 256
  .amdhsa_group_segment_fixed_size 0
  .amdhsa_kernarg_size 56
  .amdhsa_user_sgpr_count 2
  .amdhsa_user_sgpr_kernarg_segment_ptr 1
  .amdhsa_system_sgpr_workgroup_id_x 1
.end_amdhsa_kernel""")
    return a

if __name__ == "__main__":
    out = sys.argv[1]
    kw = dict(x.split("=") for x in sys.argv[2:])
    if "nt" in kw: kw["nt"] = "" if kw["nt"] == "0" else " " + kw["nt"].replace("+", " ")
    a = gen(**kw)
    open(out, "w").write(a.text())
    print("wrote", out, "nops inserted:", a.nops)
```

```python
import sys, struct
from asmlib import Asm, interleave

NAME = "standalone__linear_kernel_rfa__decode"
def f2u(x): return struct.unpack("<I", struct.pack("<f", x))[0]

def gen(nt=" nt", wgmap="mix", diag="0", P="4", tlb="1", pat="p3", dyn="0", S="24", outsc=""):
    diag = int(diag); tlb = int(tlb); P = int(P); dyn = int(dyn); S = int(S)
    a = Asm()
    VRING = 65536; OMB = 131072; QB = 147456; LND = 147712; PRG = LND + 256; RED = 151552
    LDS = RED + 4096
    EPOCH = 0x80000
    SK, SV, SO, SQ = 4, 8, 12, 16
    sOUT, sDBG, sWS = 20, 22, 24
    sW, sHEAD, sPART, sT, sT2, sX, sBUD = 26, 27, 28, 29, 30, 31, 32
    sK, sKO, sVO, sMK, sMV, sNB, sFAIL = 33, 34, 35, 36, 37, 38, 39
    sF = 40
    sPOP = 48
    VK = [1, 2, 3, 4]; VV = [5, 6]; vLN = 8; vPA = 9; vT = 10; vP = 11
    sC, sKK, sTHR, sMASK, sSCALE, sL2E, sIT, sCN = 33, 34, 35, 36, 37, 38, 39, 40
    sMS = 42
    RK = [8, 9, 10, 11]; RV = list(range(12, 20))
    NH = 20; LANE = 21; cLN = 1; cPR = 2; cRED = 3; cW = 4; EP = 5; cWS = 6; cOUT = 22; cAT = 23
    ONES = 24; C = 28; PQ = 32; WPK = 40; WD = 44; SQD = 52; SQA = 60
    KR = 64; PR = 96; PH = 128; T = 144; ACC = 152; BD = 156; DUM = 160; DG = 164; XR = 168
    AD = 180
    OM = 192
    sRAW = 72
    def stampc(i):
        if diag:
            a(f"s_memrealtime s[{sRAW}:{sRAW+1}]")
            a("s_waitcnt lgkmcnt(0)")
            a(f"v_writelane_b32 v{DG}, s{sRAW}, {i}")
    def stampm():
        if diag:
            a(f"s_memrealtime s[{sRAW}:{sRAW+1}]")
            a("s_waitcnt lgkmcnt(0)")
            a(f"v_writelane_b32 v{DG}, s{sRAW}, m0")
            a("s_add_u32 m0, m0, 1")
    npoll = [0]
    def poll():
        l = "L_poll%d" % npoll[0]; npoll[0] += 1
        a.label(l, flush=False)
        a(f"""
        ds_read_b32 v{cW}, v{cLN}
        s_sub_u32 s{sBUD}, s{sBUD}, 1
        s_cbranch_scc1 L_end
        s_waitcnt lgkmcnt(0)
        v_readfirstlane_b32 s{sX}, v{cW}
        s_cmp_ge_u32 s{sX}, s{sTHR}
        s_cbranch_scc0 {l}
        """)

    hdr = open("cdna_kernels/%s.s.ref" % NAME).read().split("; Override launch")[0]
    a.raw(hdr.rstrip())
    a.raw("; @launch grid=(256,1,1) block=(320,1,1) lds=%d" % LDS)
    a.raw('.amdgcn_target "amdgcn-amd-amdhsa--gfx950"\n.text\n.globl %s_kernel\n.p2align 8\n.type %s_kernel,@function' % (NAME, NAME))
    a.label(NAME + "_kernel")
    if diag: a("s_memrealtime s[74:75]")
    a(f"""
    s_load_dwordx2 s[{SK}:{SK+1}], s[0:1], 8
    s_load_dwordx2 s[{SV}:{SV+1}], s[0:1], 16
    s_load_dwordx2 s[{SO}:{SO+1}], s[0:1], 24
    s_load_dwordx2 s[{SQ}:{SQ+1}], s[0:1], 0
    s_load_dwordx4 s[{sOUT}:{sOUT+3}], s[0:1], 32
    s_load_dwordx2 s[{sWS}:{sWS+1}], s[0:1], 48
    v_readfirstlane_b32 s{sW}, v0
    s_cmp_ge_u32 s2, 256
    s_cbranch_scc1 L_end
    """)
    if wgmap == "xcd":
        a(f"""
        s_and_b32 s{sHEAD}, s2, 7
        s_lshr_b32 s{sT}, s2, 5
        s_lshl_b32 s{sT}, s{sT}, 3
        s_or_b32 s{sHEAD}, s{sHEAD}, s{sT}
        s_bfe_u32 s{sPART}, s2, 0x20003
        """)
    elif wgmap == "lin":
        a(f"""
        s_lshr_b32 s{sHEAD}, s2, 2
        s_and_b32 s{sPART}, s2, 3
        """)
    elif wgmap == "mix":
        a(f"""
        s_bfe_u32 s{sPART}, s2, 0x20001
        s_xor_b32 s{sT}, s2, s{sPART}
        s_and_b32 s{sT}, s{sT}, 1
        s_lshr_b32 s{sHEAD}, s2, 3
        s_lshl1_add_u32 s{sHEAD}, s{sHEAD}, s{sT}
        """)
    a(f"""
    s_mov_b32 s{sBUD}, 0x100000
    s_cmp_lg_u32 s{sW}, 0
    s_cbranch_scc1 L_cons
    """)
    STEP = 32768 if pat == "p3" else 8192
    a(f"""
    s_setprio 3
    v_lshrrev_b32 v22, 4, v0
    v_and_b32 v23, 15, v0
    v_xor_b32 v7, v22, v23
    v_lshlrev_b32 v7, 4, v7
    v_lshl_add_u32 v{VK[0]}, v22, 8, v7
    v_xor_b32 v{VK[1]}, 64, v{VK[0]}
    v_xor_b32 v{VK[2]}, 0x80, v{VK[0]}
    v_xor_b32 v{VK[3]}, 0xc0, v{VK[0]}
    s_brev_b32 s{SK+2}, 32
    s_mov_b32 s{SK+3}, 0x20000
    s_lshl_b32 s{sKO}, s{sHEAD}, 20
    s_lshl_b32 s{sT}, s{sPART}, {13 if pat == "p3" else 18}
    s_add_u32 s{sKO}, s{sKO}, s{sT}
    s_mov_b32 s{sK}, 0
    s_mov_b32 s{sMK}, 0
    s_mov_b32 s{sNB}, {255 if dyn else 32}
    """)
    if diag:
        a("s_waitcnt lgkmcnt(0)")
        a(f"v_mov_b32 v{DG}, 0")
        a(f"v_writelane_b32 v{DG}, s74, 0")
        stampc(1)
    a("s_waitcnt lgkmcnt(0)")
    def push(val_code):
        a(f"s_mov_b32 s{sPOP}, s{sF+P-1}")
        for i in range(P - 1, 0, -1): a(f"s_mov_b32 s{sF+i}, s{sF+i-1}")
        for x in val_code: a(x)
    def publish(src):
        a(f"s_or_b32 s{sT}, s{src}, s{sNB}")
        a(f"v_mov_b32 v{vT}, s{sT}")
    a.label("L_k")
    a(f"""
    s_mov_b32 m0, s{sMK}
    s_add_u32 s{sT}, s{sKO}, 4096
    """)
    for i in range(4): a(f"buffer_load_dwordx4 v{VK[i]}, s[{SK}:{SK+3}], s{sKO} offen offset:{1024*i}{nt} lds")
    a(f"s_add_u32 m0, s{sMK}, 4096")
    a(f"s_cmp_eq_u32 s{sK}, 0")
    for i in range(4): a(f"buffer_load_dwordx4 v{VK[i]}, s[{SK}:{SK+3}], s{sT} offen offset:{1024*i}{nt} lds")
    a("s_cbranch_scc1 L_omega")
    a.label("L_omret")
    a(f"""
    s_add_u32 s{sMK}, s{sMK}, 8192
    s_and_b32 s{sMK}, s{sMK}, 0xffff
    s_add_u32 s{sKO}, s{sKO}, {STEP}
    """)
    push([f"s_lshl_b32 s{sF}, s{sK}, 9", f"s_or_b32 s{sF}, s{sF}, 256"])
    a(f"s_cmp_eq_u32 s{sPOP}, 0")
    a("s_cbranch_scc1 L_v")
    publish(sPOP)
    a(f"s_waitcnt vmcnt({8*P})")
    a(f"ds_write_b32 v{vLN}, v{vT}")
    a.label("L_v", flush=False)
    a(f"""
    s_sub_u32 s{sT2}, s{sK}, 3
    s_cbranch_scc1 L_next
    """)
    a.label("L_chk", flush=False)
    a(f"""
    ds_read_b32 v{vP}, v{vPA}
    s_sub_u32 s{sBUD}, s{sBUD}, 1
    s_cbranch_scc1 L_end
    s_and_b32 s{sT}, s{sT2}, 3
    s_waitcnt lgkmcnt(0)
    v_readlane_b32 s{sX}, v{vP}, s{sT}
    s_lshr_b32 s{sT}, s{sT2}, 2
    s_cmp_ge_u32 s{sX}, s{sT}
    s_cbranch_scc0 L_chk
    s_mov_b32 m0, s{sMV}
    s_add_u32 s{sT}, s{sVO}, 4096
    """)
    for i in range(4): a(f"buffer_load_dwordx4 v{VV[i&1]}, s[{SV}:{SV+3}], s{sVO} offen offset:{1024*i}{nt} lds")
    a(f"s_add_u32 m0, s{sMV}, 4096")
    a(f"s_add_u32 s{sVO}, s{sVO}, {STEP}")
    for i in range(4): a(f"buffer_load_dwordx4 v{VV[i&1]}, s[{SV}:{SV+3}], s{sT} offen offset:{1024*i}{nt} lds")
    a(f"""
    s_add_u32 s{sMV}, s{sMV}, 8192
    s_and_b32 s{sMV}, s{sMV}, 0xffff
    s_or_b32 s{sMV}, s{sMV}, {VRING}
    """)
    push([f"s_lshl_b32 s{sF}, s{sT2}, 9", f"s_add_u32 s{sF}, s{sF}, 2048"])
    if P > 4:
        a(f"s_cmp_eq_u32 s{sPOP}, 0")
        a("s_cbranch_scc1 L_next")
    publish(sPOP)
    a(f"s_waitcnt vmcnt({8*P})")
    a(f"ds_write_b32 v{vLN}, v{vT}")
    if diag:
        a(f"s_cmp_eq_u32 s{sK}, 3")
        a("s_cbranch_scc0 L_d1")
        stampc(2)
        a.label("L_d1", flush=False)
        a(f"s_cmp_eq_u32 s{sK}, 17")
        a("s_cbranch_scc0 L_d2")
        stampc(3)
        a.label("L_d2", flush=False)
    a.label("L_next", flush=False)
    a(f"""
    s_add_u32 s{sK}, s{sK}, 1
    s_cmp_lt_u32 s{sK}, s{sNB}
    s_cbranch_scc1 L_k
    s_add_u32 s{sT}, s{sNB}, 3
    s_cmp_lt_u32 s{sK}, s{sT}
    s_cbranch_scc1 L_v
    """)
    stampc(4)
    for p in range(P - 1, -1, -1):
        publish(sF + p)
        a(f"s_waitcnt vmcnt({8*p})")
        a(f"ds_write_b32 v{vLN}, v{vT}")
    if diag:
        stampc(5)
        a(f"s_sub_u32 s{sT}, 0x100000, s{sBUD}")
        a(f"v_writelane_b32 v{DG}, s{sT}, 6")
        a(f"v_mov_b32 v{LANE}, v0")
        a.flush()
        a("s_branch L_fin")
    else:
        a("s_waitcnt lgkmcnt(0)")
        a("s_endpgm")
    a.label("L_omega")
    a(f"""
    s_mov_b32 s{SO+2}, 16384
    s_mov_b32 s{SO+3}, 0x20000
    s_mov_b32 m0, {OMB}
    s_mov_b32 s{sT}, 0
    """)
    a.label("L_om1", flush=False)
    a(f"s_cmp_eq_u32 s{sT}, 12288")
    for i in range(4): a(f"buffer_load_dwordx4 v{VK[i]}, s[{SO}:{SO+3}], s{sT} offen offset:{1024*i} lds")
    a(f"""
    s_cbranch_scc1 L_om2
    s_add_u32 m0, m0, 4096
    s_add_u32 s{sT}, s{sT}, 4096
    s_branch L_om1
    """)
    a.label("L_om2")
    a(f"""
    s_mov_b32 m0, {QB}
    s_mov_b32 s{SQ+2}, 16384
    s_mov_b32 s{SQ+3}, 0x20000
    s_lshl_b32 s{sT}, s{sHEAD}, 8
    v_lshlrev_b32 v{vLN}, 2, v0
    buffer_load_dword v{vLN}, s[{SQ}:{SQ+3}], s{sT} offen lds
    s_mov_b32 s{SV+2}, s{SK+2}
    s_mov_b32 s{SV+3}, s{SK+3}
    v_lshlrev_b32 v7, 1, v22
    v_xor_b32 v7, v7, v23
    v_lshlrev_b32 v7, 4, v7
    v_lshl_add_u32 v{VV[0]}, v22, 8, v7
    v_xor_b32 v{VV[1]}, 0x80, v{VV[0]}
    v_and_b32 v7, 3, v0
    v_lshl_add_u32 v{vPA}, v7, 8, v{vLN}
    v_add_u32 v{vPA}, {PRG}, v{vPA}
    v_add_u32 v{vLN}, {LND}, v{vLN}
    s_mov_b32 s{sVO}, s{sKO}
    s_mov_b32 s{sMV}, {VRING}
    """)
    for i in range(P): a(f"s_mov_b32 s{sF+i}, 0")
    a("s_barrier")
    a.flush()
    a("s_branch L_omret")
    a.label("L_cons")
    a(f"""
    s_lshr_b32 s{sC}, s{sW}, 6
    s_sub_u32 s{sC}, s{sC}, 1
    v_and_b32 v{LANE}, 63, v0
    v_lshlrev_b32 v{cLN}, 2, v{LANE}
    v_add_u32 v{cLN}, {LND}, v{cLN}
    s_lshl_b32 s{sT}, s{sC}, 8
    v_add_u32 v{cPR}, s{sT}, v{cLN}
    v_mov_b32 v{ACC}, 0
    ds_write_b32 v{cLN}, v{ACC}
    ds_write_b32 v{cPR}, v{ACC} offset:256
    v_lshrrev_b32 v22, 4, v{LANE}          ; q = lane>>4
    v_and_b32 v23, 15, v{LANE}             ; n = lane&15
    s_lshl_b32 s{sT}, s{sC}, 13
    v_xor_b32 v7, v22, v23
    v_lshlrev_b32 v7, 4, v7
    v_lshl_add_u32 v7, v23, 8, v7              ; n*256 + ((q^n)*16)
    v_add_u32 v{RK[0]}, s{sT}, v7
    v_xor_b32 v{RK[1]}, 64, v{RK[0]}
    v_xor_b32 v{RK[2]}, 0x80, v{RK[0]}
    v_xor_b32 v{RK[3]}, 0xc0, v{RK[0]}
    v_add_u32 v{T+4}, {OMB}, v7
    v_xor_b32 v{T+5}, 64, v{T+4}
    v_xor_b32 v{T+6}, 0x80, v{T+4}
    v_xor_b32 v{T+7}, 0xc0, v{T+4}
    s_or_b32 s{sT}, s{sT}, {VRING}
    v_lshrrev_b32 v7, 2, v{LANE}
    v_and_b32 v{T}, 7, v7
    v_lshlrev_b32 v{T}, 5, v{T}
    v_lshl_add_u32 v{T}, v7, 8, v{T}
    v_and_b32 v7, 3, v{LANE}
    v_lshl_add_u32 v{T}, v7, 3, v{T}
    v_add_u32 v{RV[0]}, s{sT}, v{T}
    s_waitcnt lgkmcnt(0)
    s_barrier
    """)
    if diag:
        a(f"v_mov_b32 v{DG}, 0")
        a(f"v_writelane_b32 v{DG}, s74, 0")
        stampc(1)
        a("s_mov_b32 m0, 8")
    a(f"""
    s_lshl_b32 s{sT}, s{sHEAD}, 7
    s_add_u32 s{sT}, s{sT}, {EPOCH}
    v_mov_b32 v{T}, s{sT}
    global_load_dword v{EP}, v{T}, s[{sWS}:{sWS+1}] sc1
    s_lshl_b32 s{sT}, s{sHEAD}, 8
    v_lshl_add_u32 v{T+3}, v22, 4, 0
    v_lshl_add_u32 v{cOUT}, v22, 3, s{sT}
    v_lshl_add_u32 v{cOUT}, v23, 5, v{cOUT}
    s_lshl_b32 s{sT}, s{sHEAD}, 2
    v_mov_b32 v{cAT}, s{sT}
    v_add_u32 v{T+3}, {QB}, v{T+3}
    """)
    if tlb:
        a(f"global_load_dword v{DUM}, v{cAT}, s[{sOUT}:{sOUT+1}]")
        a(f"global_load_dword v{DUM+1}, v{cAT}, s[{sDBG}:{sDBG+1}] sc1")
    for t in range(1, 8):
        a(f"v_xor_b32 v{RV[t]}, {hex(32*t)}, v{RV[0]}")
    a(f"""
    s_lshl_b32 s{sT}, s{sC}, 10
    s_add_u32 s{sT}, s{sT}, {RED}
    v_lshl_add_u32 v{cRED}, v{LANE}, 4, s{sT}
    s_lshl_b32 s{sT}, s{sHEAD}, 13
    s_lshl_b32 s{sT2}, s{sPART}, 11
    s_add_u32 s{sT}, s{sT}, s{sT2}
    v_lshl_add_u32 v{cWS}, v{LANE}, 4, s{sT}
    v_xor_b32 v{AD}, 0x800, v{cWS}
    v_xor_b32 v{AD+1}, 0x1000, v{cWS}
    v_xor_b32 v{AD+2}, 0x1800, v{cWS}
    s_mov_b32 s{sMASK}, 0xffff0000
    s_mov_b32 s{sSCALE}, {hex(f2u(128.0 ** -0.25))}
    s_mov_b32 s{sL2E}, 0x3fb8aa3b
    v_mov_b32 v{NH}, -0.5
    s_mov_b32 s{sMS}, 0x00010001
    s_mov_b32 s{sMS+1}, 0x00010001
    s_mov_b32 s{sMS+16}, 0xff00ff00
    s_mov_b32 s{sMS+17}, 0xff00ff00
    """)
    for t in range(1, 8): a(f"s_lshl_b64 s[{sMS+2*t}:{sMS+2*t+1}], s[{sMS}:{sMS+1}], {t}")
    for i in range(4): a(f"v_mov_b32 v{ONES+i}, 0x3f803f80")
    for i in range(1, 4): a(f"v_mov_b32 v{ACC+i}, 0")
    for i in range(16): a(f"v_mov_b32 v{KR+16+i}, 0")
    a(f"""
    s_mov_b32 s{sIT}, -1
    s_mov_b32 s{sKK}, s{sC}
    s_mov_b32 s{sTHR}, 256
    """)
    poll()
    stampc(2)
    for j in range(4): a(f"ds_read_b128 v[{KR+4*j}:{KR+4*j+3}], v{T+3} offset:{64*j}")
    for t in range(4):
        for j in range(4):
            r = OM + 16 * t + 4 * j
            a(f"ds_read_b128 v[{r}:{r+3}], v{T+4+j} offset:{4096*t}")
    a("s_waitcnt lgkmcnt(0)")
    a.flush()
    a("s_branch L_phi")
    a.label("L_loop")
    a(f"s_lshl_b32 s{sTHR}, s{sKK}, 9")
    a(f"s_or_b32 s{sTHR}, s{sTHR}, 256")
    poll()
    stampm()
    for tl in range(2):
        for j in range(4): a(f"ds_read_b128 v[{KR+16*tl+4*j}:{KR+16*tl+4*j+3}], v{RK[j]} offset:{4096*tl}")
    a(f"""
    s_add_u32 s{sIT}, s{sIT}, 1
    s_and_b32 s{sCN}, s{sX}, 255
    v_mov_b32 v{cW}, s{sIT}
    """)
    for j in range(4): a(f"v_xor_b32 v{RK[j]}, 0x8000, v{RK[j]}")
    a("s_waitcnt lgkmcnt(0)")
    a(f"ds_write_b32 v{cPR}, v{cW} offset:256")
    a.label("L_phi")
    def scale(tl, j):
        o = []
        for r in range(4):
            x = KR + 16 * tl + 4 * j + r
            t0 = T + 2 * (r & 1); t1 = t0 + 1
            o += [f"v_lshlrev_b32 v{t0}, 16, v{x}",
                  f"v_and_b32 v{t1}, s{sMASK}, v{x}",
                  f"v_mul_f32 v{t0}, s{sSCALE}, v{t0}",
                  f"v_mul_f32 v{t1}, s{sSCALE}, v{t1}",
                  f"v_cvt_pk_bf16_f32 v{x}, v{t0}, v{t1}"]
        for r in range(4):
            x = KR + 16 * tl + 4 * j + r
            acc = SQA + 2 * tl + (r & 1)
            if j == 0 and r < 2: o.append(f"v_dot2_f32_bf16 v{acc}, v{x}, v{x}, 0")
            else: o.append(f"v_dot2_f32_bf16 v{acc}, v{x}, v{x}, v{acc}")
        return o
    def projm(tl, j):
        o = []
        for t in range(4):
            d = PR + 16 * tl + 4 * t
            om = OM + 16 * t + 4 * j
            k = KR + 16 * tl + 4 * j
            c = "0" if j == 0 else f"v[{d}:{d+3}]"
            o.append(f"v_mfma_f32_16x16x32_bf16 v[{d}:{d+3}], v[{om}:{om+3}], v[{k}:{k+3}], {c}")
        return o
    def sqsum(tl):
        acc = SQA + 2 * tl
        return [f"v_add_f32 v{acc}, v{acc}, v{acc+1}"]
    def sqm(tl):
        acc = SQA + 2 * tl; d = SQD + 4 * tl
        return [f"v_mfma_f32_16x16x4_f32 v[{d}:{d+3}], v{NH}, v{acc}, 0"]
    def phi(tl):
        d = SQD + 4 * tl
        o = [f"v_cvt_pk_bf16_f32 v{d}, 0, v{d}"]
        for t in range(4):
            p = [PR + 16 * tl + 4 * t + r for r in range(4)]
            for x in p: o.append(f"v_cvt_pk_bf16_f32 v{x}, 0, v{x}")
            for x in p: o.append(f"v_add_f32 v{x}, v{d}, v{x}")
            for x in p: o.append(f"v_cvt_pk_bf16_f32 v{x}, 0, v{x}")
            for x in p: o.append(f"v_mul_f32 v{x}, s{sL2E}, v{x}")
            for x in p: o.append(f"v_exp_f32 v{x}, v{x}")
            h = PH + 8 * tl + 2 * t
            o.append(f"v_cvt_pk_bf16_f32 v{h}, v{p[0]}, v{p[1]}")
            o.append(f"v_cvt_pk_bf16_f32 v{h+1}, v{p[2]}, v{p[3]}")
        return o
    def wm(tl):
        d = WD + 4 * tl; h = PH + 8 * tl
        return [f"v_mfma_f32_16x16x32_bf16 v[{d}:{d+3}], v[{h}:{h+3}], v[{PQ}:{PQ+3}], v[{C}:{C+3}]",
                f"v_mfma_f32_16x16x32_bf16 v[{d}:{d+3}], v[{h+4}:{h+7}], v[{PQ+4}:{PQ+7}], v[{d}:{d+3}]"]
    def bm(t): return KR + 4 * t if t < 8 else BD
    def masks(i): return [f"v_cndmask_b32_e64 v{bm(t)+i}, 0, v{WPK+i}, s[{sMS+2*t}:{sMS+2*t+1}]" for t in (8, 0, 1, 2, 3, 4, 5, 6, 7)]
    steps = [(tl, j) for tl in range(2) for j in range(4)]
    body = scale(0, 0)
    for i in range(1, 8):
        tl, j = steps[i]
        side = projm(*steps[i - 1])
        main = scale(tl, j)
        if steps[i - 1] == (0, 3):
            main = main[:4] + sqsum(0) + main[4:]
            side = side + sqm(0)
        body += interleave(main, side, 5, lead=2)
    ph0 = phi(0)
    ph0 = ph0[:4] + sqsum(1) + ph0[4:]
    body += interleave(ph0, projm(1, 3) + sqm(1), 4, lead=1)
    for x in body: a(x)
    a(f"s_cmp_eq_u32 s{sIT}, -1")
    a.flush()
    a("s_cbranch_scc1 L_qpost")
    body = interleave(phi(1), wm(0), 6, lead=3)
    for x in body: a(x)
    for x in wm(1): a(x)
    a(f"v_cvt_pk_bf16_f32 v{WPK}, v{WD}, v{WD+1}")
    a(f"v_cvt_pk_bf16_f32 v{WPK+1}, v{WD+2}, v{WD+3}")
    a(f"s_add_u32 s{sT}, s{sKK}, 1")
    a(f"s_add_u32 s{sTHR}, s{sTHR}, {7*256}")
    for x in masks(0) + masks(1): a(x)
    a(f"v_cvt_pk_bf16_f32 v{WPK+2}, v{WD+4}, v{WD+5}")
    a(f"v_cvt_pk_bf16_f32 v{WPK+3}, v{WD+6}, v{WD+7}")
    a(f"s_cmp_eq_u32 s{sT}, s{sCN}")
    for x in masks(2) + masks(3): a(x)
    a("s_cbranch_scc0 L_nofin")
    G = PH
    a(f"""
    s_waitcnt vmcnt(0)
    v_mov_b32 v{T}, 1
    s_mov_b64 exec, 1
    global_atomic_add v{T+1}, v{cAT}, v{T}, s[{sDBG}:{sDBG+1}] sc0 sc1
    s_mov_b64 exec, -1
    """)
    def specloads():
        for p in range(3):
            a(f"global_load_dwordx4 v[{OM+8*p}:{OM+8*p+3}], v{AD+p}, s[{sWS}:{sWS+1}] sc1")
            a(f"global_load_dwordx4 v[{OM+8*p+4}:{OM+8*p+7}], v{AD+p}, s[{sWS}:{sWS+1}] offset:1024 sc1")
    specloads()
    a(f"v_add_u32 v{EP}, 0x9e3779b9, v{EP}")
    for i in range(4): a(f"v_mov_b32 v{G+2*i+1}, v{EP}")
    a.label("L_nofin", flush=False)
    a(f"v_mfma_f32_16x16x32_bf16 v[{ACC}:{ACC+3}], v[{ONES}:{ONES+3}], v[{BD}:{BD+3}], v[{ACC}:{ACC+3}]")
    poll()
    stampm()
    for t in range(8):
        r = PR + 4 * t
        a(f"ds_read_b64_tr_b16 v[{r}:{r+1}], v{RV[t]}")
        a(f"ds_read_b64_tr_b16 v[{r+2}:{r+3}], v{RV[t]} offset:4096")
    a(f"s_and_b32 s{sCN}, s{sX}, 255")
    a(f"s_add_u32 s{sKK}, s{sKK}, 4")
    a(f"s_cmp_lt_u32 s{sKK}, s{sCN}")
    for t in range(8):
        r = PR + 4 * t
        a(f"s_waitcnt lgkmcnt({14-2*t})")
        a(f"v_mfma_f32_16x16x32_bf16 v[{ACC}:{ACC+3}], v[{r}:{r+3}], v[{bm(t)}:{bm(t)+3}], v[{ACC}:{ACC+3}]")
        a(f"v_xor_b32 v{RV[t]}, 0x8000, v{RV[t]}")
    a("s_cbranch_scc1 L_loop")
    a(f"""
    s_sub_u32 s{sT}, s{sKK}, 3
    s_cmp_eq_u32 s{sT}, s{sCN}
    s_cbranch_scc1 L_last
    """)
    a.flush()
    a(f"""
    ds_write_b128 v{cRED}, v[{ACC}:{ACC+3}]
    s_waitcnt lgkmcnt(0)
    s_barrier
    """)
    a("s_branch L_fin" if diag else "s_endpgm")
    a.label("L_last", flush=False)
    a(f"""
    v_xor_b32 v{T+2}, 0x400, v{cRED}
    v_xor_b32 v{T+3}, 0x800, v{cRED}
    v_xor_b32 v{T+4}, 0xc00, v{cRED}
    s_barrier
    ds_read_b128 v[{XR}:{XR+3}], v{T+2}
    ds_read_b128 v[{XR+4}:{XR+7}], v{T+3}
    ds_read_b128 v[{XR+8}:{XR+11}], v{T+4}
    s_waitcnt vmcnt(6)
    v_readfirstlane_b32 s{sT}, v{T+1}
    """)
    stampc(4)
    a(f"""
    s_cmp_eq_u32 s{sT}, 3
    s_waitcnt lgkmcnt(0)
    """)
    for i in range(4):
        a(f"v_add_f32 v{ACC+i}, v{ACC+i}, v{XR+i}")
        a(f"v_add_f32 v{XR+4+i}, v{XR+4+i}, v{XR+8+i}")
    for i in range(4): a(f"v_add_f32 v{G+2*i}, v{ACC+i}, v{XR+4+i}")
    a(f"""
    s_cbranch_scc1 L_final
    global_store_dwordx4 v{cWS}, v[{G}:{G+3}], s[{sWS}:{sWS+1}] sc1
    global_store_dwordx4 v{cWS}, v[{G+4}:{G+7}], s[{sWS}:{sWS+1}] offset:1024 sc1
    """)
    a("s_branch L_fin" if diag else "s_endpgm")
    a.label("L_again")
    a(f"s_sub_u32 s{sBUD}, s{sBUD}, 16")
    a("s_cbranch_scc1 L_end")
    specloads()
    a.label("L_final")
    a("s_waitcnt vmcnt(0)")
    tags = [OM + 8 * p + 2 * i + 1 for p in range(3) for i in range(4)]
    a(f"v_min3_u32 v{T+2}, v{EP}, v{tags[0]}, v{tags[1]}")
    a(f"v_max3_u32 v{T+3}, v{EP}, v{tags[0]}, v{tags[1]}")
    for i in range(2, 12, 2):
        a(f"v_min3_u32 v{T+2}, v{T+2}, v{tags[i]}, v{tags[i+1]}")
        a(f"v_max3_u32 v{T+3}, v{T+3}, v{tags[i]}, v{tags[i+1]}")
    a(f"v_cmp_ne_u32 vcc, v{T+2}, v{T+3}")
    for i in range(4):
        a(f"v_add_f32 v{XR+i}, v{G+2*i}, v{OM+2*i}")
        a(f"v_add_f32 v{XR+4+i}, v{OM+8+2*i}, v{OM+16+2*i}")
    a("s_cbranch_vccnz L_again")
    for i in range(4): a(f"v_add_f32 v{XR+i}, v{XR+i}, v{XR+4+i}")
    a(f"""
    v_mov_b32 v{T+4}, {hex(f2u(1e-6))}
    s_lshl_b32 s{sT}, s{sHEAD}, 7
    s_add_u32 s{sT}, s{sT}, {EPOCH}
    v_add_f32_dpp v{T+4}, v{XR}, v{T+4} row_ror:8 row_mask:0xf bank_mask:0xf
    v_rcp_f32 v{T+4}, v{T+4}
    v_mov_b32 v{T+5}, s{sT}
    """)
    for i in range(4): a(f"v_mul_f32 v{XR+i}, v{XR+i}, v{T+4}")
    a(f"""
    s_not_b64 exec, s[{sMS+16}:{sMS+17}]
    v_cvt_pk_bf16_f32 v{XR}, v{XR}, v{XR+1}
    v_cvt_pk_bf16_f32 v{XR+1}, v{XR+2}, v{XR+3}
    global_store_dwordx2 v{cOUT}, v[{XR}:{XR+1}], s[{sOUT}:{sOUT+1}]{outsc}
    s_mov_b64 exec, 1
    global_store_dword v{T+5}, v{EP}, s[{sWS}:{sWS+1}]{outsc}
    """)
    if diag:
        a("s_mov_b64 exec, -1")
        stampc(5)
        a.label("L_fin")
        stampc(6) if False else None
        a(f"s_memrealtime s[{sRAW}:{sRAW+1}]")
        a(f"s_getreg_b32 s76, hwreg(HW_REG_XCC_ID)")
        a("s_waitcnt lgkmcnt(0)")
        a(f"v_writelane_b32 v{DG}, s{sRAW}, 7")
        a(f"v_writelane_b32 v{DG}, s76, 63")
        a(f"""
        s_mul_i32 s{sT}, s2, 5
        s_lshr_b32 s{sT2}, s{sW}, 6
        s_add_u32 s{sT}, s{sT}, s{sT2}
        s_lshl_b32 s{sT}, s{sT}, 8
        s_add_u32 s{sT}, s{sT}, 0x100000
        v_lshl_add_u32 v{T}, v{LANE}, 2, s{sT}
        global_store_dword v{T}, v{DG}, s[{sWS}:{sWS+1}]
        """)
    a.label("L_end")
    a("s_endpgm")
    a.label("L_qpost")
    a(f"v_mov_b32 v{T+2}, {hex(f2u(1e-6) - (3 << 23))}")
    a(f"s_mov_b32 s{sT}, {hex(f2u(0.015625))}")
    for i in range(8):
        x = PH + i
        a(f"""
        v_lshlrev_b32 v{T}, 16, v{x}
        v_and_b32 v{T+1}, s{sMASK}, v{x}
        v_fma_f32 v{T}, v{T}, s{sT}, v{T+2}
        v_fma_f32 v{T+1}, v{T+1}, s{sT}, v{T+2}
        v_cvt_pk_bf16_f32 v{PQ+i}, v{T}, v{T+1}
        """)
    a(f"v_mfma_f32_16x16x32_bf16 v[{C}:{C+3}], v[{ONES}:{ONES+3}], v[{PQ}:{PQ+3}], 0")
    a(f"v_mfma_f32_16x16x32_bf16 v[{C}:{C+3}], v[{ONES}:{ONES+3}], v[{PQ+4}:{PQ+7}], v[{C}:{C+3}]")
    for i in range(4): a(f"v_mul_f32 v{C+i}, {hex(f2u(1e-6) + (3 << 23))}, v{C+i}")
    a(f"s_mov_b32 s{sIT}, 0")
    stampc(3)
    a.flush()
    a("s_branch L_loop")
    a.raw(f""".section .rodata,"a"
.p2align 6
.amdhsa_kernel {NAME}_kernel
  .amdhsa_next_free_vgpr 256
  .amdhsa_next_free_sgpr 80
  .amdhsa_accum_offset 256
  .amdhsa_group_segment_fixed_size 0
  .amdhsa_kernarg_size 56
  .amdhsa_user_sgpr_count 2
  .amdhsa_user_sgpr_kernarg_segment_ptr 1
  .amdhsa_system_sgpr_workgroup_id_x 1
.end_amdhsa_kernel""")
    return a

if __name__ == "__main__":
    out = sys.argv[1]
    kw = dict(x.split("=") for x in sys.argv[2:])
    for key in ("nt", "outsc"):
        if key in kw: kw[key] = "" if kw[key] == "0" else " " + kw[key].replace("+", " ")
    a = gen(**kw)
    open(out, "w").write(a.text())
    print("wrote", out, "nops inserted:", a.nops)
```

```python
import sys, struct
from asmlib import Asm, interleave

NAME = "standalone__linear_kernel_rfa__decode"
def f2u(x): return struct.unpack("<I", struct.pack("<f", x))[0]

def gen(nt=" nt", wgmap="mix", diag="0", P="4", tlb="1", pat="p3", dyn="0", S="24", outsc="", sleep="0", pf="0", al="8"):
    pf = int(pf)
    diag = int(diag); tlb = int(tlb); P = int(P); dyn = int(dyn); S = int(S)
    a = Asm()
    VRING = 65536; OMB = 131072; QB = 147456; LND = 147712; PRG = LND + 256; RED = 151552
    LDS = RED + 4096
    EPOCH = 0x80000
    SK, SV, SO, SQ = 4, 8, 12, 16
    sOUT, sDBG, sWS = 20, 22, 24
    sW, sHEAD, sPART, sT, sT2, sX, sBUD = 26, 27, 28, 29, 30, 31, 32
    sK, sKO, sVO, sMK, sMV, sNB, sFAIL = 33, 34, 35, 36, 37, 38, 39
    sF = 40
    sPOP = 48
    VK = [1, 2, 3, 4]; VV = [5, 6]; vLN = 8; vPA = 9; vT = 10; vP = 11
    sC, sKK, sTHR, sMASK, sSCALE, sL2E, sIT, sCN = 33, 34, 35, 36, 37, 38, 39, 40
    sMS = 42
    RK = [8, 9, 10, 11]; RV = list(range(12, 20))
    NH = 20; LANE = 21; cLN = 1; cPR = 2; cRED = 3; cW = 4; EP = 5; cWS = 6; cOUT = 22; cAT = 23
    ONES = 24; C = 28; PQ = 32; WPK = 40; WD = 44; SQD = 52; SQA = 60
    KR = 64; PR = 96; PH = 128; T = 144; ACC = 152; BD = 156; DUM = 160; DG = 164; XR = 168
    AD = 180
    OM = 192
    sRAW = 72
    def stampc(i):
        if diag:
            a(f"s_memrealtime s[{sRAW}:{sRAW+1}]")
            a("s_waitcnt lgkmcnt(0)")
            a(f"v_writelane_b32 v{DG}, s{sRAW}, {i}")
    def stampm():
        if diag:
            a(f"s_memrealtime s[{sRAW}:{sRAW+1}]")
            a("s_waitcnt lgkmcnt(0)")
            a(f"v_writelane_b32 v{DG}, s{sRAW}, m0")
            a("s_add_u32 m0, m0, 1")
    npoll = [0]
    def poll():
        l = "L_poll%d" % npoll[0]; npoll[0] += 1
        a.label(l, flush=False)
        a(f"""
        ds_read_b32 v{cW}, v{cLN}
        s_sub_u32 s{sBUD}, s{sBUD}, 1
        s_cbranch_scc1 L_end
        s_waitcnt lgkmcnt(0)
        v_readfirstlane_b32 s{sX}, v{cW}
        s_cmp_ge_u32 s{sX}, s{sTHR}
        """)
        if int(sleep):
            a(f"s_cbranch_scc1 {l}x")
            a(f"s_sleep {sleep}")
            a(f"s_branch {l}")
            a.label(l + "x", flush=False)
        else:
            a(f"s_cbranch_scc0 {l}")

    hdr = open("cdna_kernels/%s.s.ref" % NAME).read().split("; Override launch")[0]
    a.raw(hdr.rstrip())
    a.raw("; @launch grid=(256,1,1) block=(320,1,1) lds=%d" % LDS)
    a.raw('.amdgcn_target "amdgcn-amd-amdhsa--gfx950"\n.text\n.globl %s_kernel\n.p2align %s\n.p2align 8\n.type %s_kernel,@function' % (NAME, al, NAME))
    a.label(NAME + "_kernel")
    if diag: a("s_memrealtime s[74:75]")
    a(f"""
    s_load_dwordx2 s[{SK}:{SK+1}], s[0:1], 8
    s_load_dwordx2 s[{SV}:{SV+1}], s[0:1], 16
    s_load_dwordx2 s[{SO}:{SO+1}], s[0:1], 24
    s_load_dwordx2 s[{SQ}:{SQ+1}], s[0:1], 0
    s_load_dwordx4 s[{sOUT}:{sOUT+3}], s[0:1], 32
    s_load_dwordx2 s[{sWS}:{sWS+1}], s[0:1], 48
    """)
    if pf:
        a("s_getpc_b64 s[60:61]")
        a.label("L_pc", flush=False)
        a(f"""
        v_subrev_u32 v7, 64, v0
        v_lshlrev_b32 v7, 7, v7
        v_cmp_gt_u32 vcc, L_codeend-L_pc-3, v7
        v_mov_b32 v{DUM+3}, s61
        s_cbranch_vccz L_nopf
        s_mov_b64 exec, vcc
        v_add_co_u32 v{DUM+2}, vcc, s60, v7
        v_addc_co_u32 v{DUM+3}, vcc, 0, v{DUM+3}, vcc
        global_load_dword v{DUM}, v[{DUM+2}:{DUM+3}], off
        s_mov_b64 exec, -1
        """)
        a.label("L_nopf", flush=False)
    a(f"""
    v_readfirstlane_b32 s{sW}, v0
    s_cmp_ge_u32 s2, 256
    s_cbranch_scc1 L_end
    """)
    if wgmap == "xcd":
        a(f"""
        s_and_b32 s{sHEAD}, s2, 7
        s_lshr_b32 s{sT}, s2, 5
        s_lshl_b32 s{sT}, s{sT}, 3
        s_or_b32 s{sHEAD}, s{sHEAD}, s{sT}
        s_bfe_u32 s{sPART}, s2, 0x20003
        """)
    elif wgmap == "lin":
        a(f"""
        s_lshr_b32 s{sHEAD}, s2, 2
        s_and_b32 s{sPART}, s2, 3
        """)
    elif wgmap == "mix":
        a(f"""
        s_bfe_u32 s{sPART}, s2, 0x20001
        s_xor_b32 s{sT}, s2, s{sPART}
        s_and_b32 s{sT}, s{sT}, 1
        s_lshr_b32 s{sHEAD}, s2, 3
        s_lshl1_add_u32 s{sHEAD}, s{sHEAD}, s{sT}
        """)
    a(f"""
    s_mov_b32 s{sBUD}, 0x100000
    s_cmp_lg_u32 s{sW}, 0
    s_cbranch_scc1 L_cons
    """)
    STEP = 32768 if pat == "p3" else 8192
    a(f"""
    s_setprio 3
    v_lshrrev_b32 v22, 4, v0
    v_and_b32 v23, 15, v0
    v_xor_b32 v7, v22, v23
    v_lshlrev_b32 v7, 4, v7
    v_lshl_add_u32 v{VK[0]}, v22, 8, v7
    v_xor_b32 v{VK[1]}, 64, v{VK[0]}
    v_xor_b32 v{VK[2]}, 0x80, v{VK[0]}
    v_xor_b32 v{VK[3]}, 0xc0, v{VK[0]}
    s_brev_b32 s{SK+2}, 32
    s_mov_b32 s{SK+3}, 0x20000
    s_lshl_b32 s{sKO}, s{sHEAD}, 20
    s_lshl_b32 s{sT}, s{sPART}, {13 if pat == "p3" else 18}
    s_add_u32 s{sKO}, s{sKO}, s{sT}
    s_mov_b32 s{sK}, 0
    s_mov_b32 s{sMK}, 0
    s_mov_b32 s{sNB}, {255 if dyn else 32}
    """)
    if diag:
        a("s_waitcnt lgkmcnt(0)")
        a(f"v_mov_b32 v{DG}, 0")
        a(f"v_writelane_b32 v{DG}, s74, 0")
        stampc(1)
    a("s_waitcnt lgkmcnt(0)")
    def push(val_code):
        a(f"s_mov_b32 s{sPOP}, s{sF+P-1}")
        for i in range(P - 1, 0, -1): a(f"s_mov_b32 s{sF+i}, s{sF+i-1}")
        for x in val_code: a(x)
    def publish(src):
        a(f"s_or_b32 s{sT}, s{src}, s{sNB}")
        a(f"v_mov_b32 v{vT}, s{sT}")
    a.label("L_k")
    a(f"""
    s_mov_b32 m0, s{sMK}
    s_add_u32 s{sT}, s{sKO}, 4096
    """)
    for i in range(4): a(f"buffer_load_dwordx4 v{VK[i]}, s[{SK}:{SK+3}], s{sKO} offen offset:{1024*i}{nt} lds")
    a(f"s_add_u32 m0, s{sMK}, 4096")
    a(f"s_cmp_eq_u32 s{sK}, 0")
    for i in range(4): a(f"buffer_load_dwordx4 v{VK[i]}, s[{SK}:{SK+3}], s{sT} offen offset:{1024*i}{nt} lds")
    a("s_cbranch_scc1 L_omega")
    a.label("L_omret")
    a(f"""
    s_add_u32 s{sMK}, s{sMK}, 8192
    s_and_b32 s{sMK}, s{sMK}, 0xffff
    s_add_u32 s{sKO}, s{sKO}, {STEP}
    """)
    push([f"s_lshl_b32 s{sF}, s{sK}, 9", f"s_or_b32 s{sF}, s{sF}, 256"])
    a(f"s_cmp_eq_u32 s{sPOP}, 0")
    a("s_cbranch_scc1 L_v")
    publish(sPOP)
    a(f"s_waitcnt vmcnt({8*P})")
    a(f"ds_write_b32 v{vLN}, v{vT}")
    a.label("L_v", flush=False)
    a(f"""
    s_sub_u32 s{sT2}, s{sK}, 3
    s_cbranch_scc1 L_next
    """)
    a.label("L_chk", flush=False)
    a(f"""
    ds_read_b32 v{vP}, v{vPA}
    s_sub_u32 s{sBUD}, s{sBUD}, 1
    s_cbranch_scc1 L_end
    s_and_b32 s{sT}, s{sT2}, 3
    s_waitcnt lgkmcnt(0)
    v_readlane_b32 s{sX}, v{vP}, s{sT}
    s_lshr_b32 s{sT}, s{sT2}, 2
    s_cmp_ge_u32 s{sX}, s{sT}
    s_cbranch_scc0 L_chk
    s_mov_b32 m0, s{sMV}
    s_add_u32 s{sT}, s{sVO}, 4096
    """)
    for i in range(4): a(f"buffer_load_dwordx4 v{VV[i&1]}, s[{SV}:{SV+3}], s{sVO} offen offset:{1024*i}{nt} lds")
    a(f"s_add_u32 m0, s{sMV}, 4096")
    a(f"s_add_u32 s{sVO}, s{sVO}, {STEP}")
    for i in range(4): a(f"buffer_load_dwordx4 v{VV[i&1]}, s[{SV}:{SV+3}], s{sT} offen offset:{1024*i}{nt} lds")
    a(f"""
    s_add_u32 s{sMV}, s{sMV}, 8192
    s_and_b32 s{sMV}, s{sMV}, 0xffff
    s_or_b32 s{sMV}, s{sMV}, {VRING}
    """)
    push([f"s_lshl_b32 s{sF}, s{sT2}, 9", f"s_add_u32 s{sF}, s{sF}, 2048"])
    if P > 4:
        a(f"s_cmp_eq_u32 s{sPOP}, 0")
        a("s_cbranch_scc1 L_next")
    publish(sPOP)
    a(f"s_waitcnt vmcnt({8*P})")
    a(f"ds_write_b32 v{vLN}, v{vT}")
    if diag:
        a(f"s_cmp_eq_u32 s{sK}, 3")
        a("s_cbranch_scc0 L_d1")
        stampc(2)
        a.label("L_d1", flush=False)
        a(f"s_cmp_eq_u32 s{sK}, 17")
        a("s_cbranch_scc0 L_d2")
        stampc(3)
        a.label("L_d2", flush=False)
    a.label("L_next", flush=False)
    a(f"""
    s_add_u32 s{sK}, s{sK}, 1
    s_cmp_lt_u32 s{sK}, s{sNB}
    s_cbranch_scc1 L_k
    s_add_u32 s{sT}, s{sNB}, 3
    s_cmp_lt_u32 s{sK}, s{sT}
    s_cbranch_scc1 L_v
    """)
    stampc(4)
    for p in range(P - 1, -1, -1):
        publish(sF + p)
        a(f"s_waitcnt vmcnt({8*p})")
        a(f"ds_write_b32 v{vLN}, v{vT}")
    if diag:
        stampc(5)
        a(f"s_sub_u32 s{sT}, 0x100000, s{sBUD}")
        a(f"v_writelane_b32 v{DG}, s{sT}, 6")
        a(f"v_mov_b32 v{LANE}, v0")
        a.flush()
        a("s_branch L_fin")
    else:
        a("s_waitcnt lgkmcnt(0)")
        a("s_endpgm")
    a.label("L_omega")
    a(f"""
    s_mov_b32 s{SO+2}, 16384
    s_mov_b32 s{SO+3}, 0x20000
    s_mov_b32 m0, {OMB}
    s_mov_b32 s{sT}, 0
    """)
    a.label("L_om1", flush=False)
    a(f"s_cmp_eq_u32 s{sT}, 12288")
    for i in range(4): a(f"buffer_load_dwordx4 v{VK[i]}, s[{SO}:{SO+3}], s{sT} offen offset:{1024*i} lds")
    a(f"""
    s_cbranch_scc1 L_om2
    s_add_u32 m0, m0, 4096
    s_add_u32 s{sT}, s{sT}, 4096
    s_branch L_om1
    """)
    a.label("L_om2")
    a(f"""
    s_mov_b32 m0, {QB}
    s_mov_b32 s{SQ+2}, 16384
    s_mov_b32 s{SQ+3}, 0x20000
    s_lshl_b32 s{sT}, s{sHEAD}, 8
    v_lshlrev_b32 v{vLN}, 2, v0
    buffer_load_dword v{vLN}, s[{SQ}:{SQ+3}], s{sT} offen lds
    s_mov_b32 s{SV+2}, s{SK+2}
    s_mov_b32 s{SV+3}, s{SK+3}
    v_lshlrev_b32 v7, 1, v22
    v_xor_b32 v7, v7, v23
    v_lshlrev_b32 v7, 4, v7
    v_lshl_add_u32 v{VV[0]}, v22, 8, v7
    v_xor_b32 v{VV[1]}, 0x80, v{VV[0]}
    v_and_b32 v7, 3, v0
    v_lshl_add_u32 v{vPA}, v7, 8, v{vLN}
    v_add_u32 v{vPA}, {PRG}, v{vPA}
    v_add_u32 v{vLN}, {LND}, v{vLN}
    s_mov_b32 s{sVO}, s{sKO}
    s_mov_b32 s{sMV}, {VRING}
    """)
    for i in range(P): a(f"s_mov_b32 s{sF+i}, 0")
    a("s_barrier")
    a.flush()
    a("s_branch L_omret")
    a.label("L_cons")
    a(f"""
    s_lshr_b32 s{sC}, s{sW}, 6
    s_sub_u32 s{sC}, s{sC}, 1
    v_and_b32 v{LANE}, 63, v0
    v_lshlrev_b32 v{cLN}, 2, v{LANE}
    v_add_u32 v{cLN}, {LND}, v{cLN}
    s_lshl_b32 s{sT}, s{sC}, 8
    v_add_u32 v{cPR}, s{sT}, v{cLN}
    v_mov_b32 v{ACC}, 0
    ds_write_b32 v{cLN}, v{ACC}
    ds_write_b32 v{cPR}, v{ACC} offset:256
    v_lshrrev_b32 v22, 4, v{LANE}          ; q = lane>>4
    v_and_b32 v23, 15, v{LANE}             ; n = lane&15
    s_lshl_b32 s{sT}, s{sC}, 13
    v_xor_b32 v7, v22, v23
    v_lshlrev_b32 v7, 4, v7
    v_lshl_add_u32 v7, v23, 8, v7              ; n*256 + ((q^n)*16)
    v_add_u32 v{RK[0]}, s{sT}, v7
    v_xor_b32 v{RK[1]}, 64, v{RK[0]}
    v_xor_b32 v{RK[2]}, 0x80, v{RK[0]}
    v_xor_b32 v{RK[3]}, 0xc0, v{RK[0]}
    v_add_u32 v{T+4}, {OMB}, v7
    v_xor_b32 v{T+5}, 64, v{T+4}
    v_xor_b32 v{T+6}, 0x80, v{T+4}
    v_xor_b32 v{T+7}, 0xc0, v{T+4}
    s_or_b32 s{sT}, s{sT}, {VRING}
    v_lshrrev_b32 v7, 2, v{LANE}
    v_and_b32 v{T}, 7, v7
    v_lshlrev_b32 v{T}, 5, v{T}
    v_lshl_add_u32 v{T}, v7, 8, v{T}
    v_and_b32 v7, 3, v{LANE}
    v_lshl_add_u32 v{T}, v7, 3, v{T}
    v_add_u32 v{RV[0]}, s{sT}, v{T}
    s_waitcnt lgkmcnt(0)
    s_barrier
    """)
    if diag:
        a(f"v_mov_b32 v{DG}, 0")
        a(f"v_writelane_b32 v{DG}, s74, 0")
        stampc(1)
        a("s_mov_b32 m0, 8")
    a(f"""
    s_lshl_b32 s{sT}, s{sHEAD}, 7
    s_add_u32 s{sT}, s{sT}, {EPOCH}
    v_mov_b32 v{T}, s{sT}
    global_load_dword v{EP}, v{T}, s[{sWS}:{sWS+1}] sc1
    s_lshl_b32 s{sT}, s{sHEAD}, 8
    v_lshl_add_u32 v{T+3}, v22, 4, 0
    v_lshl_add_u32 v{cOUT}, v22, 3, s{sT}
    v_lshl_add_u32 v{cOUT}, v23, 5, v{cOUT}
    s_lshl_b32 s{sT}, s{sHEAD}, 2
    v_mov_b32 v{cAT}, s{sT}
    v_add_u32 v{T+3}, {QB}, v{T+3}
    """)
    if tlb:
        a(f"global_load_dword v{DUM}, v{cAT}, s[{sOUT}:{sOUT+1}]")
        a(f"global_load_dword v{DUM+1}, v{cAT}, s[{sDBG}:{sDBG+1}] sc1")
    for t in range(1, 8):
        a(f"v_xor_b32 v{RV[t]}, {hex(32*t)}, v{RV[0]}")
    a(f"""
    s_lshl_b32 s{sT}, s{sC}, 10
    s_add_u32 s{sT}, s{sT}, {RED}
    v_lshl_add_u32 v{cRED}, v{LANE}, 4, s{sT}
    s_lshl_b32 s{sT}, s{sHEAD}, 13
    s_lshl_b32 s{sT2}, s{sPART}, 11
    s_add_u32 s{sT}, s{sT}, s{sT2}
    v_lshl_add_u32 v{cWS}, v{LANE}, 4, s{sT}
    v_xor_b32 v{AD}, 0x800, v{cWS}
    v_xor_b32 v{AD+1}, 0x1000, v{cWS}
    v_xor_b32 v{AD+2}, 0x1800, v{cWS}
    s_mov_b32 s{sMASK}, 0xffff0000
    s_mov_b32 s{sSCALE}, {hex(f2u(128.0 ** -0.25))}
    s_mov_b32 s{sL2E}, 0x3fb8aa3b
    v_mov_b32 v{NH}, -0.5
    s_mov_b32 s{sMS}, 0x00010001
    s_mov_b32 s{sMS+1}, 0x00010001
    s_mov_b32 s{sMS+16}, 0xff00ff00
    s_mov_b32 s{sMS+17}, 0xff00ff00
    """)
    for t in range(1, 8): a(f"s_lshl_b64 s[{sMS+2*t}:{sMS+2*t+1}], s[{sMS}:{sMS+1}], {t}")
    for i in range(4): a(f"v_mov_b32 v{ONES+i}, 0x3f803f80")
    for i in range(1, 4): a(f"v_mov_b32 v{ACC+i}, 0")
    for i in range(16): a(f"v_mov_b32 v{KR+16+i}, 0")
    a(f"""
    s_mov_b32 s{sIT}, -1
    s_mov_b32 s{sKK}, s{sC}
    s_mov_b32 s{sTHR}, 256
    """)
    poll()
    stampc(2)
    for j in range(4): a(f"ds_read_b128 v[{KR+4*j}:{KR+4*j+3}], v{T+3} offset:{64*j}")
    for t in range(4):
        for j in range(4):
            r = OM + 16 * t + 4 * j
            a(f"ds_read_b128 v[{r}:{r+3}], v{T+4+j} offset:{4096*t}")
    a("s_waitcnt lgkmcnt(0)")
    a.flush()
    a("s_branch L_phi")
    a.label("L_loop")
    a(f"s_lshl_b32 s{sTHR}, s{sKK}, 9")
    a(f"s_or_b32 s{sTHR}, s{sTHR}, 256")
    poll()
    stampm()
    for tl in range(2):
        for j in range(4): a(f"ds_read_b128 v[{KR+16*tl+4*j}:{KR+16*tl+4*j+3}], v{RK[j]} offset:{4096*tl}")
    a(f"""
    s_add_u32 s{sIT}, s{sIT}, 1
    s_and_b32 s{sCN}, s{sX}, 255
    v_mov_b32 v{cW}, s{sIT}
    """)
    for j in range(4): a(f"v_xor_b32 v{RK[j]}, 0x8000, v{RK[j]}")
    a("s_waitcnt lgkmcnt(0)")
    a(f"ds_write_b32 v{cPR}, v{cW} offset:256")
    a.label("L_phi")
    def scale(tl, j):
        o = []
        for r in range(4):
            x = KR + 16 * tl + 4 * j + r
            t0 = T + 2 * (r & 1); t1 = t0 + 1
            o += [f"v_lshlrev_b32 v{t0}, 16, v{x}",
                  f"v_and_b32 v{t1}, s{sMASK}, v{x}",
                  f"v_mul_f32 v{t0}, s{sSCALE}, v{t0}",
                  f"v_mul_f32 v{t1}, s{sSCALE}, v{t1}",
                  f"v_cvt_pk_bf16_f32 v{x}, v{t0}, v{t1}"]
        for r in range(4):
            x = KR + 16 * tl + 4 * j + r
            acc = SQA + 2 * tl + (r & 1)
            if j == 0 and r < 2: o.append(f"v_dot2_f32_bf16 v{acc}, v{x}, v{x}, 0")
            else: o.append(f"v_dot2_f32_bf16 v{acc}, v{x}, v{x}, v{acc}")
        return o
    def projm(tl, j):
        o = []
        for t in range(4):
            d = PR + 16 * tl + 4 * t
            om = OM + 16 * t + 4 * j
            k = KR + 16 * tl + 4 * j
            c = "0" if j == 0 else f"v[{d}:{d+3}]"
            o.append(f"v_mfma_f32_16x16x32_bf16 v[{d}:{d+3}], v[{om}:{om+3}], v[{k}:{k+3}], {c}")
        return o
    def sqsum(tl):
        acc = SQA + 2 * tl
        return [f"v_add_f32 v{acc}, v{acc}, v{acc+1}"]
    def sqm(tl):
        acc = SQA + 2 * tl; d = SQD + 4 * tl
        return [f"v_mfma_f32_16x16x4_f32 v[{d}:{d+3}], v{NH}, v{acc}, 0"]
    def phi(tl):
        d = SQD + 4 * tl
        o = [f"v_cvt_pk_bf16_f32 v{d}, 0, v{d}"]
        for t in range(4):
            p = [PR + 16 * tl + 4 * t + r for r in range(4)]
            for x in p: o.append(f"v_cvt_pk_bf16_f32 v{x}, 0, v{x}")
            for x in p: o.append(f"v_add_f32 v{x}, v{d}, v{x}")
            for x in p: o.append(f"v_cvt_pk_bf16_f32 v{x}, 0, v{x}")
            for x in p: o.append(f"v_mul_f32 v{x}, s{sL2E}, v{x}")
            for x in p: o.append(f"v_exp_f32 v{x}, v{x}")
            h = PH + 8 * tl + 2 * t
            o.append(f"v_cvt_pk_bf16_f32 v{h}, v{p[0]}, v{p[1]}")
            o.append(f"v_cvt_pk_bf16_f32 v{h+1}, v{p[2]}, v{p[3]}")
        return o
    def wm(tl):
        d = WD + 4 * tl; h = PH + 8 * tl
        return [f"v_mfma_f32_16x16x32_bf16 v[{d}:{d+3}], v[{h}:{h+3}], v[{PQ}:{PQ+3}], v[{C}:{C+3}]",
                f"v_mfma_f32_16x16x32_bf16 v[{d}:{d+3}], v[{h+4}:{h+7}], v[{PQ+4}:{PQ+7}], v[{d}:{d+3}]"]
    def bm(t): return KR + 4 * t if t < 8 else BD
    def masks(i): return [f"v_cndmask_b32_e64 v{bm(t)+i}, 0, v{WPK+i}, s[{sMS+2*t}:{sMS+2*t+1}]" for t in (8, 0, 1, 2, 3, 4, 5, 6, 7)]
    steps = [(tl, j) for tl in range(2) for j in range(4)]
    body = scale(0, 0)
    for i in range(1, 8):
        tl, j = steps[i]
        side = projm(*steps[i - 1])
        main = scale(tl, j)
        if steps[i - 1] == (0, 3):
            main = main[:4] + sqsum(0) + main[4:]
            side = side + sqm(0)
        body += interleave(main, side, 5, lead=2)
    ph0 = phi(0)
    ph0 = ph0[:4] + sqsum(1) + ph0[4:]
    body += interleave(ph0, projm(1, 3) + sqm(1), 4, lead=1)
    for x in body: a(x)
    a(f"s_cmp_eq_u32 s{sIT}, -1")
    a.flush()
    a("s_cbranch_scc1 L_qpost")
    body = interleave(phi(1), wm(0), 6, lead=3)
    for x in body: a(x)
    for x in wm(1): a(x)
    a(f"v_cvt_pk_bf16_f32 v{WPK}, v{WD}, v{WD+1}")
    a(f"v_cvt_pk_bf16_f32 v{WPK+1}, v{WD+2}, v{WD+3}")
    a(f"s_add_u32 s{sT}, s{sKK}, 1")
    a(f"s_add_u32 s{sTHR}, s{sTHR}, {7*256}")
    for x in masks(0) + masks(1): a(x)
    a(f"v_cvt_pk_bf16_f32 v{WPK+2}, v{WD+4}, v{WD+5}")
    a(f"v_cvt_pk_bf16_f32 v{WPK+3}, v{WD+6}, v{WD+7}")
    a(f"s_cmp_eq_u32 s{sT}, s{sCN}")
    for x in masks(2) + masks(3): a(x)
    a("s_cbranch_scc0 L_nofin")
    G = PH
    a(f"""
    s_waitcnt vmcnt(0)
    v_mov_b32 v{T}, 1
    s_mov_b64 exec, 1
    global_atomic_add v{T+1}, v{cAT}, v{T}, s[{sDBG}:{sDBG+1}] sc0 sc1
    s_mov_b64 exec, -1
    """)
    def specloads():
        for p in range(3):
            a(f"global_load_dwordx4 v[{OM+8*p}:{OM+8*p+3}], v{AD+p}, s[{sWS}:{sWS+1}] sc1")
            a(f"global_load_dwordx4 v[{OM+8*p+4}:{OM+8*p+7}], v{AD+p}, s[{sWS}:{sWS+1}] offset:1024 sc1")
    specloads()
    a(f"v_add_u32 v{EP}, 0x9e3779b9, v{EP}")
    for i in range(4): a(f"v_mov_b32 v{G+2*i+1}, v{EP}")
    a.label("L_nofin", flush=False)
    a(f"v_mfma_f32_16x16x32_bf16 v[{ACC}:{ACC+3}], v[{ONES}:{ONES+3}], v[{BD}:{BD+3}], v[{ACC}:{ACC+3}]")
    poll()
    stampm()
    for t in range(8):
        r = PR + 4 * t
        a(f"ds_read_b64_tr_b16 v[{r}:{r+1}], v{RV[t]}")
        a(f"ds_read_b64_tr_b16 v[{r+2}:{r+3}], v{RV[t]} offset:4096")
    a(f"s_and_b32 s{sCN}, s{sX}, 255")
    a(f"s_add_u32 s{sKK}, s{sKK}, 4")
    a(f"s_cmp_lt_u32 s{sKK}, s{sCN}")
    for t in range(8):
        r = PR + 4 * t
        a(f"s_waitcnt lgkmcnt({14-2*t})")
        a(f"v_mfma_f32_16x16x32_bf16 v[{ACC}:{ACC+3}], v[{r}:{r+3}], v[{bm(t)}:{bm(t)+3}], v[{ACC}:{ACC+3}]")
        a(f"v_xor_b32 v{RV[t]}, 0x8000, v{RV[t]}")
    a("s_cbranch_scc1 L_loop")
    a(f"""
    s_sub_u32 s{sT}, s{sKK}, 3
    s_cmp_eq_u32 s{sT}, s{sCN}
    s_cbranch_scc1 L_last
    """)
    a.flush()
    a(f"""
    ds_write_b128 v{cRED}, v[{ACC}:{ACC+3}]
    s_waitcnt lgkmcnt(0)
    s_barrier
    """)
    a("s_branch L_fin" if diag else "s_endpgm")
    a.label("L_last", flush=False)
    a(f"""
    v_xor_b32 v{T+2}, 0x400, v{cRED}
    v_xor_b32 v{T+3}, 0x800, v{cRED}
    v_xor_b32 v{T+4}, 0xc00, v{cRED}
    s_barrier
    ds_read_b128 v[{XR}:{XR+3}], v{T+2}
    ds_read_b128 v[{XR+4}:{XR+7}], v{T+3}
    ds_read_b128 v[{XR+8}:{XR+11}], v{T+4}
    s_waitcnt vmcnt(6)
    v_readfirstlane_b32 s{sT}, v{T+1}
    """)
    stampc(4)
    a(f"""
    s_cmp_eq_u32 s{sT}, 3
    s_waitcnt lgkmcnt(0)
    """)
    for i in range(4):
        a(f"v_add_f32 v{ACC+i}, v{ACC+i}, v{XR+i}")
        a(f"v_add_f32 v{XR+4+i}, v{XR+4+i}, v{XR+8+i}")
    for i in range(4): a(f"v_add_f32 v{G+2*i}, v{ACC+i}, v{XR+4+i}")
    a(f"""
    s_cbranch_scc1 L_final
    global_store_dwordx4 v{cWS}, v[{G}:{G+3}], s[{sWS}:{sWS+1}] sc1
    global_store_dwordx4 v{cWS}, v[{G+4}:{G+7}], s[{sWS}:{sWS+1}] offset:1024 sc1
    """)
    a("s_branch L_fin" if diag else "s_endpgm")
    a.label("L_again")
    a(f"s_sub_u32 s{sBUD}, s{sBUD}, 16")
    a("s_cbranch_scc1 L_end")
    specloads()
    a.label("L_final")
    a("s_waitcnt vmcnt(0)")
    tags = [OM + 8 * p + 2 * i + 1 for p in range(3) for i in range(4)]
    a(f"v_min3_u32 v{T+2}, v{EP}, v{tags[0]}, v{tags[1]}")
    a(f"v_max3_u32 v{T+3}, v{EP}, v{tags[0]}, v{tags[1]}")
    for i in range(2, 12, 2):
        a(f"v_min3_u32 v{T+2}, v{T+2}, v{tags[i]}, v{tags[i+1]}")
        a(f"v_max3_u32 v{T+3}, v{T+3}, v{tags[i]}, v{tags[i+1]}")
    a(f"v_cmp_ne_u32 vcc, v{T+2}, v{T+3}")
    for i in range(4):
        a(f"v_add_f32 v{XR+i}, v{G+2*i}, v{OM+2*i}")
        a(f"v_add_f32 v{XR+4+i}, v{OM+8+2*i}, v{OM+16+2*i}")
    a("s_cbranch_vccnz L_again")
    for i in range(4): a(f"v_add_f32 v{XR+i}, v{XR+i}, v{XR+4+i}")
    a(f"""
    v_mov_b32 v{T+4}, {hex(f2u(1e-6))}
    s_lshl_b32 s{sT}, s{sHEAD}, 7
    s_add_u32 s{sT}, s{sT}, {EPOCH}
    v_add_f32_dpp v{T+4}, v{XR}, v{T+4} row_ror:8 row_mask:0xf bank_mask:0xf
    v_rcp_f32 v{T+4}, v{T+4}
    v_mov_b32 v{T+5}, s{sT}
    """)
    for i in range(4): a(f"v_mul_f32 v{XR+i}, v{XR+i}, v{T+4}")
    a(f"""
    s_not_b64 exec, s[{sMS+16}:{sMS+17}]
    v_cvt_pk_bf16_f32 v{XR}, v{XR}, v{XR+1}
    v_cvt_pk_bf16_f32 v{XR+1}, v{XR+2}, v{XR+3}
    global_store_dwordx2 v{cOUT}, v[{XR}:{XR+1}], s[{sOUT}:{sOUT+1}]{outsc}
    s_mov_b64 exec, 1
    global_store_dword v{T+5}, v{EP}, s[{sWS}:{sWS+1}]{outsc}
    """)
    if diag:
        a("s_mov_b64 exec, -1")
        stampc(5)
        a.label("L_fin")
        stampc(6) if False else None
        a(f"s_memrealtime s[{sRAW}:{sRAW+1}]")
        a(f"s_getreg_b32 s76, hwreg(HW_REG_XCC_ID)")
        a("s_waitcnt lgkmcnt(0)")
        a(f"v_writelane_b32 v{DG}, s{sRAW}, 7")
        a(f"v_writelane_b32 v{DG}, s76, 63")
        a(f"""
        s_mul_i32 s{sT}, s2, 5
        s_lshr_b32 s{sT2}, s{sW}, 6
        s_add_u32 s{sT}, s{sT}, s{sT2}
        s_lshl_b32 s{sT}, s{sT}, 8
        s_add_u32 s{sT}, s{sT}, 0x100000
        v_lshl_add_u32 v{T}, v{LANE}, 2, s{sT}
        global_store_dword v{T}, v{DG}, s[{sWS}:{sWS+1}]
        """)
    a.label("L_end")
    a("s_endpgm")
    a.label("L_qpost")
    a(f"v_mov_b32 v{T+2}, {hex(f2u(1e-6) - (3 << 23))}")
    a(f"s_mov_b32 s{sT}, {hex(f2u(0.015625))}")
    for i in range(8):
        x = PH + i
        a(f"""
        v_lshlrev_b32 v{T}, 16, v{x}
        v_and_b32 v{T+1}, s{sMASK}, v{x}
        v_fma_f32 v{T}, v{T}, s{sT}, v{T+2}
        v_fma_f32 v{T+1}, v{T+1}, s{sT}, v{T+2}
        v_cvt_pk_bf16_f32 v{PQ+i}, v{T}, v{T+1}
        """)
    a(f"v_mfma_f32_16x16x32_bf16 v[{C}:{C+3}], v[{ONES}:{ONES+3}], v[{PQ}:{PQ+3}], 0")
    a(f"v_mfma_f32_16x16x32_bf16 v[{C}:{C+3}], v[{ONES}:{ONES+3}], v[{PQ+4}:{PQ+7}], v[{C}:{C+3}]")
    for i in range(4): a(f"v_mul_f32 v{C+i}, {hex(f2u(1e-6) + (3 << 23))}, v{C+i}")
    a(f"s_mov_b32 s{sIT}, 0")
    stampc(3)
    a.flush()
    a("s_branch L_loop")
    a.raw("L_codeend:")
    a.raw(f""".section .rodata,"a"
.p2align 6
.amdhsa_kernel {NAME}_kernel
  .amdhsa_next_free_vgpr 256
  .amdhsa_next_free_sgpr 80
  .amdhsa_accum_offset 256
  .amdhsa_group_segment_fixed_size 0
  .amdhsa_kernarg_size 56
  .amdhsa_user_sgpr_count 2
  .amdhsa_user_sgpr_kernarg_segment_ptr 1
  .amdhsa_system_sgpr_workgroup_id_x 1
.end_amdhsa_kernel""")
    return a

if __name__ == "__main__":
    out = sys.argv[1]
    kw = dict(x.split("=") for x in sys.argv[2:])
    for key in ("nt", "outsc"):
        if key in kw: kw[key] = "" if kw[key] == "0" else " " + kw[key].replace("+", " ")
    a = gen(**kw)
    open(out, "w").write(a.text())
    print("wrote", out, "nops inserted:", a.nops)
```

```python
import sys, struct
from asmlib import Asm, interleave

NAME = "standalone__linear_kernel_rfa__decode"
def f2u(x): return struct.unpack("<I", struct.pack("<f", x))[0]

def gen(nt=" nt", wgmap="mix", diag="0", P="4", tlb="1", pat="p3", dyn="0", S="24", outsc="", sleep="0", pf="0", al="8", spin="0", spinwg="-1", lst="0", blk="320"):
    spin = int(spin)
    pf = int(pf)
    diag = int(diag); tlb = int(tlb); P = int(P); dyn = int(dyn); S = int(S)
    a = Asm()
    VRING = 65536; OMB = 131072; QB = 147456; LND = 147712; PRG = LND + 256; RED = 151552
    LDS = RED + 4096
    EPOCH = 0x80000
    SK, SV, SO, SQ = 4, 8, 12, 16
    sOUT, sDBG, sWS = 20, 22, 24
    sW, sHEAD, sPART, sT, sT2, sX, sBUD = 26, 27, 28, 29, 30, 31, 32
    sK, sKO, sVO, sMK, sMV, sNB, sFAIL = 33, 34, 35, 36, 37, 38, 39
    sF = 40
    sPOP = 48
    VK = [1, 2, 3, 4]; VV = [5, 6]; vLN = 8; vPA = 9; vT = 10; vP = 11
    sC, sKK, sTHR, sMASK, sSCALE, sL2E, sIT, sCN = 33, 34, 35, 36, 37, 38, 39, 40
    sMS = 42
    RK = [8, 9, 10, 11]; RV = list(range(12, 20))
    NH = 20; LANE = 21; cLN = 1; cPR = 2; cRED = 3; cW = 4; EP = 5; cWS = 6; cOUT = 22; cAT = 23
    ONES = 24; C = 28; PQ = 32; WPK = 40; WD = 44; SQD = 52; SQA = 60
    KR = 64; PR = 96; PH = 128; T = 144; ACC = 152; BD = 156; DUM = 160; DG = 164; XR = 168
    AD = 180
    OM = 192
    sRAW = 72
    def stampc(i):
        if diag:
            a(f"s_memrealtime s[{sRAW}:{sRAW+1}]")
            a("s_waitcnt lgkmcnt(0)")
            a(f"v_writelane_b32 v{DG}, s{sRAW}, {i}")
    def stampm():
        if diag:
            a(f"s_memrealtime s[{sRAW}:{sRAW+1}]")
            a("s_waitcnt lgkmcnt(0)")
            a(f"v_writelane_b32 v{DG}, s{sRAW}, m0")
            a("s_add_u32 m0, m0, 1")
    npoll = [0]
    def poll():
        l = "L_poll%d" % npoll[0]; npoll[0] += 1
        a.label(l, flush=False)
        a(f"""
        ds_read_b32 v{cW}, v{cLN}
        s_sub_u32 s{sBUD}, s{sBUD}, 1
        s_cbranch_scc1 L_end
        s_waitcnt lgkmcnt(0)
        v_readfirstlane_b32 s{sX}, v{cW}
        s_cmp_ge_u32 s{sX}, s{sTHR}
        """)
        if int(sleep):
            a(f"s_cbranch_scc1 {l}x")
            a(f"s_sleep {sleep}")
            a(f"s_branch {l}")
            a.label(l + "x", flush=False)
        else:
            a(f"s_cbranch_scc0 {l}")

    hdr = open("cdna_kernels/%s.s.ref" % NAME).read().split("; Override launch")[0]
    a.raw(hdr.rstrip())
    a.raw("; @launch %sgrid=(256,1,1) block=(%s,1,1) lds=%d" % ("kernel=%s_kernel " % NAME if int(lst) else "", blk, LDS))
    a.raw('.amdgcn_target "amdgcn-amd-amdhsa--gfx950"\n.text\n.globl %s_kernel\n.p2align %s\n.p2align 8\n.type %s_kernel,@function' % (NAME, al, NAME))
    a.label(NAME + "_kernel")
    if diag or spin: a("s_memrealtime s[74:75]")
    a(f"""
    s_load_dwordx2 s[{SK}:{SK+1}], s[0:1], 8
    s_load_dwordx2 s[{SV}:{SV+1}], s[0:1], 16
    s_load_dwordx2 s[{SO}:{SO+1}], s[0:1], 24
    s_load_dwordx2 s[{SQ}:{SQ+1}], s[0:1], 0
    s_load_dwordx4 s[{sOUT}:{sOUT+3}], s[0:1], 32
    s_load_dwordx2 s[{sWS}:{sWS+1}], s[0:1], 48
    """)
    if pf:
        a("s_getpc_b64 s[60:61]")
        a.label("L_pc", flush=False)
        a(f"""
        v_subrev_u32 v7, 64, v0
        v_lshlrev_b32 v7, 7, v7
        v_cmp_gt_u32 vcc, L_codeend-L_pc-3, v7
        v_mov_b32 v{DUM+3}, s61
        s_cbranch_vccz L_nopf
        s_mov_b64 exec, vcc
        v_add_co_u32 v{DUM+2}, vcc, s60, v7
        v_addc_co_u32 v{DUM+3}, vcc, 0, v{DUM+3}, vcc
        global_load_dword v{DUM}, v[{DUM+2}:{DUM+3}], off
        s_mov_b64 exec, -1
        """)
        a.label("L_nopf", flush=False)
    a(f"""
    v_readfirstlane_b32 s{sW}, v0
    s_cmp_ge_u32 s2, 256
    s_cbranch_scc1 L_end
    """)
    if wgmap == "xcd":
        a(f"""
        s_and_b32 s{sHEAD}, s2, 7
        s_lshr_b32 s{sT}, s2, 5
        s_lshl_b32 s{sT}, s{sT}, 3
        s_or_b32 s{sHEAD}, s{sHEAD}, s{sT}
        s_bfe_u32 s{sPART}, s2, 0x20003
        """)
    elif wgmap == "lin":
        a(f"""
        s_lshr_b32 s{sHEAD}, s2, 2
        s_and_b32 s{sPART}, s2, 3
        """)
    elif wgmap == "mix":
        a(f"""
        s_bfe_u32 s{sPART}, s2, 0x20001
        s_xor_b32 s{sT}, s2, s{sPART}
        s_and_b32 s{sT}, s{sT}, 1
        s_lshr_b32 s{sHEAD}, s2, 3
        s_lshl1_add_u32 s{sHEAD}, s{sHEAD}, s{sT}
        """)
    a(f"""
    s_mov_b32 s{sBUD}, 0x100000
    """)
    if blk != "320":
        a(f"s_cmp_ge_u32 s{sW}, 320")
        a("s_cbranch_scc1 L_end")
    a(f"""
    s_cmp_lg_u32 s{sW}, 0
    s_cbranch_scc1 L_cons
    """)
    STEP = 32768 if pat == "p3" else 8192
    a(f"""
    s_setprio 3
    v_lshrrev_b32 v22, 4, v0
    v_and_b32 v23, 15, v0
    v_xor_b32 v7, v22, v23
    v_lshlrev_b32 v7, 4, v7
    v_lshl_add_u32 v{VK[0]}, v22, 8, v7
    v_xor_b32 v{VK[1]}, 64, v{VK[0]}
    v_xor_b32 v{VK[2]}, 0x80, v{VK[0]}
    v_xor_b32 v{VK[3]}, 0xc0, v{VK[0]}
    s_brev_b32 s{SK+2}, 32
    s_mov_b32 s{SK+3}, 0x20000
    s_lshl_b32 s{sKO}, s{sHEAD}, 20
    s_lshl_b32 s{sT}, s{sPART}, {13 if pat == "p3" else 18}
    s_add_u32 s{sKO}, s{sKO}, s{sT}
    s_mov_b32 s{sK}, 0
    s_mov_b32 s{sMK}, 0
    s_mov_b32 s{sNB}, {255 if dyn else 32}
    """)
    if diag:
        a("s_waitcnt lgkmcnt(0)")
        a(f"v_mov_b32 v{DG}, 0")
        a(f"v_writelane_b32 v{DG}, s74, 0")
        stampc(1)
    a("s_waitcnt lgkmcnt(0)")
    def push(val_code):
        a(f"s_mov_b32 s{sPOP}, s{sF+P-1}")
        for i in range(P - 1, 0, -1): a(f"s_mov_b32 s{sF+i}, s{sF+i-1}")
        for x in val_code: a(x)
    def publish(src):
        a(f"s_or_b32 s{sT}, s{src}, s{sNB}")
        a(f"v_mov_b32 v{vT}, s{sT}")
    a.label("L_k")
    a(f"""
    s_mov_b32 m0, s{sMK}
    s_add_u32 s{sT}, s{sKO}, 4096
    """)
    for i in range(4): a(f"buffer_load_dwordx4 v{VK[i]}, s[{SK}:{SK+3}], s{sKO} offen offset:{1024*i}{nt} lds")
    a(f"s_add_u32 m0, s{sMK}, 4096")
    a(f"s_cmp_eq_u32 s{sK}, 0")
    for i in range(4): a(f"buffer_load_dwordx4 v{VK[i]}, s[{SK}:{SK+3}], s{sT} offen offset:{1024*i}{nt} lds")
    a("s_cbranch_scc1 L_omega")
    a.label("L_omret")
    a(f"""
    s_add_u32 s{sMK}, s{sMK}, 8192
    s_and_b32 s{sMK}, s{sMK}, 0xffff
    s_add_u32 s{sKO}, s{sKO}, {STEP}
    """)
    push([f"s_lshl_b32 s{sF}, s{sK}, 9", f"s_or_b32 s{sF}, s{sF}, 256"])
    a(f"s_cmp_eq_u32 s{sPOP}, 0")
    a("s_cbranch_scc1 L_v")
    publish(sPOP)
    a(f"s_waitcnt vmcnt({8*P})")
    a(f"ds_write_b32 v{vLN}, v{vT}")
    a.label("L_v", flush=False)
    a(f"""
    s_sub_u32 s{sT2}, s{sK}, 3
    s_cbranch_scc1 L_next
    """)
    a.label("L_chk", flush=False)
    a(f"""
    ds_read_b32 v{vP}, v{vPA}
    s_sub_u32 s{sBUD}, s{sBUD}, 1
    s_cbranch_scc1 L_end
    s_and_b32 s{sT}, s{sT2}, 3
    s_waitcnt lgkmcnt(0)
    v_readlane_b32 s{sX}, v{vP}, s{sT}
    s_lshr_b32 s{sT}, s{sT2}, 2
    s_cmp_ge_u32 s{sX}, s{sT}
    s_cbranch_scc0 L_chk
    s_mov_b32 m0, s{sMV}
    s_add_u32 s{sT}, s{sVO}, 4096
    """)
    for i in range(4): a(f"buffer_load_dwordx4 v{VV[i&1]}, s[{SV}:{SV+3}], s{sVO} offen offset:{1024*i}{nt} lds")
    a(f"s_add_u32 m0, s{sMV}, 4096")
    a(f"s_add_u32 s{sVO}, s{sVO}, {STEP}")
    for i in range(4): a(f"buffer_load_dwordx4 v{VV[i&1]}, s[{SV}:{SV+3}], s{sT} offen offset:{1024*i}{nt} lds")
    a(f"""
    s_add_u32 s{sMV}, s{sMV}, 8192
    s_and_b32 s{sMV}, s{sMV}, 0xffff
    s_or_b32 s{sMV}, s{sMV}, {VRING}
    """)
    push([f"s_lshl_b32 s{sF}, s{sT2}, 9", f"s_add_u32 s{sF}, s{sF}, 2048"])
    if P > 4:
        a(f"s_cmp_eq_u32 s{sPOP}, 0")
        a("s_cbranch_scc1 L_next")
    publish(sPOP)
    a(f"s_waitcnt vmcnt({8*P})")
    a(f"ds_write_b32 v{vLN}, v{vT}")
    if diag:
        a(f"s_cmp_eq_u32 s{sK}, 3")
        a("s_cbranch_scc0 L_d1")
        stampc(2)
        a.label("L_d1", flush=False)
        a(f"s_cmp_eq_u32 s{sK}, 17")
        a("s_cbranch_scc0 L_d2")
        stampc(3)
        a.label("L_d2", flush=False)
    a.label("L_next", flush=False)
    a(f"""
    s_add_u32 s{sK}, s{sK}, 1
    s_cmp_lt_u32 s{sK}, s{sNB}
    s_cbranch_scc1 L_k
    s_add_u32 s{sT}, s{sNB}, 3
    s_cmp_lt_u32 s{sK}, s{sT}
    s_cbranch_scc1 L_v
    """)
    stampc(4)
    for p in range(P - 1, -1, -1):
        publish(sF + p)
        a(f"s_waitcnt vmcnt({8*p})")
        a(f"ds_write_b32 v{vLN}, v{vT}")
    if diag:
        stampc(5)
        a(f"s_sub_u32 s{sT}, 0x100000, s{sBUD}")
        a(f"v_writelane_b32 v{DG}, s{sT}, 6")
        a(f"v_mov_b32 v{LANE}, v0")
        a.flush()
        a("s_branch L_fin")
    else:
        a("s_waitcnt lgkmcnt(0)")
        if spin:
            a("s_barrier")
            if int(spinwg) >= 0:
                a(f"s_cmp_lg_u32 s2, {spinwg}")
                a("s_cbranch_scc1 L_end")
            a.label("L_spin", flush=False)
            a(f"""
            s_memrealtime s[72:73]
            s_waitcnt lgkmcnt(0)
            s_sub_u32 s72, s72, s74
            s_cmp_lt_u32 s72, {spin*100}
            s_cbranch_scc1 L_spin
            """)
        a("s_endpgm")
    a.label("L_omega")
    a(f"""
    s_mov_b32 s{SO+2}, 16384
    s_mov_b32 s{SO+3}, 0x20000
    s_mov_b32 m0, {OMB}
    s_mov_b32 s{sT}, 0
    """)
    a.label("L_om1", flush=False)
    a(f"s_cmp_eq_u32 s{sT}, 12288")
    for i in range(4): a(f"buffer_load_dwordx4 v{VK[i]}, s[{SO}:{SO+3}], s{sT} offen offset:{1024*i} lds")
    a(f"""
    s_cbranch_scc1 L_om2
    s_add_u32 m0, m0, 4096
    s_add_u32 s{sT}, s{sT}, 4096
    s_branch L_om1
    """)
    a.label("L_om2")
    a(f"""
    s_mov_b32 m0, {QB}
    s_mov_b32 s{SQ+2}, 16384
    s_mov_b32 s{SQ+3}, 0x20000
    s_lshl_b32 s{sT}, s{sHEAD}, 8
    v_lshlrev_b32 v{vLN}, 2, v0
    buffer_load_dword v{vLN}, s[{SQ}:{SQ+3}], s{sT} offen lds
    s_mov_b32 s{SV+2}, s{SK+2}
    s_mov_b32 s{SV+3}, s{SK+3}
    v_lshlrev_b32 v7, 1, v22
    v_xor_b32 v7, v7, v23
    v_lshlrev_b32 v7, 4, v7
    v_lshl_add_u32 v{VV[0]}, v22, 8, v7
    v_xor_b32 v{VV[1]}, 0x80, v{VV[0]}
    v_and_b32 v7, 3, v0
    v_lshl_add_u32 v{vPA}, v7, 8, v{vLN}
    v_add_u32 v{vPA}, {PRG}, v{vPA}
    v_add_u32 v{vLN}, {LND}, v{vLN}
    s_mov_b32 s{sVO}, s{sKO}
    s_mov_b32 s{sMV}, {VRING}
    """)
    for i in range(P): a(f"s_mov_b32 s{sF+i}, 0")
    a("s_barrier")
    a.flush()
    a("s_branch L_omret")
    a.label("L_cons")
    a(f"""
    s_lshr_b32 s{sC}, s{sW}, 6
    s_sub_u32 s{sC}, s{sC}, 1
    v_and_b32 v{LANE}, 63, v0
    v_lshlrev_b32 v{cLN}, 2, v{LANE}
    v_add_u32 v{cLN}, {LND}, v{cLN}
    s_lshl_b32 s{sT}, s{sC}, 8
    v_add_u32 v{cPR}, s{sT}, v{cLN}
    v_mov_b32 v{ACC}, 0
    ds_write_b32 v{cLN}, v{ACC}
    ds_write_b32 v{cPR}, v{ACC} offset:256
    v_lshrrev_b32 v22, 4, v{LANE}          ; q = lane>>4
    v_and_b32 v23, 15, v{LANE}             ; n = lane&15
    s_lshl_b32 s{sT}, s{sC}, 13
    v_xor_b32 v7, v22, v23
    v_lshlrev_b32 v7, 4, v7
    v_lshl_add_u32 v7, v23, 8, v7              ; n*256 + ((q^n)*16)
    v_add_u32 v{RK[0]}, s{sT}, v7
    v_xor_b32 v{RK[1]}, 64, v{RK[0]}
    v_xor_b32 v{RK[2]}, 0x80, v{RK[0]}
    v_xor_b32 v{RK[3]}, 0xc0, v{RK[0]}
    v_add_u32 v{T+4}, {OMB}, v7
    v_xor_b32 v{T+5}, 64, v{T+4}
    v_xor_b32 v{T+6}, 0x80, v{T+4}
    v_xor_b32 v{T+7}, 0xc0, v{T+4}
    s_or_b32 s{sT}, s{sT}, {VRING}
    v_lshrrev_b32 v7, 2, v{LANE}
    v_and_b32 v{T}, 7, v7
    v_lshlrev_b32 v{T}, 5, v{T}
    v_lshl_add_u32 v{T}, v7, 8, v{T}
    v_and_b32 v7, 3, v{LANE}
    v_lshl_add_u32 v{T}, v7, 3, v{T}
    v_add_u32 v{RV[0]}, s{sT}, v{T}
    s_waitcnt lgkmcnt(0)
    s_barrier
    """)
    if diag:
        a(f"v_mov_b32 v{DG}, 0")
        a(f"v_writelane_b32 v{DG}, s74, 0")
        stampc(1)
        a("s_mov_b32 m0, 8")
    a(f"""
    s_lshl_b32 s{sT}, s{sHEAD}, 7
    s_add_u32 s{sT}, s{sT}, {EPOCH}
    v_mov_b32 v{T}, s{sT}
    global_load_dword v{EP}, v{T}, s[{sWS}:{sWS+1}] sc1
    s_lshl_b32 s{sT}, s{sHEAD}, 8
    v_lshl_add_u32 v{T+3}, v22, 4, 0
    v_lshl_add_u32 v{cOUT}, v22, 3, s{sT}
    v_lshl_add_u32 v{cOUT}, v23, 5, v{cOUT}
    s_lshl_b32 s{sT}, s{sHEAD}, 2
    v_mov_b32 v{cAT}, s{sT}
    v_add_u32 v{T+3}, {QB}, v{T+3}
    """)
    if tlb:
        a(f"global_load_dword v{DUM}, v{cAT}, s[{sOUT}:{sOUT+1}]")
        a(f"global_load_dword v{DUM+1}, v{cAT}, s[{sDBG}:{sDBG+1}] sc1")
    for t in range(1, 8):
        a(f"v_xor_b32 v{RV[t]}, {hex(32*t)}, v{RV[0]}")
    a(f"""
    s_lshl_b32 s{sT}, s{sC}, 10
    s_add_u32 s{sT}, s{sT}, {RED}
    v_lshl_add_u32 v{cRED}, v{LANE}, 4, s{sT}
    s_lshl_b32 s{sT}, s{sHEAD}, 13
    s_lshl_b32 s{sT2}, s{sPART}, 11
    s_add_u32 s{sT}, s{sT}, s{sT2}
    v_lshl_add_u32 v{cWS}, v{LANE}, 4, s{sT}
    v_xor_b32 v{AD}, 0x800, v{cWS}
    v_xor_b32 v{AD+1}, 0x1000, v{cWS}
    v_xor_b32 v{AD+2}, 0x1800, v{cWS}
    s_mov_b32 s{sMASK}, 0xffff0000
    s_mov_b32 s{sSCALE}, {hex(f2u(128.0 ** -0.25))}
    s_mov_b32 s{sL2E}, 0x3fb8aa3b
    v_mov_b32 v{NH}, -0.5
    s_mov_b32 s{sMS}, 0x00010001
    s_mov_b32 s{sMS+1}, 0x00010001
    s_mov_b32 s{sMS+16}, 0xff00ff00
    s_mov_b32 s{sMS+17}, 0xff00ff00
    """)
    for t in range(1, 8): a(f"s_lshl_b64 s[{sMS+2*t}:{sMS+2*t+1}], s[{sMS}:{sMS+1}], {t}")
    for i in range(4): a(f"v_mov_b32 v{ONES+i}, 0x3f803f80")
    for i in range(1, 4): a(f"v_mov_b32 v{ACC+i}, 0")
    for i in range(16): a(f"v_mov_b32 v{KR+16+i}, 0")
    a(f"""
    s_mov_b32 s{sIT}, -1
    s_mov_b32 s{sKK}, s{sC}
    s_mov_b32 s{sTHR}, 256
    """)
    poll()
    stampc(2)
    for j in range(4): a(f"ds_read_b128 v[{KR+4*j}:{KR+4*j+3}], v{T+3} offset:{64*j}")
    for t in range(4):
        for j in range(4):
            r = OM + 16 * t + 4 * j
            a(f"ds_read_b128 v[{r}:{r+3}], v{T+4+j} offset:{4096*t}")
    a("s_waitcnt lgkmcnt(0)")
    a.flush()
    a("s_branch L_phi")
    a.label("L_loop")
    a(f"s_lshl_b32 s{sTHR}, s{sKK}, 9")
    a(f"s_or_b32 s{sTHR}, s{sTHR}, 256")
    poll()
    stampm()
    for tl in range(2):
        for j in range(4): a(f"ds_read_b128 v[{KR+16*tl+4*j}:{KR+16*tl+4*j+3}], v{RK[j]} offset:{4096*tl}")
    a(f"""
    s_add_u32 s{sIT}, s{sIT}, 1
    s_and_b32 s{sCN}, s{sX}, 255
    v_mov_b32 v{cW}, s{sIT}
    """)
    for j in range(4): a(f"v_xor_b32 v{RK[j]}, 0x8000, v{RK[j]}")
    a("s_waitcnt lgkmcnt(0)")
    a(f"ds_write_b32 v{cPR}, v{cW} offset:256")
    a.label("L_phi")
    def scale(tl, j):
        o = []
        for r in range(4):
            x = KR + 16 * tl + 4 * j + r
            t0 = T + 2 * (r & 1); t1 = t0 + 1
            o += [f"v_lshlrev_b32 v{t0}, 16, v{x}",
                  f"v_and_b32 v{t1}, s{sMASK}, v{x}",
                  f"v_mul_f32 v{t0}, s{sSCALE}, v{t0}",
                  f"v_mul_f32 v{t1}, s{sSCALE}, v{t1}",
                  f"v_cvt_pk_bf16_f32 v{x}, v{t0}, v{t1}"]
        for r in range(4):
            x = KR + 16 * tl + 4 * j + r
            acc = SQA + 2 * tl + (r & 1)
            if j == 0 and r < 2: o.append(f"v_dot2_f32_bf16 v{acc}, v{x}, v{x}, 0")
            else: o.append(f"v_dot2_f32_bf16 v{acc}, v{x}, v{x}, v{acc}")
        return o
    def projm(tl, j):
        o = []
        for t in range(4):
            d = PR + 16 * tl + 4 * t
            om = OM + 16 * t + 4 * j
            k = KR + 16 * tl + 4 * j
            c = "0" if j == 0 else f"v[{d}:{d+3}]"
            o.append(f"v_mfma_f32_16x16x32_bf16 v[{d}:{d+3}], v[{om}:{om+3}], v[{k}:{k+3}], {c}")
        return o
    def sqsum(tl):
        acc = SQA + 2 * tl
        return [f"v_add_f32 v{acc}, v{acc}, v{acc+1}"]
    def sqm(tl):
        acc = SQA + 2 * tl; d = SQD + 4 * tl
        return [f"v_mfma_f32_16x16x4_f32 v[{d}:{d+3}], v{NH}, v{acc}, 0"]
    def phi(tl):
        d = SQD + 4 * tl
        o = [f"v_cvt_pk_bf16_f32 v{d}, 0, v{d}"]
        for t in range(4):
            p = [PR + 16 * tl + 4 * t + r for r in range(4)]
            for x in p: o.append(f"v_cvt_pk_bf16_f32 v{x}, 0, v{x}")
            for x in p: o.append(f"v_add_f32 v{x}, v{d}, v{x}")
            for x in p: o.append(f"v_cvt_pk_bf16_f32 v{x}, 0, v{x}")
            for x in p: o.append(f"v_mul_f32 v{x}, s{sL2E}, v{x}")
            for x in p: o.append(f"v_exp_f32 v{x}, v{x}")
            h = PH + 8 * tl + 2 * t
            o.append(f"v_cvt_pk_bf16_f32 v{h}, v{p[0]}, v{p[1]}")
            o.append(f"v_cvt_pk_bf16_f32 v{h+1}, v{p[2]}, v{p[3]}")
        return o
    def wm(tl):
        d = WD + 4 * tl; h = PH + 8 * tl
        return [f"v_mfma_f32_16x16x32_bf16 v[{d}:{d+3}], v[{h}:{h+3}], v[{PQ}:{PQ+3}], v[{C}:{C+3}]",
                f"v_mfma_f32_16x16x32_bf16 v[{d}:{d+3}], v[{h+4}:{h+7}], v[{PQ+4}:{PQ+7}], v[{d}:{d+3}]"]
    def bm(t): return KR + 4 * t if t < 8 else BD
    def masks(i): return [f"v_cndmask_b32_e64 v{bm(t)+i}, 0, v{WPK+i}, s[{sMS+2*t}:{sMS+2*t+1}]" for t in (8, 0, 1, 2, 3, 4, 5, 6, 7)]
    steps = [(tl, j) for tl in range(2) for j in range(4)]
    body = scale(0, 0)
    for i in range(1, 8):
        tl, j = steps[i]
        side = projm(*steps[i - 1])
        main = scale(tl, j)
        if steps[i - 1] == (0, 3):
            main = main[:4] + sqsum(0) + main[4:]
            side = side + sqm(0)
        body += interleave(main, side, 5, lead=2)
    ph0 = phi(0)
    ph0 = ph0[:4] + sqsum(1) + ph0[4:]
    body += interleave(ph0, projm(1, 3) + sqm(1), 4, lead=1)
    for x in body: a(x)
    a(f"s_cmp_eq_u32 s{sIT}, -1")
    a.flush()
    a("s_cbranch_scc1 L_qpost")
    body = interleave(phi(1), wm(0), 6, lead=3)
    for x in body: a(x)
    for x in wm(1): a(x)
    a(f"v_cvt_pk_bf16_f32 v{WPK}, v{WD}, v{WD+1}")
    a(f"v_cvt_pk_bf16_f32 v{WPK+1}, v{WD+2}, v{WD+3}")
    a(f"s_add_u32 s{sT}, s{sKK}, 1")
    a(f"s_add_u32 s{sTHR}, s{sTHR}, {7*256}")
    for x in masks(0) + masks(1): a(x)
    a(f"v_cvt_pk_bf16_f32 v{WPK+2}, v{WD+4}, v{WD+5}")
    a(f"v_cvt_pk_bf16_f32 v{WPK+3}, v{WD+6}, v{WD+7}")
    a(f"s_cmp_eq_u32 s{sT}, s{sCN}")
    for x in masks(2) + masks(3): a(x)
    a("s_cbranch_scc0 L_nofin")
    G = PH
    a(f"""
    s_waitcnt vmcnt(0)
    v_mov_b32 v{T}, 1
    s_mov_b64 exec, 1
    global_atomic_add v{T+1}, v{cAT}, v{T}, s[{sDBG}:{sDBG+1}] sc0 sc1
    s_mov_b64 exec, -1
    """)
    def specloads():
        for p in range(3):
            a(f"global_load_dwordx4 v[{OM+8*p}:{OM+8*p+3}], v{AD+p}, s[{sWS}:{sWS+1}] sc1")
            a(f"global_load_dwordx4 v[{OM+8*p+4}:{OM+8*p+7}], v{AD+p}, s[{sWS}:{sWS+1}] offset:1024 sc1")
    specloads()
    a(f"v_add_u32 v{EP}, 0x9e3779b9, v{EP}")
    for i in range(4): a(f"v_mov_b32 v{G+2*i+1}, v{EP}")
    a.label("L_nofin", flush=False)
    a(f"v_mfma_f32_16x16x32_bf16 v[{ACC}:{ACC+3}], v[{ONES}:{ONES+3}], v[{BD}:{BD+3}], v[{ACC}:{ACC+3}]")
    poll()
    stampm()
    for t in range(8):
        r = PR + 4 * t
        a(f"ds_read_b64_tr_b16 v[{r}:{r+1}], v{RV[t]}")
        a(f"ds_read_b64_tr_b16 v[{r+2}:{r+3}], v{RV[t]} offset:4096")
    a(f"s_and_b32 s{sCN}, s{sX}, 255")
    a(f"s_add_u32 s{sKK}, s{sKK}, 4")
    a(f"s_cmp_lt_u32 s{sKK}, s{sCN}")
    for t in range(8):
        r = PR + 4 * t
        a(f"s_waitcnt lgkmcnt({14-2*t})")
        a(f"v_mfma_f32_16x16x32_bf16 v[{ACC}:{ACC+3}], v[{r}:{r+3}], v[{bm(t)}:{bm(t)+3}], v[{ACC}:{ACC+3}]")
        a(f"v_xor_b32 v{RV[t]}, 0x8000, v{RV[t]}")
    a("s_cbranch_scc1 L_loop")
    a(f"""
    s_sub_u32 s{sT}, s{sKK}, 3
    s_cmp_eq_u32 s{sT}, s{sCN}
    s_cbranch_scc1 L_last
    """)
    a.flush()
    a(f"""
    ds_write_b128 v{cRED}, v[{ACC}:{ACC+3}]
    s_waitcnt lgkmcnt(0)
    s_barrier
    """)
    a("s_branch L_fin" if diag else "s_endpgm")
    a.label("L_last", flush=False)
    a(f"""
    v_xor_b32 v{T+2}, 0x400, v{cRED}
    v_xor_b32 v{T+3}, 0x800, v{cRED}
    v_xor_b32 v{T+4}, 0xc00, v{cRED}
    s_barrier
    ds_read_b128 v[{XR}:{XR+3}], v{T+2}
    ds_read_b128 v[{XR+4}:{XR+7}], v{T+3}
    ds_read_b128 v[{XR+8}:{XR+11}], v{T+4}
    s_waitcnt vmcnt(6)
    v_readfirstlane_b32 s{sT}, v{T+1}
    """)
    stampc(4)
    a(f"""
    s_cmp_eq_u32 s{sT}, 3
    s_waitcnt lgkmcnt(0)
    """)
    for i in range(4):
        a(f"v_add_f32 v{ACC+i}, v{ACC+i}, v{XR+i}")
        a(f"v_add_f32 v{XR+4+i}, v{XR+4+i}, v{XR+8+i}")
    for i in range(4): a(f"v_add_f32 v{G+2*i}, v{ACC+i}, v{XR+4+i}")
    a(f"""
    s_cbranch_scc1 L_final
    global_store_dwordx4 v{cWS}, v[{G}:{G+3}], s[{sWS}:{sWS+1}] sc1
    global_store_dwordx4 v{cWS}, v[{G+4}:{G+7}], s[{sWS}:{sWS+1}] offset:1024 sc1
    """)
    a("s_branch L_fin" if diag else "s_endpgm")
    a.label("L_again")
    a(f"s_sub_u32 s{sBUD}, s{sBUD}, 16")
    a("s_cbranch_scc1 L_end")
    specloads()
    a.label("L_final")
    a("s_waitcnt vmcnt(0)")
    tags = [OM + 8 * p + 2 * i + 1 for p in range(3) for i in range(4)]
    a(f"v_min3_u32 v{T+2}, v{EP}, v{tags[0]}, v{tags[1]}")
    a(f"v_max3_u32 v{T+3}, v{EP}, v{tags[0]}, v{tags[1]}")
    for i in range(2, 12, 2):
        a(f"v_min3_u32 v{T+2}, v{T+2}, v{tags[i]}, v{tags[i+1]}")
        a(f"v_max3_u32 v{T+3}, v{T+3}, v{tags[i]}, v{tags[i+1]}")
    a(f"v_cmp_ne_u32 vcc, v{T+2}, v{T+3}")
    for i in range(4):
        a(f"v_add_f32 v{XR+i}, v{G+2*i}, v{OM+2*i}")
        a(f"v_add_f32 v{XR+4+i}, v{OM+8+2*i}, v{OM+16+2*i}")
    a("s_cbranch_vccnz L_again")
    for i in range(4): a(f"v_add_f32 v{XR+i}, v{XR+i}, v{XR+4+i}")
    a(f"""
    v_mov_b32 v{T+4}, {hex(f2u(1e-6))}
    s_lshl_b32 s{sT}, s{sHEAD}, 7
    s_add_u32 s{sT}, s{sT}, {EPOCH}
    v_add_f32_dpp v{T+4}, v{XR}, v{T+4} row_ror:8 row_mask:0xf bank_mask:0xf
    v_rcp_f32 v{T+4}, v{T+4}
    v_mov_b32 v{T+5}, s{sT}
    """)
    for i in range(4): a(f"v_mul_f32 v{XR+i}, v{XR+i}, v{T+4}")
    a(f"""
    s_not_b64 exec, s[{sMS+16}:{sMS+17}]
    v_cvt_pk_bf16_f32 v{XR}, v{XR}, v{XR+1}
    v_cvt_pk_bf16_f32 v{XR+1}, v{XR+2}, v{XR+3}
    global_store_dwordx2 v{cOUT}, v[{XR}:{XR+1}], s[{sOUT}:{sOUT+1}]{outsc}
    s_mov_b64 exec, 1
    global_store_dword v{T+5}, v{EP}, s[{sWS}:{sWS+1}]{outsc}
    """)
    if diag:
        a("s_mov_b64 exec, -1")
        stampc(5)
        a.label("L_fin")
        stampc(6) if False else None
        a(f"s_memrealtime s[{sRAW}:{sRAW+1}]")
        a(f"s_getreg_b32 s76, hwreg(HW_REG_XCC_ID)")
        a("s_waitcnt lgkmcnt(0)")
        a(f"v_writelane_b32 v{DG}, s{sRAW}, 7")
        a(f"v_writelane_b32 v{DG}, s76, 63")
        a(f"""
        s_mul_i32 s{sT}, s2, 5
        s_lshr_b32 s{sT2}, s{sW}, 6
        s_add_u32 s{sT}, s{sT}, s{sT2}
        s_lshl_b32 s{sT}, s{sT}, 8
        s_add_u32 s{sT}, s{sT}, 0x100000
        v_lshl_add_u32 v{T}, v{LANE}, 2, s{sT}
        global_store_dword v{T}, v{DG}, s[{sWS}:{sWS+1}]
        """)
    a.label("L_end")
    a("s_endpgm")
    a.label("L_qpost")
    a(f"v_mov_b32 v{T+2}, {hex(f2u(1e-6) - (3 << 23))}")
    a(f"s_mov_b32 s{sT}, {hex(f2u(0.015625))}")
    for i in range(8):
        x = PH + i
        a(f"""
        v_lshlrev_b32 v{T}, 16, v{x}
        v_and_b32 v{T+1}, s{sMASK}, v{x}
        v_fma_f32 v{T}, v{T}, s{sT}, v{T+2}
        v_fma_f32 v{T+1}, v{T+1}, s{sT}, v{T+2}
        v_cvt_pk_bf16_f32 v{PQ+i}, v{T}, v{T+1}
        """)
    a(f"v_mfma_f32_16x16x32_bf16 v[{C}:{C+3}], v[{ONES}:{ONES+3}], v[{PQ}:{PQ+3}], 0")
    a(f"v_mfma_f32_16x16x32_bf16 v[{C}:{C+3}], v[{ONES}:{ONES+3}], v[{PQ+4}:{PQ+7}], v[{C}:{C+3}]")
    for i in range(4): a(f"v_mul_f32 v{C+i}, {hex(f2u(1e-6) + (3 << 23))}, v{C+i}")
    a(f"s_mov_b32 s{sIT}, 0")
    stampc(3)
    a.flush()
    a("s_branch L_loop")
    a.raw("L_codeend:")
    a.raw(f""".section .rodata,"a"
.p2align 6
.amdhsa_kernel {NAME}_kernel
  .amdhsa_next_free_vgpr 256
  .amdhsa_next_free_sgpr 80
  .amdhsa_accum_offset 256
  .amdhsa_group_segment_fixed_size 0
  .amdhsa_kernarg_size 56
  .amdhsa_user_sgpr_count 2
  .amdhsa_user_sgpr_kernarg_segment_ptr 1
  .amdhsa_system_sgpr_workgroup_id_x 1
.end_amdhsa_kernel""")
    return a

if __name__ == "__main__":
    out = sys.argv[1]
    kw = dict(x.split("=") for x in sys.argv[2:])
    for key in ("nt", "outsc"):
        if key in kw: kw[key] = "" if kw[key] == "0" else " " + kw[key].replace("+", " ")
    a = gen(**kw)
    open(out, "w").write(a.text())
    print("wrote", out, "nops inserted:", a.nops)
```

```python
import sys, struct
from asmlib import Asm, interleave

NAME = "standalone__linear_kernel_rfa__decode"
def f2u(x): return struct.unpack("<I", struct.pack("<f", x))[0]

def gen(nt=" nt", wgmap="mix", diag="0", P="3", tlb="1", S="24", X="0", outsc="", sleep="0", pf="1", Y="0", al="12"):
    diag = int(diag); tlb = int(tlb); P = int(P); S = int(S); X = int(X); pf = int(pf); Y = int(Y)
    D = 128 - 4 * S - X
    assert 2 <= P <= 4 and S >= 14 and P + Y <= 7 and Y <= 4 and S + D + X < 59
    dyn = D > 0
    a = Asm()
    VRING = 65536; OMB = 131072; QB = 147456; LND = 147712; PRG = LND + 256; RED = 151552
    LDS = RED + 4096
    EPOCH = 0x80000
    SK, SV, SO, SQ = 4, 8, 12, 16
    sOUT, sDBG, sWS = 20, 22, 24
    sW, sHEAD, sPART, sT, sT2, sX, sBUD = 26, 27, 28, 29, 30, 31, 32
    sK, sKO, sBASE, sMK, sMV, sNB, sVO = 33, 34, 35, 36, 37, 38, 39
    sF = 40
    sPOP = 48
    sC0 = 49; sE = 50
    VK = [1, 2, 3, 4]; VV = [5, 6]; vLN = 8; vPA = 9; vT = 10; vP = 11; vTA = 12; vONE = 13; vTK = 14; vEL = 15; v64 = 16
    sC, sKK, sTHR, sMASK, sSCALE, sL2E, sIT, sCN = 33, 34, 35, 36, 37, 38, 39, 40
    sMS = 42
    RK = [8, 9, 10, 11]; RV = list(range(12, 20))
    NH = 20; LANE = 21; cLN = 1; cPR = 2; cRED = 3; cW = 4; EP = 5; cWS = 6; cOUT = 22; cAT = 161
    ONES = 24; C = 28; PQ = 32; WPK = 40; WD = 44; SQD = 52; SQA = 60
    KR = 64; PR = 96; PH = 128; T = 144; ACC = 152; BD = 156; DUM = 160; DG = 164; XR = 168
    CT = 180
    OM = 192
    GA = 186
    sRAW = 72
    def stampc(i):
        if diag:
            a(f"s_memrealtime s[{sRAW}:{sRAW+1}]")
            a("s_waitcnt lgkmcnt(0)")
            a(f"v_writelane_b32 v{DG}, s{sRAW}, {i}")
    def stampm():
        if diag:
            a(f"s_memrealtime s[{sRAW}:{sRAW+1}]")
            a("s_waitcnt lgkmcnt(0)")
            a(f"v_writelane_b32 v{DG}, s{sRAW}, m0")
            a("s_add_u32 m0, m0, 1")
    npoll = [0]
    def poll():
        l = "L_poll%d" % npoll[0]; npoll[0] += 1
        a.label(l, flush=False)
        a(f"""
        ds_read_b32 v{cW}, v{cLN}
        s_sub_u32 s{sBUD}, s{sBUD}, 1
        s_cbranch_scc1 L_end
        s_waitcnt lgkmcnt(0)
        v_readfirstlane_b32 s{sX}, v{cW}
        s_cmp_ge_u32 s{sX}, s{sTHR}
        """)
        if int(sleep):
            a(f"s_cbranch_scc1 {l}x")
            a(f"s_sleep {sleep}")
            a(f"s_branch {l}")
            a.label(l + "x", flush=False)
        else:
            a(f"s_cbranch_scc0 {l}")

    hdr = open("cdna_kernels/%s.s.ref" % NAME).read().split("; Override launch")[0]
    a.raw(hdr.rstrip())
    a.raw("; @launch grid=(256,1,1) block=(320,1,1) lds=%d" % LDS)
    a.raw('.amdgcn_target "amdgcn-amd-amdhsa--gfx950"\n.text\n.globl %s_kernel\n.p2align %s\n.p2align 8\n.type %s_kernel,@function' % (NAME, al, NAME))
    a.label(NAME + "_kernel")
    if diag: a("s_memrealtime s[74:75]")
    a(f"""
    s_load_dwordx2 s[{SK}:{SK+1}], s[0:1], 8
    s_load_dwordx2 s[{SV}:{SV+1}], s[0:1], 16
    s_load_dwordx2 s[{SO}:{SO+1}], s[0:1], 24
    s_load_dwordx2 s[{SQ}:{SQ+1}], s[0:1], 0
    s_load_dwordx4 s[{sOUT}:{sOUT+3}], s[0:1], 32
    s_load_dwordx2 s[{sWS}:{sWS+1}], s[0:1], 48
    """)
    if pf:
        a("s_getpc_b64 s[60:61]")
        a.label("L_pc", flush=False)
        a(f"""
        v_subrev_u32 v7, 64, v0
        v_lshlrev_b32 v7, 7, v7
        v_cmp_gt_u32 vcc, L_codeend-L_pc-3, v7
        v_mov_b32 v{DUM+3}, s61
        s_cbranch_vccz L_nopf
        s_mov_b64 exec, vcc
        v_add_co_u32 v{DUM+2}, vcc, s60, v7
        v_addc_co_u32 v{DUM+3}, vcc, 0, v{DUM+3}, vcc
        global_load_dword v{DUM}, v[{DUM+2}:{DUM+3}], off
        s_mov_b64 exec, -1
        """)
        a.label("L_nopf", flush=False)
    a(f"""
    v_readfirstlane_b32 s{sW}, v0
    s_cmp_ge_u32 s2, 256
    s_cbranch_scc1 L_end
    """)
    if wgmap == "xcd":
        a(f"""
        s_and_b32 s{sHEAD}, s2, 7
        s_lshr_b32 s{sT}, s2, 5
        s_lshl_b32 s{sT}, s{sT}, 3
        s_or_b32 s{sHEAD}, s{sHEAD}, s{sT}
        s_bfe_u32 s{sPART}, s2, 0x20003
        """)
    elif wgmap == "lin":
        a(f"""
        s_lshr_b32 s{sHEAD}, s2, 2
        s_and_b32 s{sPART}, s2, 3
        """)
    elif wgmap == "mix":
        a(f"""
        s_bfe_u32 s{sPART}, s2, 0x20001
        s_xor_b32 s{sT}, s2, s{sPART}
        s_and_b32 s{sT}, s{sT}, 1
        s_lshr_b32 s{sHEAD}, s2, 3
        s_lshl1_add_u32 s{sHEAD}, s{sHEAD}, s{sT}
        """)
    a(f"""
    s_mov_b32 s{sBUD}, 0x100000
    s_cmp_lg_u32 s{sW}, 0
    s_cbranch_scc1 L_cons
    """)
    STEP = 32768
    a(f"""
    s_setprio 3
    v_lshrrev_b32 v22, 4, v0
    v_and_b32 v23, 15, v0
    v_xor_b32 v7, v22, v23
    v_lshlrev_b32 v7, 4, v7
    v_lshl_add_u32 v{VK[0]}, v22, 8, v7
    v_xor_b32 v{VK[1]}, 64, v{VK[0]}
    v_xor_b32 v{VK[2]}, 0x80, v{VK[0]}
    v_xor_b32 v{VK[3]}, 0xc0, v{VK[0]}
    s_brev_b32 s{SK+2}, 32
    s_mov_b32 s{SK+3}, 0x20000
    s_lshl_b32 s{sKO}, s{sHEAD}, 20
    s_lshl_b32 s{sT}, s{sPART}, 13
    s_add_u32 s{sKO}, s{sKO}, s{sT}
    s_mov_b32 s{sK}, 0
    s_mov_b32 s{sMK}, 0
    s_mov_b32 s{sNB}, {63 if dyn else 32}
    """)
    if diag:
        a("s_waitcnt lgkmcnt(0)")
        a(f"v_mov_b32 v{DG}, 0")
        a(f"v_writelane_b32 v{DG}, s74, 0")
        stampc(1)
    a("s_waitcnt lgkmcnt(0)")
    def push(val_code):
        a(f"s_mov_b32 s{sPOP}, s{sF+P-1}")
        for i in range(P - 1, 0, -1): a(f"s_mov_b32 s{sF+i}, s{sF+i-1}")
        for x in val_code: a(x)
    def publish(src):
        a(f"s_or_b32 s{sT}, s{src}, s{sNB}")
        a(f"v_mov_b32 v{vT}, s{sT}")
    a.label("L_k")
    a(f"""
    s_mov_b32 m0, s{sMK}
    s_add_u32 s{sT}, s{sKO}, 4096
    """)
    for i in range(4): a(f"buffer_load_dwordx4 v{VK[i]}, s[{SK}:{SK+3}], s{sKO} offen offset:{1024*i}{nt} lds")
    a(f"s_add_u32 m0, s{sMK}, 4096")
    a(f"s_cmp_eq_u32 s{sK}, 0")
    for i in range(4): a(f"buffer_load_dwordx4 v{VK[i]}, s[{SK}:{SK+3}], s{sT} offen offset:{1024*i}{nt} lds")
    a("s_cbranch_scc1 L_omega")
    a.label("L_omret")
    a(f"""
    s_add_u32 s{sMK}, s{sMK}, 8192
    s_and_b32 s{sMK}, s{sMK}, 0xffff
    """)
    push([f"s_lshl_b32 s{sF}, s{sK}, 9", f"s_or_b32 s{sF}, s{sF}, 256"])
    a(f"s_cmp_eq_u32 s{sPOP}, 0")
    a("s_cbranch_scc1 L_v")
    publish(sPOP)
    a(f"s_waitcnt vmcnt({8*P})")
    a(f"ds_write_b32 v{vLN}, v{vT}")
    a.label("L_v", flush=False)
    a(f"""
    s_sub_u32 s{sT2}, s{sK}, 7
    s_cbranch_scc1 L_early
    """)
    a.label("L_chk", flush=False)
    a(f"""
    ds_read_b32 v{vP}, v{vPA}
    s_sub_u32 s{sBUD}, s{sBUD}, 1
    s_cbranch_scc1 L_end
    s_and_b32 s{sT}, s{sT2}, 3
    s_waitcnt lgkmcnt(0)
    v_readlane_b32 s{sX}, v{vP}, s{sT}
    s_lshr_b32 s{sT}, s{sT2}, 2
    s_cmp_gt_u32 s{sX}, s{sT}
    s_cbranch_scc0 L_chk
    s_cmp_lt_u32 s{sT2}, 4
    s_cbranch_scc1 L_next
    """)
    a.label("L_vi", flush=False)
    a(f"""
    v_readlane_b32 s{sVO}, v{vTK}, s{sT2}
    s_sub_u32 s{sE}, s{sNB}, s{sT2}
    s_cmp_lg_u32 s{sE}, 4
    s_cbranch_scc1 L_noel
    s_mov_b64 exec, 1
    global_atomic_add v{vEL}, v{vTA}, v{v64}, s[{sWS}:{sWS+1}] sc0 sc1
    s_mov_b64 exec, -1
    """)
    a.label("L_noel", flush=False)
    a(f"""
    s_lshl_b32 s{sVO}, s{sVO}, 5
    s_add_u32 s{sVO}, s{sVO}, s{sBASE}
    s_mov_b32 m0, s{sMV}
    s_add_u32 s{sT}, s{sVO}, 4096
    """)
    for i in range(4): a(f"buffer_load_dwordx4 v{VV[i&1]}, s[{SV}:{SV+3}], s{sVO} offen offset:{1024*i}{nt} lds")
    a(f"s_add_u32 m0, s{sMV}, 4096")
    a(f"s_add_u32 s{sMV}, s{sMV}, 8192")
    for i in range(4): a(f"buffer_load_dwordx4 v{VV[i&1]}, s[{SV}:{SV+3}], s{sT} offen offset:{1024*i}{nt} lds")
    a(f"""
    s_and_b32 s{sMV}, s{sMV}, 0xffff
    s_or_b32 s{sMV}, s{sMV}, {VRING}
    """)
    if Y:
        a(f"s_cmp_le_u32 s{sE}, {Y}")
        a("s_cbranch_scc1 L_next")
    push([f"s_lshl_b32 s{sF}, s{sK}, 9", f"s_add_u32 s{sF}, s{sF}, 512"])
    publish(sPOP)
    a(f"s_waitcnt vmcnt({8*P})")
    a(f"v_and_or_b32 v{vT}, v{vEL}, s{sC0}, v{vT}")
    a(f"ds_write_b32 v{vLN}, v{vT}")
    if diag:
        a(f"s_cmp_eq_u32 s{sK}, 3")
        a("s_cbranch_scc0 L_d1")
        stampc(2)
        a.label("L_d1", flush=False)
        a(f"s_cmp_eq_u32 s{sK}, 19")
        a("s_cbranch_scc0 L_d2")
        stampc(3)
        a.label("L_d2", flush=False)
    a.label("L_next", flush=False)
    a(f"""
    s_add_u32 s{sK}, s{sK}, 1
    s_add_u32 s{sKO}, s{sKO}, {STEP}
    s_cmp_lt_u32 s{sK}, {S-2 if dyn else S}
    s_cbranch_scc1 L_k
    """)
    if dyn:
        a(f"""
        s_cmp_lg_u32 s{sNB}, 63
        s_cbranch_scc1 L_known
        s_cmp_lt_u32 s{sK}, {S}
        s_cbranch_scc1 L_tk
        v_readlane_b32 s{sX}, v{vTK}, s{sK}
        s_lshl_b32 s{sKO}, s{sX}, 5
        s_add_u32 s{sKO}, s{sKO}, s{sBASE}
        s_cmp_lt_u32 s{sX}, {(D-1)<<8}
        s_cbranch_scc0 L_stop
        """)
        a.label("L_tk", flush=False)
        a(f"""
        s_lshl_b64 exec, 4, s{sK}
        global_atomic_add v{vTK}, v{vTA}, v{vONE}, s[{sWS}:{sWS+1}] sc0 sc1
        s_mov_b64 exec, -1
        s_branch L_k
        """)
        a.label("L_stop", flush=False)
        a(f"""
        s_mov_b32 s{sNB}, s{sK}
        s_cmp_ge_u32 s{sX}, {D<<8}
        s_cbranch_scc1 L_v
        s_add_u32 s{sNB}, s{sK}, {1+X}
        s_branch L_k
        """)
        a.label("L_known", flush=False)
        if X:
            a(f"""
            s_cmp_lt_u32 s{sK}, s{sNB}
            s_cbranch_scc0 L_drain
            s_sub_u32 s{sKO}, s{sKO}, {STEP-8192}
            s_sub_u32 s{sT}, s{sKO}, s{sBASE}
            s_lshr_b32 s{sT}, s{sT}, 5
            s_mov_b32 m0, s{sK}
            v_writelane_b32 v{vTK}, s{sT}, m0
            s_branch L_k
            """)
            a.label("L_drain", flush=False)
    a(f"""
    s_add_u32 s{sT}, s{sNB}, 7
    s_cmp_lt_u32 s{sK}, s{sT}
    s_cbranch_scc1 L_v
    """)
    stampc(4)
    a(f"""
    s_lshl_b32 s{sT}, s{sK}, 9
    s_or_b32 s{sT}, s{sT}, s{sNB}
    v_mov_b32 v{vP}, s{sT}
    """)
    for p in range(P + Y - 1, -1, -1):
        if p: a(f"v_subrev_u32 v{vT}, {512*p}, v{vP}")
        a(f"s_waitcnt vmcnt({8*p})")
        a(f"v_and_or_b32 v{vT}, v{vEL}, s{sC0}, v{vT if p else vP}")
        a(f"ds_write_b32 v{vLN}, v{vT}")
    if diag:
        a(f"v_readfirstlane_b32 s{sNB}, v{vT}")
    if diag:
        stampc(5)
        a(f"s_sub_u32 s{sT}, 0x100000, s{sBUD}")
        a(f"v_writelane_b32 v{DG}, s{sT}, 6")
        a(f"v_writelane_b32 v{DG}, s{sNB}, 8")
        a(f"v_mov_b32 v{LANE}, v0")
        a.flush()
        a("s_branch L_fin")
    else:
        a("s_waitcnt lgkmcnt(0)")
        a("s_endpgm")
    a.label("L_early", flush=False)
    a(f"""
    s_sub_u32 s{sT2}, s{sK}, 3
    s_cbranch_scc0 L_vi
    s_branch L_next
    """)
    a.label("L_omega")
    a(f"""
    s_mov_b32 s{SO+2}, 16384
    s_mov_b32 s{SO+3}, 0x20000
    s_mov_b32 m0, {OMB}
    s_mov_b32 s{sT}, 0
    """)
    a.label("L_om1", flush=False)
    a(f"s_cmp_eq_u32 s{sT}, 12288")
    for i in range(4): a(f"buffer_load_dwordx4 v{VK[i]}, s[{SO}:{SO+3}], s{sT} offen offset:{1024*i} lds")
    a(f"""
    s_cbranch_scc1 L_om2
    s_add_u32 m0, m0, 4096
    s_add_u32 s{sT}, s{sT}, 4096
    s_branch L_om1
    """)
    a.label("L_om2")
    a(f"""
    s_mov_b32 m0, {QB}
    s_mov_b32 s{SQ+2}, 16384
    s_mov_b32 s{SQ+3}, 0x20000
    s_lshl_b32 s{sT}, s{sHEAD}, 8
    v_lshlrev_b32 v{vLN}, 2, v0
    buffer_load_dword v{vLN}, s[{SQ}:{SQ+3}], s{sT} offen lds
    s_mov_b32 s{SV+2}, s{SK+2}
    s_mov_b32 s{SV+3}, s{SK+3}
    v_lshlrev_b32 v7, 1, v22
    v_xor_b32 v7, v7, v23
    v_lshlrev_b32 v7, 4, v7
    v_lshl_add_u32 v{VV[0]}, v22, 8, v7
    v_xor_b32 v{VV[1]}, 0x80, v{VV[0]}
    v_and_b32 v7, 3, v0
    v_lshl_add_u32 v{vPA}, v7, 8, v{vLN}
    v_add_u32 v{vPA}, {PRG}, v{vPA}
    v_add_u32 v{vLN}, {LND}, v{vLN}
    s_add_u32 s{sT}, s{sT}, {EPOCH}
    v_mov_b32 v{vTA}, s{sT}
    v_mov_b32 v{vONE}, 0x100
    v_mov_b32 v{v64}, 64
    v_mov_b32 v{vEL}, 0
    s_mov_b32 s{sC0}, 0xc0
    s_sub_u32 s{sT}, s{sPART}, {4*S}
    v_lshl_add_u32 v{vTK}, v0, 2, s{sT}
    v_lshlrev_b32 v{vTK}, 8, v{vTK}
    s_lshl_b32 s{sBASE}, s{sHEAD}, 20
    s_add_u32 s{sBASE}, s{sBASE}, {4*S*8192}
    s_mov_b32 s{sMV}, {VRING}
    """)
    for i in range(P): a(f"s_mov_b32 s{sF+i}, 0")
    a("s_barrier")
    a.flush()
    a("s_branch L_omret")
    a.label("L_cons")
    a(f"""
    s_lshr_b32 s{sC}, s{sW}, 6
    s_sub_u32 s{sC}, s{sC}, 1
    v_and_b32 v{LANE}, 63, v0
    v_lshlrev_b32 v{cLN}, 2, v{LANE}
    v_add_u32 v{cLN}, {LND}, v{cLN}
    s_lshl_b32 s{sT}, s{sC}, 8
    v_add_u32 v{cPR}, s{sT}, v{cLN}
    v_mov_b32 v{ACC}, 0
    ds_write_b32 v{cLN}, v{ACC}
    ds_write_b32 v{cPR}, v{ACC} offset:256
    v_lshrrev_b32 v22, 4, v{LANE}          ; q = lane>>4
    v_and_b32 v23, 15, v{LANE}             ; n = lane&15
    s_lshl_b32 s{sT}, s{sC}, 13
    v_xor_b32 v7, v22, v23
    v_lshlrev_b32 v7, 4, v7
    v_lshl_add_u32 v7, v23, 8, v7              ; n*256 + ((q^n)*16)
    v_add_u32 v{RK[0]}, s{sT}, v7
    v_xor_b32 v{RK[1]}, 64, v{RK[0]}
    v_xor_b32 v{RK[2]}, 0x80, v{RK[0]}
    v_xor_b32 v{RK[3]}, 0xc0, v{RK[0]}
    v_add_u32 v{T+4}, {OMB}, v7
    v_xor_b32 v{T+5}, 64, v{T+4}
    v_xor_b32 v{T+6}, 0x80, v{T+4}
    v_xor_b32 v{T+7}, 0xc0, v{T+4}
    s_or_b32 s{sT}, s{sT}, {VRING}
    v_lshrrev_b32 v7, 2, v{LANE}
    v_and_b32 v{T}, 7, v7
    v_lshlrev_b32 v{T}, 5, v{T}
    v_lshl_add_u32 v{T}, v7, 8, v{T}
    v_and_b32 v7, 3, v{LANE}
    v_lshl_add_u32 v{T}, v7, 3, v{T}
    v_add_u32 v{RV[0]}, s{sT}, v{T}
    s_waitcnt lgkmcnt(0)
    s_barrier
    """)
    if diag:
        a(f"v_mov_b32 v{DG}, 0")
        a(f"v_writelane_b32 v{DG}, s74, 0")
        stampc(1)
        a("s_mov_b32 m0, 8")
    a(f"""
    s_lshl_b32 s{sT}, s{sHEAD}, 8
    s_add_u32 s{sT2}, s{sT}, {EPOCH}
    v_mov_b32 v{cAT}, s{sT2}
    v_mov_b32 v{CT+4}, 0
    v_mov_b32 v{CT+5}, 0
    global_load_dword v{EP}, v{cAT}, s[{sWS}:{sWS+1}] offset:128 sc1
    s_cmp_lg_u32 s{sC}, 0
    s_cbranch_scc1 L_c1
    s_mov_b64 exec, 1
    global_atomic_add_x2 v[{CT+2}:{CT+3}], v{cAT}, v[{CT+4}:{CT+5}], s[{sWS}:{sWS+1}] sc0 sc1
    s_mov_b64 exec, -1
    """)
    a.label("L_c1", flush=False)
    a(f"""
    v_lshlrev_b32 v{T+3}, 4, v22
    v_lshl_add_u32 v{cWS}, v22, 3, v23          ; 8q + n
    v_lshlrev_b32 v{cWS}, 4, v{cWS}
    v_cmp_gt_u32 vcc, 8, v23
    v_mov_b32 v7, 0x400
    v_lshl_add_u32 v{cOUT}, v22, 3, s{sT}
    v_lshl_add_u32 v{cOUT}, v23, 5, v{cOUT}
    v_cndmask_b32 v{cWS}, v7, v{cWS}, vcc
    """)
    if tlb:
        a(f"global_load_dword v{DUM}, v{CT+4}, s[{sOUT}:{sOUT+1}]")
    for t in range(1, 8):
        a(f"v_xor_b32 v{RV[t]}, {hex(32*t)}, v{RV[0]}")
    a(f"""
    s_lshl_b32 s{sT}, s{sC}, 10
    s_add_u32 s{sT}, s{sT}, {RED}
    v_lshl_add_u32 v{cRED}, v{LANE}, 4, s{sT}
    v_add_u32 v{T+3}, s{sT}, v{T+3}
    v_lshl_add_u32 v{T+2}, v{LANE}, 2, s{sT}
    s_lshl_b32 s{sT}, s{sHEAD}, 13
    s_lshl_b32 s{sT2}, s{sPART}, 11
    s_add_u32 s{sT}, s{sT}, s{sT2}
    v_add_u32 v{cWS}, s{sT}, v{cWS}
    v_xor_b32 v{GA}, 0x800, v{cWS}
    v_xor_b32 v{GA+1}, 0x1000, v{cWS}
    v_xor_b32 v{GA+2}, 0x1800, v{cWS}
    s_mov_b32 s{sMASK}, 0xffff0000
    s_mov_b32 s{sSCALE}, {hex(f2u(128.0 ** -0.25))}
    s_mov_b32 s{sL2E}, 0x3fb8aa3b
    v_mov_b32 v{NH}, -0.5
    s_mov_b32 s{sMS}, 0x00010001
    s_mov_b32 s{sMS+1}, 0x00010001
    s_mov_b32 s{sMS+16}, 0xff00ff00
    s_mov_b32 s{sMS+17}, 0xff00ff00
    """)
    for t in range(1, 8): a(f"s_lshl_b64 s[{sMS+2*t}:{sMS+2*t+1}], s[{sMS}:{sMS+1}], {t}")
    for i in range(4): a(f"v_mov_b32 v{ONES+i}, 0x3f803f80")
    for i in range(1, 4): a(f"v_mov_b32 v{ACC+i}, 0")
    for i in range(4): a(f"v_mov_b32 v{WPK+i}, 0")
    a(f"""
    s_mov_b32 s{sIT}, -1
    s_mov_b32 s{sKK}, s{sC}
    s_mov_b32 s{sTHR}, 256
    """)
    poll()
    stampc(2)
    a(f"v_subrev_u32 v{T}, {LND-QB}, v{cLN}")
    a(f"ds_read_b32 v{KR}, v{T}")
    for j in range(4):
        for t in range(4):
            r = OM + 16 * t + 4 * j
            a(f"ds_read_b128 v[{r}:{r+3}], v{T+4+j} offset:{4096*t}")
            if j == 0 and t == 3:
                a(f"""
                s_waitcnt lgkmcnt(4)
                v_lshlrev_b32 v{T}, 16, v{KR}
                v_and_b32 v{T+1}, s{sMASK}, v{KR}
                v_mul_f32 v{T}, s{sSCALE}, v{T}
                v_mul_f32 v{T+1}, s{sSCALE}, v{T+1}
                v_cvt_pk_bf16_f32 v{T}, v{T}, v{T+1}
                ds_write_b32 v{T+2}, v{T}
                """)
                for jj in range(4): a(f"ds_read_b128 v[{KR+4*jj}:{KR+4*jj+3}], v{T+3} offset:{64*jj}")
    for j in range(4):
        a(f"s_waitcnt lgkmcnt({12-4*j})")
        k = KR + 4 * j
        a(f"v_mfma_f32_16x16x32_bf16 v[{SQD}:{SQD+3}], v[{k}:{k+3}], v[{k}:{k+3}], " + (f"v[{SQD}:{SQD+3}]" if j else "0"))
        for t in range(4):
            d = PR + 4 * t; om = OM + 16 * t + 4 * j
            a(f"v_mfma_f32_16x16x32_bf16 v[{d}:{d+3}], v[{om}:{om+3}], v[{k}:{k+3}], " + (f"v[{d}:{d+3}]" if j else "0"))
    a(f"v_mul_f32 v{SQD}, -0.5, v{SQD}")
    a.flush()
    a("s_branch L_phi0")
    a.label("L_loop")
    a(f"s_lshl_b32 s{sTHR}, s{sKK}, 9")
    a(f"s_or_b32 s{sTHR}, s{sTHR}, 256")
    poll()
    stampm()
    for tl in range(2):
        for j in range(4): a(f"ds_read_b128 v[{KR+16*tl+4*j}:{KR+16*tl+4*j+3}], v{RK[j]} offset:{4096*tl}")
    a(f"""
    s_add_u32 s{sIT}, s{sIT}, 1
    v_mov_b32 v{cW}, s{sIT}
    """)
    for j in range(4): a(f"v_xor_b32 v{RK[j]}, 0x8000, v{RK[j]}")
    a("s_waitcnt lgkmcnt(0)")
    a(f"ds_write_b32 v{cPR}, v{cW} offset:256")
    def scale(tl, j):
        o = []
        for r in range(4):
            x = KR + 16 * tl + 4 * j + r
            t0 = T + 2 * (r & 1); t1 = t0 + 1
            o += [f"v_lshlrev_b32 v{t0}, 16, v{x}",
                  f"v_and_b32 v{t1}, s{sMASK}, v{x}",
                  f"v_mul_f32 v{t0}, s{sSCALE}, v{t0}",
                  f"v_mul_f32 v{t1}, s{sSCALE}, v{t1}",
                  f"v_cvt_pk_bf16_f32 v{x}, v{t0}, v{t1}"]
        for r in range(4):
            x = KR + 16 * tl + 4 * j + r
            acc = SQA + 2 * tl + (r & 1)
            if j == 0 and r < 2: o.append(f"v_dot2_f32_bf16 v{acc}, v{x}, v{x}, 0")
            else: o.append(f"v_dot2_f32_bf16 v{acc}, v{x}, v{x}, v{acc}")
        return o
    def projm(tl, j):
        o = []
        for t in range(4):
            d = PR + 16 * tl + 4 * t
            om = OM + 16 * t + 4 * j
            k = KR + 16 * tl + 4 * j
            c = "0" if j == 0 else f"v[{d}:{d+3}]"
            o.append(f"v_mfma_f32_16x16x32_bf16 v[{d}:{d+3}], v[{om}:{om+3}], v[{k}:{k+3}], {c}")
        return o
    def sqsum(tl):
        acc = SQA + 2 * tl
        return [f"v_add_f32 v{acc}, v{acc}, v{acc+1}"]
    def sqm(tl):
        acc = SQA + 2 * tl; d = SQD + 4 * tl
        return [f"v_mfma_f32_16x16x4_f32 v[{d}:{d+3}], v{NH}, v{acc}, 0"]
    def phi(tl):
        d = SQD + 4 * tl
        o = [f"v_cvt_pk_bf16_f32 v{d}, 0, v{d}"]
        for t in range(4):
            p = [PR + 16 * tl + 4 * t + r for r in range(4)]
            for x in p: o.append(f"v_cvt_pk_bf16_f32 v{x}, 0, v{x}")
            for x in p: o.append(f"v_add_f32 v{x}, v{d}, v{x}")
            for x in p: o.append(f"v_cvt_pk_bf16_f32 v{x}, 0, v{x}")
            for x in p: o.append(f"v_mul_f32 v{x}, s{sL2E}, v{x}")
            for x in p: o.append(f"v_exp_f32 v{x}, v{x}")
            h = PH + 8 * tl + 2 * t
            o.append(f"v_cvt_pk_bf16_f32 v{h}, v{p[0]}, v{p[1]}")
            o.append(f"v_cvt_pk_bf16_f32 v{h+1}, v{p[2]}, v{p[3]}")
        return o
    def wm(tl):
        d = WD + 4 * tl; h = PH + 8 * tl
        return [f"v_mfma_f32_16x16x32_bf16 v[{d}:{d+3}], v[{h}:{h+3}], v[{PQ}:{PQ+3}], v[{C}:{C+3}]",
                f"v_mfma_f32_16x16x32_bf16 v[{d}:{d+3}], v[{h+4}:{h+7}], v[{PQ+4}:{PQ+7}], v[{d}:{d+3}]"]
    def bm(t): return KR + 4 * t if t < 8 else BD
    def masks(i): return [f"v_cndmask_b32_e64 v{bm(t)+i}, 0, v{WPK+i}, s[{sMS+2*t}:{sMS+2*t+1}]" for t in (8, 0, 1, 2, 3, 4, 5, 6, 7)]
    steps = [(tl, j) for tl in range(2) for j in range(4)]
    body = scale(0, 0)
    for i in range(1, 8):
        tl, j = steps[i]
        side = projm(*steps[i - 1])
        main = scale(tl, j)
        if steps[i - 1] == (0, 3):
            main = main[:4] + sqsum(0) + main[4:]
            side = side + sqm(0)
        body += interleave(main, side, 5, lead=2)
    ph0 = phi(0)
    ph0 = ph0[:4] + sqsum(1) + ph0[4:]
    for x in body: a(x)
    a.label("L_phi0", flush=False)
    for x in interleave(ph0, projm(1, 3) + sqm(1), 4, lead=1): a(x)
    a(f"s_cmp_eq_u32 s{sIT}, -1")
    a.flush()
    a("s_cbranch_scc1 L_qpost")
    body = interleave(phi(1), wm(0), 6, lead=3)
    for x in body: a(x)
    for x in wm(1): a(x)
    G = PH
    a.label("L_mask", flush=False)
    a(f"s_lshl_b32 s{sTHR}, s{sKK}, 9")
    a(f"s_add_u32 s{sTHR}, s{sTHR}, {8*256}")
    a(f"s_add_u32 s{sKK}, s{sKK}, 4")
    a(f"s_cmp_lt_u32 s{sKK}, 8")
    for t in (8, 0, 1, 2, 3, 4, 5, 6, 7):
        for i in range(4): a(f"v_cndmask_b32_e64 v{bm(t)+i}, 0, v{WPK+i}, s[{sMS+2*t}:{sMS+2*t+1}]")
        if t == 0: a(f"v_mfma_f32_16x16x32_bf16 v[{ACC}:{ACC+3}], v[{ONES}:{ONES+3}], v[{BD}:{BD+3}], v[{ACC}:{ACC+3}]")
    for i in range(4): a(f"v_cvt_pk_bf16_f32 v{WPK+i}, v{WD+2*i}, v{WD+2*i+1}")
    a(f"s_add_u32 s{sT2}, s{sKK}, {0xc0-4}") if False else None
    a("s_waitcnt vmcnt(0)")
    a("s_cbranch_scc1 L_loop")
    poll()
    stampm()
    for t in range(8):
        r = PR + 4 * t
        a(f"ds_read_b64_tr_b16 v[{r}:{r+1}], v{RV[t]}")
        a(f"ds_read_b64_tr_b16 v[{r+2}:{r+3}], v{RV[t]} offset:4096")
    a(f"""
    s_and_b32 s{sT}, s{sX}, 255
    s_add_u32 s{sT2}, s{sKK}, {0xc0-4}
    s_cmp_eq_u32 s{sT}, s{sT2}
    s_cbranch_scc1 L_spec
    """)
    a.label("L_specret", flush=False)
    a(f"s_and_b32 s{sCN}, s{sX}, 63")
    a(f"s_cmp_lt_u32 s{sKK}, s{sCN}")
    for t in range(8):
        r = PR + 4 * t
        a(f"s_waitcnt lgkmcnt({14-2*t})")
        a(f"v_mfma_f32_16x16x32_bf16 v[{ACC}:{ACC+3}], v[{r}:{r+3}], v[{bm(t)}:{bm(t)+3}], v[{ACC}:{ACC+3}]")
        a(f"v_xor_b32 v{RV[t]}, 0x8000, v{RV[t]}")
    a("s_cbranch_scc1 L_loop")
    a(f"""
    s_sub_u32 s{sT}, s{sCN}, s{sKK}
    s_add_u32 s{sT}, s{sT}, 7
    s_cmp_ge_u32 s{sT}, 4
    s_cbranch_scc1 L_mask
    s_bfe_u32 s{sT2}, s{sX}, 0x20006
    s_cmp_eq_u32 s{sT}, 0
    s_cbranch_scc1 L_last
    s_and_b32 s{sT}, s{sT}, s{sT2}
    s_cmp_eq_u32 s{sT}, 3
    s_cbranch_scc0 L_dep
    """)
    def specloads():
        for p in range(3):
            a(f"global_load_dwordx4 v[{OM+8*p}:{OM+8*p+3}], v{GA+p}, s[{sWS}:{sWS+1}] sc1")
            a(f"global_load_dwordx4 v[{OM+8*p+4}:{OM+8*p+7}], v{GA+p}, s[{sWS}:{sWS+1}] offset:512 sc1")
    a.label("L_gather", flush=False)
    if diag: a(f"s_add_u32 s{sIT}, s{sIT}, 256")
    a("s_waitcnt vmcnt(0)")
    tags = [OM + 8 * p + 2 * i + 1 for p in range(3) for i in range(4)]
    a(f"v_min3_u32 v{T+2}, v{EP}, v{tags[0]}, v{tags[1]}")
    a(f"v_max3_u32 v{T+3}, v{EP}, v{tags[0]}, v{tags[1]}")
    for i in range(2, 12, 2):
        a(f"v_min3_u32 v{T+2}, v{T+2}, v{tags[i]}, v{tags[i+1]}")
        a(f"v_max3_u32 v{T+3}, v{T+3}, v{tags[i]}, v{tags[i+1]}")
    a(f"v_cmp_ne_u32 vcc, v{T+2}, v{T+3}")
    for i in range(4):
        a(f"v_add_f32 v{XR+4+i}, v{ACC+i}, v{OM+2*i}")
        a(f"v_add_f32 v{XR+8+i}, v{OM+8+2*i}, v{OM+16+2*i}")
    a("s_cbranch_vccnz L_again")
    for i in range(4): a(f"v_add_f32 v{ACC+i}, v{XR+4+i}, v{XR+8+i}")
    stampc(62)
    a.label("L_dep", flush=False)
    a(f"""
    ds_write_b128 v{cRED}, v[{ACC}:{ACC+3}]
    s_waitcnt lgkmcnt(0)
    s_barrier
    """)
    a("s_branch L_fin" if diag else "s_endpgm")
    a.label("L_spec", flush=False)
    specloads()
    a("s_branch L_specret")
    a.label("L_again", flush=False)
    specloads()
    a(f"s_sub_u32 s{sBUD}, s{sBUD}, 16")
    a("s_cbranch_scc0 L_gather")
    a("s_endpgm")
    a.label("L_last", flush=False)
    a(f"""
    v_xor_b32 v{T+2}, 0x400, v{cRED}
    v_xor_b32 v{T+3}, 0x800, v{cRED}
    v_xor_b32 v{T+4}, 0xc00, v{cRED}
    """)
    stampc(61)
    a(f"""
    s_barrier
    ds_read_b128 v[{XR}:{XR+3}], v{T+2}
    ds_read_b128 v[{XR+4}:{XR+7}], v{T+3}
    ds_read_b128 v[{XR+8}:{XR+11}], v{T+4}
    """)
    for i in range(4): a(f"v_mov_b32 v{G+2*i+1}, v{EP}")
    stampc(4)
    a(f"""
    v_mov_b32 v{T+4}, {hex(f2u(1e-6))}
    s_not_b64 s[{sMS}:{sMS+1}], s[{sMS+16}:{sMS+17}]
    s_cmp_eq_u32 s{sT2}, 3
    s_waitcnt lgkmcnt(0)
    """)
    for i in range(4):
        a(f"v_add_f32 v{ACC+i}, v{ACC+i}, v{XR+i}")
        a(f"v_add_f32 v{XR+4+i}, v{XR+4+i}, v{XR+8+i}")
    for i in range(4): a(f"v_add_f32 v{G+2*i}, v{ACC+i}, v{XR+4+i}")
    a(f"""
    s_cbranch_scc1 L_final
    s_or_b64 exec, s[{sMS}:{sMS+1}], 0x100
    global_store_dwordx4 v{cWS}, v[{G}:{G+3}], s[{sWS}:{sWS+1}] sc1
    global_store_dwordx4 v{cWS}, v[{G+4}:{G+7}], s[{sWS}:{sWS+1}] offset:512 sc1
    """)
    if diag: a("s_mov_b64 exec, -1")
    a("s_branch L_fin" if diag else "s_endpgm")
    a.label("L_final", flush=False)
    a(f"""
    v_add_f32_dpp v{T+4}, v{G}, v{T+4} row_ror:8 row_mask:0xf bank_mask:0xf
    v_rcp_f32 v{T+4}, v{T+4}
    s_mov_b64 exec, s[{sMS}:{sMS+1}]
    """)
    for i in range(4): a(f"v_mul_f32 v{XR+i}, v{G+2*i}, v{T+4}")
    a(f"""
    v_cvt_pk_bf16_f32 v{XR}, v{XR}, v{XR+1}
    v_cvt_pk_bf16_f32 v{XR+1}, v{XR+2}, v{XR+3}
    global_store_dwordx2 v{cOUT}, v[{XR}:{XR+1}], s[{sOUT}:{sOUT+1}]{outsc}
    s_mov_b64 exec, 1
    global_store_dword v{cAT}, v{EP}, s[{sWS}:{sWS+1}] offset:128{outsc}
    """)
    if diag:
        a("s_mov_b64 exec, -1")
        stampc(5)
        a.label("L_fin")
        stampc(6) if False else None
        a(f"s_memrealtime s[{sRAW}:{sRAW+1}]")
        a(f"s_getreg_b32 s76, hwreg(HW_REG_XCC_ID)")
        a("s_waitcnt lgkmcnt(0)")
        a(f"v_writelane_b32 v{DG}, s{sRAW}, 7")
        a(f"v_writelane_b32 v{DG}, s76, 63")
        a(f"v_writelane_b32 v{DG}, s{sIT}, 60")
        a(f"""
        s_mul_i32 s{sT}, s2, 5
        s_lshr_b32 s{sT2}, s{sW}, 6
        s_add_u32 s{sT}, s{sT}, s{sT2}
        s_lshl_b32 s{sT}, s{sT}, 8
        s_add_u32 s{sT}, s{sT}, 0x100000
        v_lshl_add_u32 v{T}, v{LANE}, 2, s{sT}
        global_store_dword v{T}, v{DG}, s[{sWS}:{sWS+1}]
        """)
    a.label("L_end")
    a("s_endpgm")
    a.label("L_qpost")
    a(f"v_mov_b32 v{T+2}, {hex(f2u(1e-6) - (3 << 23))}")
    a(f"s_mov_b32 s{sT}, {hex(f2u(0.015625))}")
    for i in range(8):
        x = PH + i
        a(f"""
        v_lshlrev_b32 v{T}, 16, v{x}
        v_and_b32 v{T+1}, s{sMASK}, v{x}
        v_fma_f32 v{T}, v{T}, s{sT}, v{T+2}
        v_fma_f32 v{T+1}, v{T+1}, s{sT}, v{T+2}
        v_cvt_pk_bf16_f32 v{PQ+i}, v{T}, v{T+1}
        """)
    a(f"v_mfma_f32_16x16x32_bf16 v[{C}:{C+3}], v[{ONES}:{ONES+3}], v[{PQ}:{PQ+3}], 0")
    a(f"v_mfma_f32_16x16x32_bf16 v[{C}:{C+3}], v[{ONES}:{ONES+3}], v[{PQ+4}:{PQ+7}], v[{C}:{C+3}]")
    for i in range(4): a(f"v_mul_f32 v{C+i}, {hex(f2u(1e-6) + (3 << 23))}, v{C+i}")
    a(f"""
    s_mov_b32 s{sIT}, 0
    s_cmp_lg_u32 s{sC}, 0
    s_waitcnt vmcnt(0)
    v_add_u32 v{EP}, 0x9e3779b9, v{EP}
    s_cbranch_scc1 L_c2
    s_mov_b64 exec, 1
    v_cmp_eq_u32 vcc, v{EP}, v{CT+3}
    v_mov_b32 v{CT+1}, v{EP}
    v_cndmask_b32 v{CT}, v{CT+4}, v{CT+2}, vcc
    global_atomic_cmpswap_x2 v[{CT+4}:{CT+5}], v{cAT}, v[{CT}:{CT+3}], s[{sWS}:{sWS+1}] sc0 sc1
    s_mov_b64 exec, -1
    """)
    a.label("L_c2", flush=False)
    stampc(3)
    a.flush()
    a("s_branch L_loop")
    a.raw("L_codeend:")
    a.raw(f""".section .rodata,"a"
.p2align 6
.amdhsa_kernel {NAME}_kernel
  .amdhsa_next_free_vgpr 256
  .amdhsa_next_free_sgpr 80
  .amdhsa_accum_offset 256
  .amdhsa_group_segment_fixed_size 0
  .amdhsa_kernarg_size 56
  .amdhsa_user_sgpr_count 2
  .amdhsa_user_sgpr_kernarg_segment_ptr 1
  .amdhsa_system_sgpr_workgroup_id_x 1
.end_amdhsa_kernel""")
    return a

if __name__ == "__main__":
    out = sys.argv[1]
    kw = dict(x.split("=") for x in sys.argv[2:])
    for key in ("nt", "outsc"):
        if key in kw: kw[key] = "" if kw[key] == "0" else " " + kw[key].replace("+", " ")
    a = gen(**kw)
    open(out, "w").write(a.text())
    print("wrote", out, "nops inserted:", a.nops)
```

```python
import sys, struct
from asmlib import Asm, interleave

NAME = "standalone__linear_kernel_rfa__decode"
def f2u(x): return struct.unpack("<I", struct.pack("<f", x))[0]

def gen(nt=" nt", wgmap="mix", diag="0", P="3", tlb="1", S="32", X="0", outsc="", sleep="0", pf="1", Y="0", al="12", N="0"):
    diag = int(diag); tlb = int(tlb); P = int(P); S = int(S); X = int(X); pf = int(pf); Y = int(Y); N = int(N)
    assert X == 0
    D = 128 - 4 * S - X
    assert 2 <= P <= 4 and S >= 14 and P + Y <= 7 and Y <= 4 and S + D + X < 59
    dyn = D > 0
    a = Asm()
    VRING = 65536; OMB = 131072; QB = 147456; LND = 147712; PRG = LND + 256; RED = 151552
    LDS = RED + 4096
    EPOCH = 0x80000
    SK, SV, SO, SQ = 4, 8, 12, 16
    sOUT, sDBG, sWS = 20, 22, 24
    sW, sHEAD, sPART, sT, sT2, sX, sBUD = 26, 27, 28, 29, 30, 31, 32
    sK, sKO, sBASE, sMK, sMV, sNB, sVO = 33, 34, 35, 36, 37, 38, 39
    sF = 40
    sPOP = 48
    sC0 = 49; sE = 50
    VK = [1, 2, 3, 4]; VV = [5, 6, 17, 18]; vOF = 19; vLN = 8; vPA = 9; vT = 10; vP = 11; vTA = 12; vONE = 13; vTK = 14; vEL = 15; v64 = 16
    sC, sKK, sTHR, sMASK, sSCALE, sL2E, sIT, sCN = 33, 34, 35, 36, 37, 38, 39, 40
    sMS = 42
    RK = [8, 9, 10, 11]; RV = list(range(12, 20))
    NH = 20; LANE = 21; cLN = 1; cPR = 2; cRED = 3; cW = 4; EP = 5; cWS = 6; cOUT = 22; cAT = 161
    ONES = 24; C = 28; PQ = 32; WPK = 40; WD = 44; SQD = 52; SQA = 60
    KR = 64; PR = 96; PH = 128; T = 144; ACC = 152; BD = 156; DUM = 160; DG = 164; XR = 168
    CT = 180
    OM = 192
    GA = 186
    sRAW = 72
    def stampc(i):
        if diag:
            a(f"s_memrealtime s[{sRAW}:{sRAW+1}]")
            a("s_waitcnt lgkmcnt(0)")
            a(f"v_writelane_b32 v{DG}, s{sRAW}, {i}")
    def stampm():
        if diag:
            a(f"s_memrealtime s[{sRAW}:{sRAW+1}]")
            a("s_waitcnt lgkmcnt(0)")
            a(f"v_writelane_b32 v{DG}, s{sRAW}, m0")
            a("s_add_u32 m0, m0, 1")
    npoll = [0]
    def poll():
        l = "L_poll%d" % npoll[0]; npoll[0] += 1
        a.label(l, flush=False)
        a(f"""
        ds_read_b32 v{cW}, v{cLN}
        s_sub_u32 s{sBUD}, s{sBUD}, 1
        s_cbranch_scc1 L_end
        s_waitcnt lgkmcnt(0)
        v_readfirstlane_b32 s{sX}, v{cW}
        s_cmp_ge_u32 s{sX}, s{sTHR}
        """)
        if int(sleep):
            a(f"s_cbranch_scc1 {l}x")
            a(f"s_sleep {sleep}")
            a(f"s_branch {l}")
            a.label(l + "x", flush=False)
        else:
            a(f"s_cbranch_scc0 {l}")

    hdr = open("cdna_kernels/%s.s.ref" % NAME).read().split("; Override launch")[0]
    a.raw(hdr.rstrip())
    a.raw("; @launch grid=(256,1,1) block=(320,1,1) lds=%d" % LDS)
    a.raw('.amdgcn_target "amdgcn-amd-amdhsa--gfx950"\n.text\n.globl %s_kernel\n.p2align %s\n.p2align 8\n.type %s_kernel,@function' % (NAME, al, NAME))
    a.label(NAME + "_kernel")
    if diag: a("s_memrealtime s[74:75]")
    a(f"""
    s_load_dwordx2 s[{SK}:{SK+1}], s[0:1], 8
    s_load_dwordx2 s[{SV}:{SV+1}], s[0:1], 16
    s_load_dwordx2 s[{SO}:{SO+1}], s[0:1], 24
    s_load_dwordx2 s[{SQ}:{SQ+1}], s[0:1], 0
    s_load_dwordx4 s[{sOUT}:{sOUT+3}], s[0:1], 32
    s_load_dwordx2 s[{sWS}:{sWS+1}], s[0:1], 48
    """)
    if pf:
        a("s_getpc_b64 s[60:61]")
        a.label("L_pc", flush=False)
        a(f"""
        v_subrev_u32 v7, 64, v0
        v_lshlrev_b32 v7, 7, v7
        v_cmp_gt_u32 vcc, L_codeend-L_pc-3, v7
        v_mov_b32 v{DUM+3}, s61
        s_cbranch_vccz L_nopf
        s_mov_b64 exec, vcc
        v_add_co_u32 v{DUM+2}, vcc, s60, v7
        v_addc_co_u32 v{DUM+3}, vcc, 0, v{DUM+3}, vcc
        global_load_dword v{DUM}, v[{DUM+2}:{DUM+3}], off
        s_mov_b64 exec, -1
        """)
        a.label("L_nopf", flush=False)
    a(f"""
    v_readfirstlane_b32 s{sW}, v0
    s_cmp_ge_u32 s2, 256
    s_cbranch_scc1 L_end
    """)
    if wgmap == "xcd":
        a(f"""
        s_and_b32 s{sHEAD}, s2, 7
        s_lshr_b32 s{sT}, s2, 5
        s_lshl_b32 s{sT}, s{sT}, 3
        s_or_b32 s{sHEAD}, s{sHEAD}, s{sT}
        s_bfe_u32 s{sPART}, s2, 0x20003
        """)
    elif wgmap == "lin":
        a(f"""
        s_lshr_b32 s{sHEAD}, s2, 2
        s_and_b32 s{sPART}, s2, 3
        """)
    elif wgmap == "mix":
        a(f"""
        s_bfe_u32 s{sPART}, s2, 0x20001
        s_xor_b32 s{sT}, s2, s{sPART}
        s_and_b32 s{sT}, s{sT}, 1
        s_lshr_b32 s{sHEAD}, s2, 3
        s_lshl1_add_u32 s{sHEAD}, s{sHEAD}, s{sT}
        """)
    a(f"""
    s_mov_b32 s{sBUD}, 0x100000
    s_cmp_lg_u32 s{sW}, 0
    s_cbranch_scc1 L_cons
    """)
    STEP = 32768
    a(f"""
    s_setprio 3
    v_lshrrev_b32 v22, 4, v0
    v_and_b32 v23, 15, v0
    v_xor_b32 v7, v22, v23
    v_lshlrev_b32 v7, 4, v7
    v_lshl_add_u32 v{VK[0]}, v22, 8, v7
    v_xor_b32 v{VK[1]}, 0xc40, v{VK[0]}
    v_xor_b32 v{VK[2]}, 0x1880, v{VK[0]}
    v_xor_b32 v{VK[3]}, 0x24c0, v{VK[0]}
    s_brev_b32 s{SK+2}, 32
    s_mov_b32 s{SK+3}, 0x20000
    s_lshl_b32 s{sKO}, s{sHEAD}, 20
    s_lshl_b32 s{sT}, s{sPART}, 10
    s_add_u32 s{sKO}, s{sKO}, s{sT}
    s_mov_b32 s{sK}, 0
    s_mov_b32 s{sMK}, 0
    s_mov_b32 s{sNB}, {63 if dyn else 32}
    """)
    if diag:
        a("s_waitcnt lgkmcnt(0)")
        a(f"v_mov_b32 v{DG}, 0")
        a(f"v_writelane_b32 v{DG}, s74, 0")
        stampc(1)
    a("s_waitcnt lgkmcnt(0)")
    def push(val_code):
        a(f"s_mov_b32 s{sPOP}, s{sF+P-1}")
        for i in range(P - 1, 0, -1): a(f"s_mov_b32 s{sF+i}, s{sF+i-1}")
        for x in val_code: a(x)
    def publish(src):
        a(f"s_or_b32 s{sT}, s{src}, s{sNB}")
        a(f"v_mov_b32 v{vT}, s{sT}")
    a.label("L_k")
    a(f"""
    s_mov_b32 m0, s{sMK}
    s_add_u32 s{sT}, s{sKO}, 16384
    """)
    for i in range(4): a(f"buffer_load_dwordx4 v{VK[i]}, s[{SK}:{SK+3}], s{sKO} offen offset:{1024*i}{nt} lds")
    a(f"s_add_u32 m0, s{sMK}, 4096")
    a(f"s_cmp_eq_u32 s{sK}, 0")
    for i in range(4): a(f"buffer_load_dwordx4 v{VK[i]}, s[{SK}:{SK+3}], s{sT} offen offset:{1024*i}{nt} lds")
    a("s_cbranch_scc1 L_omega")
    a.label("L_omret")
    a(f"""
    s_add_u32 s{sMK}, s{sMK}, 8192
    s_and_b32 s{sMK}, s{sMK}, 0xffff
    """)
    push([f"s_lshl_b32 s{sF}, s{sK}, 9", f"s_or_b32 s{sF}, s{sF}, 256"])
    a(f"s_cmp_eq_u32 s{sPOP}, 0")
    a("s_cbranch_scc1 L_v")
    publish(sPOP)
    a(f"s_waitcnt vmcnt({8*P})")
    a(f"ds_write_b32 v{vLN}, v{vT}")
    if N: a(f"s_waitcnt vmcnt({N})")
    a.label("L_v", flush=False)
    a(f"""
    s_sub_u32 s{sT2}, s{sK}, 7
    s_cbranch_scc1 L_early
    """)
    a.label("L_chk", flush=False)
    a(f"""
    ds_read_b32 v{vP}, v{vPA}
    s_sub_u32 s{sBUD}, s{sBUD}, 1
    s_cbranch_scc1 L_end
    s_and_b32 s{sT}, s{sT2}, 3
    s_waitcnt lgkmcnt(0)
    v_readlane_b32 s{sX}, v{vP}, s{sT}
    s_lshr_b32 s{sT}, s{sT2}, 2
    s_cmp_gt_u32 s{sX}, s{sT}
    s_cbranch_scc0 L_chk
    s_cmp_lt_u32 s{sT2}, 4
    s_cbranch_scc1 L_next
    """)
    a.label("L_vi", flush=False)
    a(f"""
    v_readlane_b32 s{sVO}, v{vOF}, s{sT2}
    s_sub_u32 s{sE}, s{sNB}, s{sT2}
    s_cmp_lg_u32 s{sE}, 4
    s_cbranch_scc1 L_noel
    s_mov_b64 exec, 1
    global_atomic_add v{vEL}, v{vTA}, v{v64}, s[{sWS}:{sWS+1}] sc0 sc1
    s_mov_b64 exec, -1
    """)
    a.label("L_noel", flush=False)
    a(f"""
    s_mov_b32 m0, s{sMV}
    s_add_u32 s{sT}, s{sVO}, 16384
    """)
    for i in range(4): a(f"buffer_load_dwordx4 v{VV[i]}, s[{SV}:{SV+3}], s{sVO} offen offset:{1024*i}{nt} lds")
    a(f"s_add_u32 m0, s{sMV}, 4096")
    a(f"s_add_u32 s{sMV}, s{sMV}, 8192")
    for i in range(4): a(f"buffer_load_dwordx4 v{VV[i]}, s[{SV}:{SV+3}], s{sT} offen offset:{1024*i}{nt} lds")
    a(f"""
    s_and_b32 s{sMV}, s{sMV}, 0xffff
    s_or_b32 s{sMV}, s{sMV}, {VRING}
    """)
    if Y:
        a(f"s_cmp_le_u32 s{sE}, {Y}")
        a("s_cbranch_scc1 L_next")
    push([f"s_lshl_b32 s{sF}, s{sK}, 9", f"s_add_u32 s{sF}, s{sF}, 512"])
    publish(sPOP)
    a(f"s_waitcnt vmcnt({8*P})")
    a(f"v_and_or_b32 v{vT}, v{vEL}, s{sC0}, v{vT}")
    a(f"ds_write_b32 v{vLN}, v{vT}")
    if N: a(f"s_waitcnt vmcnt({N})")
    if diag:
        a(f"s_cmp_eq_u32 s{sK}, 3")
        a("s_cbranch_scc0 L_d1")
        stampc(2)
        a.label("L_d1", flush=False)
        a(f"s_cmp_eq_u32 s{sK}, 19")
        a("s_cbranch_scc0 L_d2")
        stampc(3)
        a.label("L_d2", flush=False)
    a.label("L_next", flush=False)
    a(f"""
    s_add_u32 s{sK}, s{sK}, 1
    s_add_u32 s{sKO}, s{sKO}, {STEP}
    s_cmp_lt_u32 s{sK}, {S-2 if dyn else S}
    s_cbranch_scc1 L_k
    """)
    if dyn:
        a(f"""
        s_cmp_lg_u32 s{sNB}, 63
        s_cbranch_scc1 L_known
        s_cmp_lt_u32 s{sK}, {S}
        s_cbranch_scc1 L_tk
        v_readlane_b32 s{sX}, v{vTK}, s{sK}
        s_lshl_b64 exec, 1, s{sK}
        s_lshl_b32 s{sKO}, s{sX}, 5
        s_and_b32 s{sKO}, s{sKO}, 0xffff8000
        s_lshl_b32 s{sT}, s{sX}, 2
        s_and_b32 s{sT}, s{sT}, 0xc00
        s_or_b32 s{sKO}, s{sKO}, s{sT}
        s_add_u32 s{sKO}, s{sKO}, s{sBASE}
        v_mov_b32 v{vOF}, s{sKO}
        s_cmp_lt_u32 s{sX}, {(D-1)<<8}
        s_cbranch_scc0 L_stop
        """)
        a.label("L_tk", flush=False)
        a(f"""
        s_lshl_b64 exec, 4, s{sK}
        global_atomic_add v{vTK}, v{vTA}, v{vONE}, s[{sWS}:{sWS+1}] sc0 sc1
        s_mov_b64 exec, -1
        s_branch L_k
        """)
        a.label("L_stop", flush=False)
        a(f"""
        s_mov_b64 exec, -1
        s_mov_b32 s{sNB}, s{sK}
        s_cmp_ge_u32 s{sX}, {D<<8}
        s_cbranch_scc1 L_v
        s_add_u32 s{sNB}, s{sK}, {1+X}
        s_branch L_k
        """)
        a.label("L_known", flush=False)
        if X:
            a(f"""
            s_cmp_lt_u32 s{sK}, s{sNB}
            s_cbranch_scc0 L_drain
            s_sub_u32 s{sKO}, s{sKO}, {STEP-8192}
            s_sub_u32 s{sT}, s{sKO}, s{sBASE}
            s_lshr_b32 s{sT}, s{sT}, 5
            s_mov_b32 m0, s{sK}
            v_writelane_b32 v{vTK}, s{sT}, m0
            s_branch L_k
            """)
            a.label("L_drain", flush=False)
    a(f"""
    s_add_u32 s{sT}, s{sNB}, 7
    s_cmp_lt_u32 s{sK}, s{sT}
    s_cbranch_scc1 L_v
    """)
    stampc(4)
    a(f"""
    s_lshl_b32 s{sT}, s{sK}, 9
    s_or_b32 s{sT}, s{sT}, s{sNB}
    v_mov_b32 v{vP}, s{sT}
    """)
    for p in range(P + Y - 1, -1, -1):
        if p: a(f"v_subrev_u32 v{vT}, {512*p}, v{vP}")
        a(f"s_waitcnt vmcnt({8*p})")
        a(f"v_and_or_b32 v{vT}, v{vEL}, s{sC0}, v{vT if p else vP}")
        a(f"ds_write_b32 v{vLN}, v{vT}")
    if diag:
        a(f"v_readfirstlane_b32 s{sNB}, v{vT}")
    if diag:
        stampc(5)
        a(f"s_sub_u32 s{sT}, 0x100000, s{sBUD}")
        a(f"v_writelane_b32 v{DG}, s{sT}, 6")
        a(f"v_writelane_b32 v{DG}, s{sNB}, 8")
        a(f"v_mov_b32 v{LANE}, v0")
        a.flush()
        a("s_branch L_fin")
    else:
        a("s_waitcnt lgkmcnt(0)")
        a("s_endpgm")
    a.label("L_early", flush=False)
    a(f"""
    s_sub_u32 s{sT2}, s{sK}, 3
    s_cbranch_scc0 L_vi
    s_branch L_next
    """)
    a.label("L_omega")
    a(f"""
    s_mov_b32 s{SO+2}, 16384
    s_mov_b32 s{SO+3}, 0x20000
    s_mov_b32 m0, {OMB}
    s_mov_b32 s{sT}, 0
    """)
    a.label("L_om1", flush=False)
    a(f"s_cmp_eq_u32 s{sT}, 3072")
    for i in range(4): a(f"buffer_load_dwordx4 v{VK[i]}, s[{SO}:{SO+3}], s{sT} offen offset:{1024*i} lds")
    a(f"""
    s_cbranch_scc1 L_om2
    s_add_u32 m0, m0, 4096
    s_add_u32 s{sT}, s{sT}, 1024
    s_branch L_om1
    """)
    a.label("L_om2")
    a(f"""
    s_mov_b32 m0, {QB}
    s_mov_b32 s{SQ+2}, 16384
    s_mov_b32 s{SQ+3}, 0x20000
    s_lshl_b32 s{sT}, s{sHEAD}, 8
    v_lshlrev_b32 v{vLN}, 2, v0
    buffer_load_dword v{vLN}, s[{SQ}:{SQ+3}], s{sT} offen lds
    s_mov_b32 s{SV+2}, s{SK+2}
    s_mov_b32 s{SV+3}, s{SK+3}
    v_lshlrev_b32 v7, 1, v22
    v_xor_b32 v7, v7, v23
    v_lshlrev_b32 v7, 4, v7
    v_lshl_add_u32 v{VV[0]}, v22, 8, v7
    v_xor_b32 v{VV[1]}, 0xc80, v{VV[0]}
    v_xor_b32 v{VV[2]}, 0x1800, v{VV[0]}
    v_xor_b32 v{VV[3]}, 0x2480, v{VV[0]}
    v_and_b32 v7, 3, v0
    v_lshl_add_u32 v{vPA}, v7, 8, v{vLN}
    v_add_u32 v{vPA}, {PRG}, v{vPA}
    v_add_u32 v{vLN}, {LND}, v{vLN}
    s_add_u32 s{sT}, s{sT}, {EPOCH}
    v_mov_b32 v{vTA}, s{sT}
    v_mov_b32 v{vONE}, 0x100
    v_mov_b32 v{v64}, 64
    v_mov_b32 v{vEL}, 0
    s_mov_b32 s{sC0}, 0xc0
    v_lshl_add_u32 v{vOF}, v0, 15, s{sKO}
    s_lshl_b32 s{sBASE}, s{sHEAD}, 20
    s_add_u32 s{sBASE}, s{sBASE}, {4*S*8192}
    s_mov_b32 s{sMV}, {VRING}
    """)
    for i in range(P): a(f"s_mov_b32 s{sF+i}, 0")
    a("s_barrier")
    a.flush()
    a("s_branch L_omret")
    a.label("L_cons")
    a(f"""
    s_lshr_b32 s{sC}, s{sW}, 6
    s_sub_u32 s{sC}, s{sC}, 1
    v_and_b32 v{LANE}, 63, v0
    v_lshlrev_b32 v{cLN}, 2, v{LANE}
    v_add_u32 v{cLN}, {LND}, v{cLN}
    s_lshl_b32 s{sT}, s{sC}, 8
    v_add_u32 v{cPR}, s{sT}, v{cLN}
    v_mov_b32 v{ACC}, 0
    ds_write_b32 v{cLN}, v{ACC}
    ds_write_b32 v{cPR}, v{ACC} offset:256
    v_lshrrev_b32 v22, 4, v{LANE}          ; q = lane>>4
    v_and_b32 v23, 15, v{LANE}             ; n = lane&15
    s_lshl_b32 s{sT}, s{sC}, 13
    v_xor_b32 v7, v22, v23
    v_lshlrev_b32 v7, 4, v7
    v_lshl_add_u32 v7, v23, 8, v7              ; n*256 + ((q^n)*16)
    v_add_u32 v{RK[0]}, s{sT}, v7
    v_xor_b32 v{RK[1]}, 64, v{RK[0]}
    v_xor_b32 v{RK[2]}, 0x80, v{RK[0]}
    v_xor_b32 v{RK[3]}, 0xc0, v{RK[0]}
    v_add_u32 v{T+4}, {OMB}, v7
    v_xor_b32 v{T+5}, 64, v{T+4}
    v_xor_b32 v{T+6}, 0x80, v{T+4}
    v_xor_b32 v{T+7}, 0xc0, v{T+4}
    s_or_b32 s{sT}, s{sT}, {VRING}
    v_lshrrev_b32 v7, 2, v{LANE}
    v_and_b32 v{T}, 7, v7
    v_lshlrev_b32 v{T}, 5, v{T}
    v_lshl_add_u32 v{T}, v7, 8, v{T}
    v_and_b32 v7, 3, v{LANE}
    v_lshl_add_u32 v{T}, v7, 3, v{T}
    v_add_u32 v{RV[0]}, s{sT}, v{T}
    s_waitcnt lgkmcnt(0)
    s_barrier
    """)
    if diag:
        a(f"v_mov_b32 v{DG}, 0")
        a(f"v_writelane_b32 v{DG}, s74, 0")
        stampc(1)
        a("s_mov_b32 m0, 8")
    a(f"""
    s_lshl_b32 s{sT}, s{sHEAD}, 8
    s_add_u32 s{sT2}, s{sT}, {EPOCH}
    v_mov_b32 v{cAT}, s{sT2}
    v_mov_b32 v{CT+4}, 0
    v_mov_b32 v{CT+5}, 0
    global_load_dword v{EP}, v{cAT}, s[{sWS}:{sWS+1}] offset:128 sc1
    s_cmp_lg_u32 s{sC}, 0
    s_cbranch_scc1 L_c1
    s_mov_b64 exec, 1
    global_atomic_add_x2 v[{CT+2}:{CT+3}], v{cAT}, v[{CT+4}:{CT+5}], s[{sWS}:{sWS+1}] sc0 sc1
    s_mov_b64 exec, -1
    """)
    a.label("L_c1", flush=False)
    a(f"""
    v_lshlrev_b32 v{T+3}, 4, v22
    v_lshl_add_u32 v{cWS}, v22, 3, v23          ; 8q + n
    v_lshlrev_b32 v{cWS}, 4, v{cWS}
    v_cmp_gt_u32 vcc, 8, v23
    v_mov_b32 v7, 0x400
    v_lshl_add_u32 v{cOUT}, v22, 3, s{sT}
    v_lshl_add_u32 v{cOUT}, v23, 5, v{cOUT}
    v_cndmask_b32 v{cWS}, v7, v{cWS}, vcc
    """)
    if tlb:
        a(f"global_load_dword v{DUM}, v{CT+4}, s[{sOUT}:{sOUT+1}]")
    for t in range(1, 8):
        a(f"v_xor_b32 v{RV[t]}, {hex(32*t)}, v{RV[0]}")
    a(f"""
    s_lshl_b32 s{sT}, s{sC}, 10
    s_add_u32 s{sT}, s{sT}, {RED}
    v_lshl_add_u32 v{cRED}, v{LANE}, 4, s{sT}
    v_add_u32 v{T+3}, s{sT}, v{T+3}
    v_lshl_add_u32 v{T+2}, v{LANE}, 2, s{sT}
    s_lshl_b32 s{sT}, s{sHEAD}, 13
    s_lshl_b32 s{sT2}, s{sPART}, 11
    s_add_u32 s{sT}, s{sT}, s{sT2}
    v_add_u32 v{cWS}, s{sT}, v{cWS}
    v_xor_b32 v{GA}, 0x800, v{cWS}
    v_xor_b32 v{GA+1}, 0x1000, v{cWS}
    v_xor_b32 v{GA+2}, 0x1800, v{cWS}
    s_mov_b32 s{sMASK}, 0xffff0000
    s_mov_b32 s{sSCALE}, {hex(f2u(128.0 ** -0.25))}
    s_mov_b32 s{sL2E}, 0x3fb8aa3b
    v_mov_b32 v{NH}, -0.5
    s_mov_b32 s{sMS}, 0x00010001
    s_mov_b32 s{sMS+1}, 0x00010001
    s_mov_b32 s{sMS+16}, 0xff00ff00
    s_mov_b32 s{sMS+17}, 0xff00ff00
    """)
    for t in range(1, 8): a(f"s_lshl_b64 s[{sMS+2*t}:{sMS+2*t+1}], s[{sMS}:{sMS+1}], {t}")
    for i in range(4): a(f"v_mov_b32 v{ONES+i}, 0x3f803f80")
    for i in range(1, 4): a(f"v_mov_b32 v{ACC+i}, 0")
    for i in range(4): a(f"v_mov_b32 v{WPK+i}, 0")
    a(f"""
    s_mov_b32 s{sIT}, -1
    s_mov_b32 s{sKK}, s{sC}
    s_mov_b32 s{sTHR}, 256
    """)
    poll()
    stampc(2)
    a(f"v_subrev_u32 v{T}, {LND-QB}, v{cLN}")
    a(f"ds_read_b32 v{KR}, v{T}")
    for j in range(4):
        for t in range(4):
            r = OM + 16 * t + 4 * j
            a(f"ds_read_b128 v[{r}:{r+3}], v{T+4+j} offset:{4096*t}")
            if j == 0 and t == 3:
                a(f"""
                s_waitcnt lgkmcnt(4)
                v_lshlrev_b32 v{T}, 16, v{KR}
                v_and_b32 v{T+1}, s{sMASK}, v{KR}
                v_mul_f32 v{T}, s{sSCALE}, v{T}
                v_mul_f32 v{T+1}, s{sSCALE}, v{T+1}
                v_cvt_pk_bf16_f32 v{T}, v{T}, v{T+1}
                ds_write_b32 v{T+2}, v{T}
                """)
                for jj in range(4): a(f"ds_read_b128 v[{KR+4*jj}:{KR+4*jj+3}], v{T+3} offset:{64*jj}")
    for j in range(4):
        a(f"s_waitcnt lgkmcnt({12-4*j})")
        k = KR + 4 * j
        a(f"v_mfma_f32_16x16x32_bf16 v[{SQD}:{SQD+3}], v[{k}:{k+3}], v[{k}:{k+3}], " + (f"v[{SQD}:{SQD+3}]" if j else "0"))
        for t in range(4):
            d = PR + 4 * t; om = OM + 16 * t + 4 * j
            a(f"v_mfma_f32_16x16x32_bf16 v[{d}:{d+3}], v[{om}:{om+3}], v[{k}:{k+3}], " + (f"v[{d}:{d+3}]" if j else "0"))
    a(f"v_mul_f32 v{SQD}, -0.5, v{SQD}")
    a.flush()
    a("s_branch L_phi0")
    a.label("L_loop")
    a(f"s_lshl_b32 s{sTHR}, s{sKK}, 9")
    a(f"s_or_b32 s{sTHR}, s{sTHR}, 256")
    poll()
    stampm()
    for tl in range(2):
        for j in range(4): a(f"ds_read_b128 v[{KR+16*tl+4*j}:{KR+16*tl+4*j+3}], v{RK[j]} offset:{4096*tl}")
    a(f"""
    s_add_u32 s{sIT}, s{sIT}, 1
    v_mov_b32 v{cW}, s{sIT}
    """)
    for j in range(4): a(f"v_xor_b32 v{RK[j]}, 0x8000, v{RK[j]}")
    a("s_waitcnt lgkmcnt(0)")
    a(f"ds_write_b32 v{cPR}, v{cW} offset:256")
    def scale(tl, j):
        o = []
        for r in range(4):
            x = KR + 16 * tl + 4 * j + r
            t0 = T + 2 * (r & 1); t1 = t0 + 1
            o += [f"v_lshlrev_b32 v{t0}, 16, v{x}",
                  f"v_and_b32 v{t1}, s{sMASK}, v{x}",
                  f"v_mul_f32 v{t0}, s{sSCALE}, v{t0}",
                  f"v_mul_f32 v{t1}, s{sSCALE}, v{t1}",
                  f"v_cvt_pk_bf16_f32 v{x}, v{t0}, v{t1}"]
        for r in range(4):
            x = KR + 16 * tl + 4 * j + r
            acc = SQA + 2 * tl + (r & 1)
            if j == 0 and r < 2: o.append(f"v_dot2_f32_bf16 v{acc}, v{x}, v{x}, 0")
            else: o.append(f"v_dot2_f32_bf16 v{acc}, v{x}, v{x}, v{acc}")
        return o
    def projm(tl, j):
        o = []
        for t in range(4):
            d = PR + 16 * tl + 4 * t
            om = OM + 16 * t + 4 * j
            k = KR + 16 * tl + 4 * j
            c = "0" if j == 0 else f"v[{d}:{d+3}]"
            o.append(f"v_mfma_f32_16x16x32_bf16 v[{d}:{d+3}], v[{om}:{om+3}], v[{k}:{k+3}], {c}")
        return o
    def sqsum(tl):
        acc = SQA + 2 * tl
        return [f"v_add_f32 v{acc}, v{acc}, v{acc+1}"]
    def sqm(tl):
        acc = SQA + 2 * tl; d = SQD + 4 * tl
        return [f"v_mfma_f32_16x16x4_f32 v[{d}:{d+3}], v{NH}, v{acc}, 0"]
    def phi(tl):
        d = SQD + 4 * tl
        o = [f"v_cvt_pk_bf16_f32 v{d}, 0, v{d}"]
        for t in range(4):
            p = [PR + 16 * tl + 4 * t + r for r in range(4)]
            for x in p: o.append(f"v_cvt_pk_bf16_f32 v{x}, 0, v{x}")
            for x in p: o.append(f"v_add_f32 v{x}, v{d}, v{x}")
            for x in p: o.append(f"v_cvt_pk_bf16_f32 v{x}, 0, v{x}")
            for x in p: o.append(f"v_mul_f32 v{x}, s{sL2E}, v{x}")
            for x in p: o.append(f"v_exp_f32 v{x}, v{x}")
            h = PH + 8 * tl + 2 * t
            o.append(f"v_cvt_pk_bf16_f32 v{h}, v{p[0]}, v{p[1]}")
            o.append(f"v_cvt_pk_bf16_f32 v{h+1}, v{p[2]}, v{p[3]}")
        return o
    def wm(tl):
        d = WD + 4 * tl; h = PH + 8 * tl
        return [f"v_mfma_f32_16x16x32_bf16 v[{d}:{d+3}], v[{h}:{h+3}], v[{PQ}:{PQ+3}], v[{C}:{C+3}]",
                f"v_mfma_f32_16x16x32_bf16 v[{d}:{d+3}], v[{h+4}:{h+7}], v[{PQ+4}:{PQ+7}], v[{d}:{d+3}]"]
    def bm(t): return KR + 4 * t if t < 8 else BD
    def masks(i): return [f"v_cndmask_b32_e64 v{bm(t)+i}, 0, v{WPK+i}, s[{sMS+2*t}:{sMS+2*t+1}]" for t in (8, 0, 1, 2, 3, 4, 5, 6, 7)]
    steps = [(tl, j) for tl in range(2) for j in range(4)]
    body = scale(0, 0)
    for i in range(1, 8):
        tl, j = steps[i]
        side = projm(*steps[i - 1])
        main = scale(tl, j)
        if steps[i - 1] == (0, 3):
            main = main[:4] + sqsum(0) + main[4:]
            side = side + sqm(0)
        body += interleave(main, side, 5, lead=2)
    ph0 = phi(0)
    ph0 = ph0[:4] + sqsum(1) + ph0[4:]
    for x in body: a(x)
    a.label("L_phi0", flush=False)
    for x in interleave(ph0, projm(1, 3) + sqm(1), 4, lead=1): a(x)
    a(f"s_cmp_eq_u32 s{sIT}, -1")
    a.flush()
    a("s_cbranch_scc1 L_qpost")
    body = interleave(phi(1), wm(0), 6, lead=3)
    for x in body: a(x)
    for x in wm(1): a(x)
    G = PH
    a.label("L_mask", flush=False)
    a(f"s_lshl_b32 s{sTHR}, s{sKK}, 9")
    a(f"s_add_u32 s{sTHR}, s{sTHR}, {8*256}")
    a(f"s_add_u32 s{sKK}, s{sKK}, 4")
    a(f"s_cmp_lt_u32 s{sKK}, 8")
    for t in (8, 0, 1, 2, 3, 4, 5, 6, 7):
        for i in range(4): a(f"v_cndmask_b32_e64 v{bm(t)+i}, 0, v{WPK+i}, s[{sMS+2*t}:{sMS+2*t+1}]")
        if t == 0: a(f"v_mfma_f32_16x16x32_bf16 v[{ACC}:{ACC+3}], v[{ONES}:{ONES+3}], v[{BD}:{BD+3}], v[{ACC}:{ACC+3}]")
    for i in range(4): a(f"v_cvt_pk_bf16_f32 v{WPK+i}, v{WD+2*i}, v{WD+2*i+1}")
    a(f"s_add_u32 s{sT2}, s{sKK}, {0xc0-4}") if False else None
    a("s_waitcnt vmcnt(0)")
    a("s_cbranch_scc1 L_loop")
    poll()
    stampm()
    for t in range(8):
        r = PR + 4 * t
        a(f"ds_read_b64_tr_b16 v[{r}:{r+1}], v{RV[t]}")
        a(f"ds_read_b64_tr_b16 v[{r+2}:{r+3}], v{RV[t]} offset:4096")
    a(f"""
    s_and_b32 s{sT}, s{sX}, 255
    s_add_u32 s{sT2}, s{sKK}, {0xc0-4}
    s_cmp_eq_u32 s{sT}, s{sT2}
    s_cbranch_scc1 L_spec
    """)
    a.label("L_specret", flush=False)
    a(f"s_and_b32 s{sCN}, s{sX}, 63")
    a(f"s_cmp_lt_u32 s{sKK}, s{sCN}")
    for t in range(8):
        r = PR + 4 * t
        a(f"s_waitcnt lgkmcnt({14-2*t})")
        a(f"v_mfma_f32_16x16x32_bf16 v[{ACC}:{ACC+3}], v[{r}:{r+3}], v[{bm(t)}:{bm(t)+3}], v[{ACC}:{ACC+3}]")
        a(f"v_xor_b32 v{RV[t]}, 0x8000, v{RV[t]}")
    a("s_cbranch_scc1 L_loop")
    a(f"""
    s_sub_u32 s{sT}, s{sCN}, s{sKK}
    s_add_u32 s{sT}, s{sT}, 7
    s_cmp_ge_u32 s{sT}, 4
    s_cbranch_scc1 L_mask
    s_bfe_u32 s{sT2}, s{sX}, 0x20006
    s_cmp_eq_u32 s{sT}, 0
    s_cbranch_scc1 L_last
    s_and_b32 s{sT}, s{sT}, s{sT2}
    s_cmp_eq_u32 s{sT}, 3
    s_cbranch_scc0 L_dep
    """)
    def specloads():
        for p in range(3):
            a(f"global_load_dwordx4 v[{OM+8*p}:{OM+8*p+3}], v{GA+p}, s[{sWS}:{sWS+1}] sc1")
            a(f"global_load_dwordx4 v[{OM+8*p+4}:{OM+8*p+7}], v{GA+p}, s[{sWS}:{sWS+1}] offset:512 sc1")
    a.label("L_gather", flush=False)
    if diag: a(f"s_add_u32 s{sIT}, s{sIT}, 256")
    a("s_waitcnt vmcnt(0)")
    tags = [OM + 8 * p + 2 * i + 1 for p in range(3) for i in range(4)]
    a(f"v_min3_u32 v{T+2}, v{EP}, v{tags[0]}, v{tags[1]}")
    a(f"v_max3_u32 v{T+3}, v{EP}, v{tags[0]}, v{tags[1]}")
    for i in range(2, 12, 2):
        a(f"v_min3_u32 v{T+2}, v{T+2}, v{tags[i]}, v{tags[i+1]}")
        a(f"v_max3_u32 v{T+3}, v{T+3}, v{tags[i]}, v{tags[i+1]}")
    a(f"v_cmp_ne_u32 vcc, v{T+2}, v{T+3}")
    for i in range(4):
        a(f"v_add_f32 v{XR+4+i}, v{ACC+i}, v{OM+2*i}")
        a(f"v_add_f32 v{XR+8+i}, v{OM+8+2*i}, v{OM+16+2*i}")
    a("s_cbranch_vccnz L_again")
    for i in range(4): a(f"v_add_f32 v{ACC+i}, v{XR+4+i}, v{XR+8+i}")
    stampc(62)
    a.label("L_dep", flush=False)
    a(f"""
    ds_write_b128 v{cRED}, v[{ACC}:{ACC+3}]
    s_waitcnt lgkmcnt(0)
    s_barrier
    """)
    a("s_branch L_fin" if diag else "s_endpgm")
    a.label("L_spec", flush=False)
    specloads()
    a("s_branch L_specret")
    a.label("L_again", flush=False)
    specloads()
    a(f"s_sub_u32 s{sBUD}, s{sBUD}, 16")
    a("s_cbranch_scc0 L_gather")
    a("s_endpgm")
    a.label("L_last", flush=False)
    a(f"""
    v_xor_b32 v{T+2}, 0x400, v{cRED}
    v_xor_b32 v{T+3}, 0x800, v{cRED}
    v_xor_b32 v{T+4}, 0xc00, v{cRED}
    """)
    stampc(61)
    a(f"""
    s_barrier
    ds_read_b128 v[{XR}:{XR+3}], v{T+2}
    ds_read_b128 v[{XR+4}:{XR+7}], v{T+3}
    ds_read_b128 v[{XR+8}:{XR+11}], v{T+4}
    """)
    for i in range(4): a(f"v_mov_b32 v{G+2*i+1}, v{EP}")
    stampc(4)
    a(f"""
    v_mov_b32 v{T+4}, {hex(f2u(1e-6))}
    s_not_b64 s[{sMS}:{sMS+1}], s[{sMS+16}:{sMS+17}]
    s_cmp_eq_u32 s{sT2}, 3
    s_waitcnt lgkmcnt(0)
    """)
    for i in range(4):
        a(f"v_add_f32 v{ACC+i}, v{ACC+i}, v{XR+i}")
        a(f"v_add_f32 v{XR+4+i}, v{XR+4+i}, v{XR+8+i}")
    for i in range(4): a(f"v_add_f32 v{G+2*i}, v{ACC+i}, v{XR+4+i}")
    a(f"""
    s_cbranch_scc1 L_final
    s_or_b64 exec, s[{sMS}:{sMS+1}], 0x100
    global_store_dwordx4 v{cWS}, v[{G}:{G+3}], s[{sWS}:{sWS+1}] sc1
    global_store_dwordx4 v{cWS}, v[{G+4}:{G+7}], s[{sWS}:{sWS+1}] offset:512 sc1
    """)
    if diag: a("s_mov_b64 exec, -1")
    a("s_branch L_fin" if diag else "s_endpgm")
    a.label("L_final", flush=False)
    a(f"""
    v_add_f32_dpp v{T+4}, v{G}, v{T+4} row_ror:8 row_mask:0xf bank_mask:0xf
    v_rcp_f32 v{T+4}, v{T+4}
    s_mov_b64 exec, s[{sMS}:{sMS+1}]
    """)
    for i in range(4): a(f"v_mul_f32 v{XR+i}, v{G+2*i}, v{T+4}")
    a(f"""
    v_cvt_pk_bf16_f32 v{XR}, v{XR}, v{XR+1}
    v_cvt_pk_bf16_f32 v{XR+1}, v{XR+2}, v{XR+3}
    global_store_dwordx2 v{cOUT}, v[{XR}:{XR+1}], s[{sOUT}:{sOUT+1}]{outsc}
    s_mov_b64 exec, 1
    global_store_dword v{cAT}, v{EP}, s[{sWS}:{sWS+1}] offset:128{outsc}
    """)
    if diag:
        a("s_mov_b64 exec, -1")
        stampc(5)
        a.label("L_fin")
        stampc(6) if False else None
        a(f"s_memrealtime s[{sRAW}:{sRAW+1}]")
        a(f"s_getreg_b32 s76, hwreg(HW_REG_XCC_ID)")
        a("s_waitcnt lgkmcnt(0)")
        a(f"v_writelane_b32 v{DG}, s{sRAW}, 7")
        a(f"v_writelane_b32 v{DG}, s76, 63")
        a(f"v_writelane_b32 v{DG}, s{sIT}, 60")
        a(f"""
        s_mul_i32 s{sT}, s2, 5
        s_lshr_b32 s{sT2}, s{sW}, 6
        s_add_u32 s{sT}, s{sT}, s{sT2}
        s_lshl_b32 s{sT}, s{sT}, 8
        s_add_u32 s{sT}, s{sT}, 0x100000
        v_lshl_add_u32 v{T}, v{LANE}, 2, s{sT}
        global_store_dword v{T}, v{DG}, s[{sWS}:{sWS+1}]
        """)
    a.label("L_end")
    a("s_endpgm")
    a.label("L_qpost")
    a(f"v_mov_b32 v{T+2}, {hex(f2u(1e-6) - (3 << 23))}")
    a(f"s_mov_b32 s{sT}, {hex(f2u(0.015625))}")
    for i in range(8):
        x = PH + i
        a(f"""
        v_lshlrev_b32 v{T}, 16, v{x}
        v_and_b32 v{T+1}, s{sMASK}, v{x}
        v_fma_f32 v{T}, v{T}, s{sT}, v{T+2}
        v_fma_f32 v{T+1}, v{T+1}, s{sT}, v{T+2}
        v_cvt_pk_bf16_f32 v{PQ+i}, v{T}, v{T+1}
        """)
    a(f"v_mfma_f32_16x16x32_bf16 v[{C}:{C+3}], v[{ONES}:{ONES+3}], v[{PQ}:{PQ+3}], 0")
    a(f"v_mfma_f32_16x16x32_bf16 v[{C}:{C+3}], v[{ONES}:{ONES+3}], v[{PQ+4}:{PQ+7}], v[{C}:{C+3}]")
    for i in range(4): a(f"v_mul_f32 v{C+i}, {hex(f2u(1e-6) + (3 << 23))}, v{C+i}")
    a(f"""
    s_mov_b32 s{sIT}, 0
    s_cmp_lg_u32 s{sC}, 0
    s_waitcnt vmcnt(0)
    v_add_u32 v{EP}, 0x9e3779b9, v{EP}
    s_cbranch_scc1 L_c2
    s_mov_b64 exec, 1
    v_cmp_eq_u32 vcc, v{EP}, v{CT+3}
    v_mov_b32 v{CT+1}, v{EP}
    v_cndmask_b32 v{CT}, v{CT+4}, v{CT+2}, vcc
    global_atomic_cmpswap_x2 v[{CT+4}:{CT+5}], v{cAT}, v[{CT}:{CT+3}], s[{sWS}:{sWS+1}] sc0 sc1
    s_mov_b64 exec, -1
    """)
    a.label("L_c2", flush=False)
    stampc(3)
    a.flush()
    a("s_branch L_loop")
    a.raw("L_codeend:")
    a.raw(f""".section .rodata,"a"
.p2align 6
.amdhsa_kernel {NAME}_kernel
  .amdhsa_next_free_vgpr 256
  .amdhsa_next_free_sgpr 80
  .amdhsa_accum_offset 256
  .amdhsa_group_segment_fixed_size 0
  .amdhsa_kernarg_size 56
  .amdhsa_user_sgpr_count 2
  .amdhsa_user_sgpr_kernarg_segment_ptr 1
  .amdhsa_system_sgpr_workgroup_id_x 1
.end_amdhsa_kernel""")
    return a

if __name__ == "__main__":
    out = sys.argv[1]
    kw = dict(x.split("=") for x in sys.argv[2:])
    for key in ("nt", "outsc"):
        if key in kw: kw[key] = "" if kw[key] == "0" else " " + kw[key].replace("+", " ")
    a = gen(**kw)
    open(out, "w").write(a.text())
    print("wrote", out, "nops inserted:", a.nops)
```

```python
import sys, struct
from asmlib import Asm, interleave

NAME = "standalone__linear_kernel_rfa__decode"
def f2u(x): return struct.unpack("<I", struct.pack("<f", x))[0]

def gen(nt=" nt", wgmap="mix", diag="0", tlb="1", outsc="", pf="1", al="12", N="16", el="4", K0="3", pg="1", cs="0", E="4", oml="0", nog="0", pt="0", omf="", qf="", pff="", atf="", csf="", asf=" sc1", glf=" sc1"):
    E = int(E); oml = int(oml); nog = int(nog)
    diag = int(diag); tlb = int(tlb); pf = int(pf); N = int(N); el = int(el); K0 = int(K0); pg = int(pg); cs = int(cs)
    P = 3
    a = Asm()
    VRING = 65536; OMB = 131072; LND = 147712; PRG = LND + 256; RED = 151552
    LDS = RED + 4096
    EPOCH = 0x80000; STEP = 32768
    SK, SV, SO, SQ = 4, 8, 12, 16
    sOUT, sWS = 20, 24
    sW, sHEAD, sPART, sT, sT2, sX, sBUD = 26, 27, 28, 29, 30, 31, 32
    sK, sKO, sMK, sMV, sVO = 33, 34, 36, 37, 39
    sF = 40; sC0 = 49
    VK = [176, 177, 178, 179]; VV = [5, 6, 17, 18]; vLN = 8; vPA = 9; vT = 10; vP = 11; vTA = 12; vEL = 15; v64 = 16
    sC, sKK, sTHR, sMASK, sSCALE, sL2E, sIT, sEP = 33, 34, 35, 36, 37, 38, 39, 41
    sMS = 42
    sCT = 62
    RK = [8, 9, 10, 11]; RV = list(range(12, 20))
    NH = 20; LANE = 21; cLN = 1; cPR = 2; cRED = 3; cW = 4; EP = 5; cWS = 6; cOUT = 22; cAT = 161
    ONES = 24; C = 28; PQ = 32; WPK = 40; WD = 44; SQD = 52; SQA = 60
    KR = 64; PR = 96; PH = 128; T = 144; ACC = 152; BD = 156; DUM = 160; DG = 164; XR = 168
    CT = 180; GA = 186; OM = 192
    sRAW = 72
    def stampc(i):
        if diag:
            a(f"s_memrealtime s[{sRAW}:{sRAW+1}]")
            a("s_waitcnt lgkmcnt(0)")
            a(f"v_writelane_b32 v{DG}, s{sRAW}, {i}")
    def stampm():
        if diag:
            a(f"s_memrealtime s[{sRAW}:{sRAW+1}]")
            a("s_waitcnt lgkmcnt(0)")
            a(f"v_writelane_b32 v{DG}, s{sRAW}, m0")
            a("s_add_u32 m0, m0, 1")
    def nb(i):
        if diag == 3: a(f"s_memrealtime s[{80+2*i}:{81+2*i}]")
    npoll = [0]
    def poll():
        l = "L_poll%d" % npoll[0]; npoll[0] += 1
        a.label(l, flush=False)
        a(f"""
        ds_read_b32 v{cW}, v{cLN}
        s_sub_u32 s{sBUD}, s{sBUD}, 1
        s_cbranch_scc1 L_end
        s_waitcnt lgkmcnt(0)
        v_readfirstlane_b32 s{sX}, v{cW}
        s_cmp_ge_u32 s{sX}, s{sTHR}
        s_cbranch_scc0 {l}
        """)

    hdr = open("cdna_kernels/%s.s.ref" % NAME).read().split("; Override launch")[0]
    a.raw(hdr.rstrip())
    a.raw("; @launch grid=(256,1,1) block=(320,1,1) lds=%d" % LDS)
    a.raw('.amdgcn_target "amdgcn-amd-amdhsa--gfx950"\n.text\n.globl %s_kernel\n.p2align %s\n.p2align 8\n.type %s_kernel,@function' % (NAME, al, NAME))
    a.label(NAME + "_kernel")
    if diag: a("s_memrealtime s[74:75]")
    a(f"""
    s_load_dwordx2 s[{SK}:{SK+1}], s[0:1], 8
    s_load_dwordx2 s[{SO}:{SO+1}], s[0:1], 24
    s_load_dwordx2 s[{SQ}:{SQ+1}], s[0:1], 0
    """)
    if pf:
        a("s_getpc_b64 s[60:61]")
        a.label("L_pc", flush=False)
        a(f"""
        v_subrev_u32 v7, 64, v0
        v_lshlrev_b32 v7, 7, v7
        v_cmp_gt_u32 vcc, L_codeend-L_pc-3, v7
        v_mov_b32 v{DUM+3}, s61
        s_cbranch_vccz L_nopf
        s_mov_b64 exec, vcc
        v_add_co_u32 v{DUM+2}, vcc, s60, v7
        v_addc_co_u32 v{DUM+3}, vcc, 0, v{DUM+3}, vcc
        global_load_dword v{DUM}, v[{DUM+2}:{DUM+3}], off{pff}
        s_mov_b64 exec, -1
        """)
        a.label("L_nopf", flush=False)
    a(f"""
    v_readfirstlane_b32 s{sW}, v0
    v_bfe_u32 v22, v0, 4, 2                    ; q = lane>>4
    v_and_b32 v23, 15, v0                      ; n = lane&15
    s_cmp_ge_u32 s2, 256
    s_cbranch_scc1 L_end
    v_xor_b32 v7, v22, v23
    v_lshlrev_b32 v7, 4, v7
    v_lshl_add_u32 v{VK[0]}, v22, 8, v7
    v_xor_b32 v{VK[1]}, 0xc40, v{VK[0]}
    v_xor_b32 v{VK[2]}, 0x1880, v{VK[0]}
    v_xor_b32 v{VK[3]}, 0x24c0, v{VK[0]}
    """)
    if wgmap == "xcd":
        a(f"""
        s_and_b32 s{sHEAD}, s2, 7
        s_lshr_b32 s{sT}, s2, 5
        s_lshl_b32 s{sT}, s{sT}, 3
        s_or_b32 s{sHEAD}, s{sHEAD}, s{sT}
        s_bfe_u32 s{sPART}, s2, 0x20003
        """)
    elif wgmap == "lin":
        a(f"""
        s_lshr_b32 s{sHEAD}, s2, 2
        s_and_b32 s{sPART}, s2, 3
        """)
    elif wgmap == "mix":
        a(f"""
        s_bfe_u32 s{sPART}, s2, 0x20001
        s_xor_b32 s{sT}, s2, s{sPART}
        s_and_b32 s{sT}, s{sT}, 1
        s_lshr_b32 s{sHEAD}, s2, 3
        s_lshl1_add_u32 s{sHEAD}, s{sHEAD}, s{sT}
        """)
    a(f"""
    s_cmp_lg_u32 s{sW}, 0
    s_cbranch_scc1 L_cons
    """)
    a(f"""
    s_setprio 3
    s_brev_b32 s{SK+2}, 32
    s_mov_b32 s{SK+3}, 0x20000
    s_lshl_b32 s{sKO}, s{sHEAD}, 10
    s_add_u32 s{sKO}, s{sKO}, s{sPART}
    s_lshl_b32 s{sKO}, s{sKO}, 10
    s_mov_b32 m0, 0
    """)
    if diag:
        a("s_waitcnt lgkmcnt(0)")
        a(f"v_mov_b32 v{DG}, 0")
        a(f"v_writelane_b32 v{DG}, s74, 0")
        if diag != 3: stampc(1)
    a("s_waitcnt lgkmcnt(0)")
    nb(0)
    a.label("L_k0")
    for i in range(4): a(f"buffer_load_dwordx4 v{VK[i]}, s[{SK}:{SK+3}], s{sKO} offen offset:{1024*i}{nt} lds")
    a(f"""
    s_addk_i32 m0, 4096
    s_addk_i32 s{sKO}, 16384
    s_cmpk_lt_u32 m0, {3*8192}
    s_cbranch_scc1 L_k0
    s_branch L_setup
    """)
    a.label("L_cons")
    a(f"""
    v_and_b32 v{LANE}, 63, v0
    s_lshl_b32 s{sT}, s{sHEAD}, 8
    v_lshl_add_u32 v{KR}, v{LANE}, 2, s{sT}
    s_lshl_b32 s{sT2}, s{sW}, 6
    s_add_u32 m0, s{sT2}, {OMB - 4096}
    s_lshl4_add_u32 s{sT2}, s{sW}, {hex(2**32 - 1024)}
    s_movk_i32 s{SO+2}, 16384
    s_mov_b32 s{SO+3}, 0x20000
    s_waitcnt lgkmcnt(0)
    """)
    if oml: a(f"s_mov_b32 s66, s{sT2}\n s_mov_b32 s67, m0")
    else:
        for i in range(4): a(f"buffer_load_dwordx4 v{VK[i]}, s[{SO}:{SO+3}], s{sT2} offen offset:{1024*i}{omf} lds")
    a(f"""
    global_load_dword v{KR}, v{KR}, s[{SQ}:{SQ+1}]{qf}
    s_load_dwordx2 s[{sWS}:{sWS+1}], s[0:1], 48
    s_load_dwordx2 s[{sOUT}:{sOUT+1}], s[0:1], 32
    s_lshr_b32 s{sC}, s{sT2}, 10
    s_mov_b32 s{sBUD}, 0x100000
    v_lshlrev_b32 v{cLN}, 2, v{LANE}
    v_add_u32 v{cLN}, {LND}, v{cLN}
    s_lshl_b32 s{sT2}, s{sC}, 8
    v_add_u32 v{cPR}, s{sT2}, v{cLN}
    v_mov_b32 v{ACC}, 0
    ds_write_b32 v{cPR}, v{ACC} offset:256
    s_lshl_b32 s{sT2}, s{sC}, 13
    v_lshl_add_u32 v7, v23, 8, v7              ; n*256 + ((q^n)*16)
    v_add_u32 v{RK[0]}, s{sT2}, v7
    v_xor_b32 v{RK[1]}, 64, v{RK[0]}
    v_xor_b32 v{RK[2]}, 0x80, v{RK[0]}
    v_xor_b32 v{RK[3]}, 0xc0, v{RK[0]}
    v_add_u32 v{T+4}, {OMB}, v7
    v_xor_b32 v{T+5}, 64, v{T+4}
    v_xor_b32 v{T+6}, 0x80, v{T+4}
    v_xor_b32 v{T+7}, 0xc0, v{T+4}
    s_or_b32 s{sT2}, s{sT2}, {VRING}
    v_lshrrev_b32 v7, 2, v{LANE}
    v_and_b32 v{RV[0]}, 7, v7
    v_lshlrev_b32 v{RV[0]}, 5, v{RV[0]}
    v_lshl_add_u32 v{RV[0]}, v7, 8, v{RV[0]}
    v_and_b32 v7, 3, v{LANE}
    v_lshl_add_u32 v{RV[0]}, v7, 3, v{RV[0]}
    v_add_u32 v{RV[0]}, s{sT2}, v{RV[0]}
    s_add_u32 s{sT2}, s{sT}, {EPOCH}
    v_mov_b32 v{cAT}, s{sT2}
    s_add_u32 s{sX}, s{sT2}, 128
    s_waitcnt lgkmcnt(0)
    s_load_dword s{sEP}, s[{sWS}:{sWS+1}], s{sX}
    """)
    if el: a(f"s_load_dwordx2 s[{sCT}:{sCT+1}], s[{sWS}:{sWS+1}], s{sT2}")
    if tlb: a(f"s_load_dword s{sCT+2}, s[{sOUT}:{sOUT+1}], s{sT}")
    if int(pt):
        a(f"s_lshl2_add_u32 s70, s2, s{sC}\n s_lshl_b32 s70, s70, 11\n s_add_u32 s70, s70, 0x200000")
        for i in range(int(pt)): a(f"s_load_dword s71, s[{sWS}:{sWS+1}], s70\n s_add_u32 s70, s70, 128")
    if diag:
        a(f"v_mov_b32 v{DG}, 0")
        a(f"v_writelane_b32 v{DG}, s74, 0")
        a("s_mov_b32 m0, 8")
    a(f"""
    v_lshlrev_b32 v{PH+3}, 4, v22
    v_lshl_add_u32 v{cWS}, v22, 3, v23          ; 8q + n
    v_lshlrev_b32 v{cWS}, 4, v{cWS}
    v_cmp_gt_u32 vcc, 8, v23
    v_mov_b32 v7, 0x400
    v_lshl_add_u32 v{cOUT}, v22, 3, s{sT}
    v_lshl_add_u32 v{cOUT}, v23, 5, v{cOUT}
    v_cndmask_b32 v{cWS}, v7, v{cWS}, vcc
    """)
    for t in range(1, 8):
        a(f"v_xor_b32 v{RV[t]}, {hex(32*t)}, v{RV[0]}")
    a(f"""
    s_lshl_b32 s{sT}, s{sC}, 10
    s_add_u32 s{sT}, s{sT}, {RED}
    v_lshl_add_u32 v{cRED}, v{LANE}, 4, s{sT}
    v_add_u32 v{PH+3}, s{sT}, v{PH+3}
    v_lshl_add_u32 v{PH+2}, v{LANE}, 2, s{sT}
    s_lshl2_add_u32 s{sT}, s{sHEAD}, s{sPART}
    s_lshl_b32 s{sT}, s{sT}, 11
    v_add_u32 v{cWS}, s{sT}, v{cWS}
    v_xor_b32 v{GA}, 0x800, v{cWS}
    v_xor_b32 v{GA+1}, 0x1000, v{cWS}
    v_xor_b32 v{GA+2}, 0x1800, v{cWS}
    s_mov_b32 s{sMASK}, 0xffff0000
    s_mov_b32 s{sSCALE}, {hex(f2u(128.0 ** -0.25))}
    s_mov_b32 s{sL2E}, 0x3fb8aa3b
    v_mov_b32 v{NH}, -0.5
    s_mov_b32 s{sMS}, 0x00010001
    s_mov_b32 s{sMS+1}, s{sMS}
    s_mov_b32 s{sMS+16}, 0xff00ff00
    s_mov_b32 s{sMS+17}, s{sMS+16}
    """)
    for t in range(1, 8): a(f"s_lshl_b64 s[{sMS+2*t}:{sMS+2*t+1}], s[{sMS}:{sMS+1}], {t}")
    a(f"v_mov_b32 v{ONES}, 0x3f803f80")
    for i in range(1, 4): a(f"v_mov_b32 v{ONES+i}, v{ONES}")
    for i in range(1, 4): a(f"v_mov_b32 v{ACC+i}, 0")
    for i in range(4): a(f"v_mov_b32 v{WPK+i}, 0")
    if oml:
        a("s_mov_b32 m0, s67\n s_nop 0")
        for i in range(4): a(f"buffer_load_dwordx4 v{VK[i]}, s[{SO}:{SO+3}], s66 offen offset:{1024*i} lds")
        if diag: a("s_mov_b32 m0, 8")
    stampc(1)
    a(f"""
    s_mov_b32 s{sIT}, -1
    s_mov_b32 s{sKK}, s{sC}
    s_waitcnt vmcnt(0)
    v_lshlrev_b32 v{T}, 16, v{KR}
    v_and_b32 v{T+1}, s{sMASK}, v{KR}
    v_mul_f32 v{T}, s{sSCALE}, v{T}
    v_mul_f32 v{T+1}, s{sSCALE}, v{T+1}
    v_cvt_pk_bf16_f32 v{T}, v{T}, v{T+1}
    s_barrier
    ds_write_b32 v{PH+2}, v{T}
    s_waitcnt lgkmcnt(0)
    """)
    for jj in range(4): a(f"ds_read_b128 v[{KR+4*jj}:{KR+4*jj+3}], v{PH+3} offset:{64*jj}")
    for j in range(4):
        for t in range(4):
            r = OM + 16 * t + 4 * j
            a(f"ds_read_b128 v[{r}:{r+3}], v{T+4+j} offset:{4096*t}")
    stampc(2)
    for j in range(4):
        a(f"s_waitcnt lgkmcnt({12-4*j})")
        k = KR + 4 * j
        a(f"v_mfma_f32_16x16x32_bf16 v[{SQD}:{SQD+3}], v[{k}:{k+3}], v[{k}:{k+3}], " + (f"v[{SQD}:{SQD+3}]" if j else "0"))
        for t in range(4):
            d = PR + 4 * t; om = OM + 16 * t + 4 * j
            a(f"v_mfma_f32_16x16x32_bf16 v[{d}:{d+3}], v[{om}:{om+3}], v[{k}:{k+3}], " + (f"v[{d}:{d+3}]" if j else "0"))
    a(f"v_mul_f32 v{SQD}, -0.5, v{SQD}")
    a.flush()
    a("s_branch L_phi0")
    a.label("L_setup")
    nb(1)
    a(f"""
    s_load_dwordx2 s[{SV}:{SV+1}], s[0:1], 16
    s_load_dwordx2 s[{sWS}:{sWS+1}], s[0:1], 48
    s_mov_b32 s{sBUD}, 0x100000
    s_mov_b32 s{sK}, 3
    s_movk_i32 s{sMK}, {3*8192}
    s_mov_b32 s{SV+2}, s{SK+2}
    s_mov_b32 s{SV+3}, s{SK+3}
    v_lshlrev_b32 v7, 1, v22
    v_xor_b32 v7, v7, v23
    v_lshlrev_b32 v7, 4, v7
    v_lshl_add_u32 v{VV[0]}, v22, 8, v7
    v_xor_b32 v{VV[1]}, 0xc80, v{VV[0]}
    v_xor_b32 v{VV[2]}, 0x1800, v{VV[0]}
    v_xor_b32 v{VV[3]}, 0x2480, v{VV[0]}
    v_lshlrev_b32 v{vLN}, 2, v0
    v_and_b32 v7, 3, v0
    v_lshl_add_u32 v{vPA}, v7, 8, v{vLN}
    v_add_u32 v{vPA}, {PRG}, v{vPA}
    v_add_u32 v{vLN}, {LND}, v{vLN}
    s_lshl_b32 s{sT}, s{sHEAD}, 8
    s_add_u32 s{sT}, s{sT}, {EPOCH}
    v_mov_b32 v{vTA}, s{sT}
    v_mov_b32 v{v64}, 64
    s_movk_i32 s{sC0}, 0xc0
    s_sub_u32 s{sVO}, s{sKO}, {3*STEP}
    s_mov_b32 s{sMV}, {VRING}
    """)
    if el: a(f"v_mov_b32 v{vEL}, 0")
    else: a(f"s_cmp_eq_u32 s{sPART}, 0\n s_cselect_b32 s{sT2}, 0xc0, 0\n v_mov_b32 v{vEL}, s{sT2}")
    for i in range(3): a(f"s_movk_i32 s{sF+i}, {(2*(2-i)+1)<<8}")
    a("s_waitcnt lgkmcnt(0)")
    nb(2)
    if diag == 3: a(f"s_waitcnt vmcnt({N})")
    nb(3)
    def push(add):
        a(f"v_mov_b32 v{vT}, s{sF+2}")
        a(f"s_lshl_b32 s{sT}, s{sK}, 9")
        a(f"s_mov_b32 s{sF+2}, s{sF+1}")
        a(f"s_mov_b32 s{sF+1}, s{sF}")
        a(f"s_add_u32 s{sF}, s{sT}, {add}")
    a.label("L_k")
    a(f"""
    s_mov_b32 m0, s{sMK}
    s_add_u32 s{sT}, s{sKO}, 16384
    s_waitcnt vmcnt({N})
    """)
    for i in range(4): a(f"buffer_load_dwordx4 v{VK[i]}, s[{SK}:{SK+3}], s{sKO} offen offset:{1024*i}{nt} lds")
    a(f"s_addk_i32 m0, 4096")
    a(f"s_addk_i32 s{sMK}, 8192")
    for i in range(4): a(f"buffer_load_dwordx4 v{VK[i]}, s[{SK}:{SK+3}], s{sT} offen offset:{1024*i}{nt} lds")
    push(256)
    a(f"s_bitset0_b32 s{sMK}, 16")
    a(f"s_cmp_lg_u32 s{sK}, {K0}")
    if N > 16: a(f"s_waitcnt vmcnt(24)")
    a(f"ds_write_b32 v{vLN}, v{vT}")
    a("s_cbranch_scc1 L_v")
    nb(4)
    a("s_waitcnt lgkmcnt(0)")
    a("s_barrier")
    nb(5)
    if diag == 3:
        a("s_waitcnt lgkmcnt(0)")
        for i in range(8): a(f"v_writelane_b32 v{DG}, s{80+2*min(i,5)}, {9+i}")
    a.label("L_v", flush=False)
    a(f"""
    s_sub_u32 s{sT2}, s{sK}, 7
    s_cbranch_scc1 L_noel
    """)
    a.label("L_chk", flush=False)
    a(f"""
    ds_read_b32 v{vP}, v{vPA}
    s_sub_u32 s{sBUD}, s{sBUD}, 1
    s_cbranch_scc1 L_end
    s_and_b32 s{sT}, s{sT2}, 3
    s_waitcnt lgkmcnt(0)
    v_readlane_b32 s{sX}, v{vP}, s{sT}
    s_lshr_b32 s{sT}, s{sT2}, 2
    s_cmp_gt_u32 s{sX}, s{sT}
    s_cbranch_scc0 L_chk
    s_sub_u32 s{sT}, s{sK}, {3+E}
    s_cmp_lt_u32 s{sT}, 4
    s_cbranch_scc1 L_next
    """)
    if el: a(f"""
    s_cmp_lg_u32 s{sT2}, {32-el}
    s_cbranch_scc1 L_noel
    s_mov_b64 exec, 1
    global_atomic_add v{vEL}, v{vTA}, v{v64}, s[{sWS}:{sWS+1}] sc0 sc1{atf}
    s_mov_b64 exec, -1
    """)
    a.label("L_noel", flush=False)
    a(f"""
    s_mov_b32 m0, s{sMV}
    s_add_u32 s{sT}, s{sVO}, 16384
    s_waitcnt vmcnt({N})
    """)
    for i in range(4): a(f"buffer_load_dwordx4 v{VV[i]}, s[{SV}:{SV+3}], s{sVO} offen offset:{1024*i}{nt} lds")
    a(f"s_addk_i32 m0, 4096")
    a(f"s_addk_i32 s{sMV}, 8192")
    for i in range(4): a(f"buffer_load_dwordx4 v{VV[i]}, s[{SV}:{SV+3}], s{sT} offen offset:{1024*i}{nt} lds")
    a(f"s_add_u32 s{sVO}, s{sT}, 16384")
    push(512)
    a(f"s_bitset0_b32 s{sMV}, 17")
    a(f"s_bitset1_b32 s{sMV}, 16")
    if N > 16: a(f"s_waitcnt vmcnt(24)")
    a(f"v_and_or_b32 v{vT}, v{vEL}, s{sC0}, v{vT}")
    a(f"ds_write_b32 v{vLN}, v{vT}")
    if diag:
        a(f"s_cmp_eq_u32 s{sK}, 3")
        a("s_cbranch_scc0 L_d1")
        stampc(2)
        a.label("L_d1", flush=False)
        a(f"s_cmp_eq_u32 s{sK}, 19")
        a("s_cbranch_scc0 L_d2")
        stampc(3)
        a.label("L_d2", flush=False)
    a.label("L_next", flush=False)
    a(f"""
    s_add_u32 s{sK}, s{sK}, 1
    s_add_u32 s{sKO}, s{sKO}, {STEP}
    s_cmp_lt_u32 s{sK}, 32
    s_cbranch_scc1 L_k
    s_cmp_lt_u32 s{sK}, 39
    s_cbranch_scc1 L_v
    """)
    stampc(4)
    for p in range(2, -1, -1):
        a(f"v_add_u32 v{vT}, 512, v{vT}")
        a(f"s_waitcnt vmcnt({8*p})")
        a(f"ds_write_b32 v{vLN}, v{vT}")
    if diag:
        a(f"v_readfirstlane_b32 s{sX}, v{vT}")
        stampc(5)
        a(f"s_sub_u32 s{sT}, 0x100000, s{sBUD}")
        a(f"v_writelane_b32 v{DG}, s{sT}, 6")
        a(f"s_or_b32 s{sX}, s{sX}, 32")
        a(f"v_writelane_b32 v{DG}, s{sX}, 8")
        a(f"v_mov_b32 v{LANE}, v0")
        a.flush()
        a("s_branch L_fin")
    else:
        a("s_endpgm")
    a.label("L_loop")
    a(f"s_lshl_b32 s{sTHR}, s{sKK}, 9")
    a(f"s_bitset1_b32 s{sTHR}, 8")
    poll()
    stampm()
    for tl in range(2):
        for j in range(4): a(f"ds_read_b128 v[{KR+16*tl+4*j}:{KR+16*tl+4*j+3}], v{RK[j]} offset:{4096*tl}")
    a(f"""
    s_add_u32 s{sIT}, s{sIT}, 1
    v_mov_b32 v{cW}, s{sIT}
    """)
    for j in range(4): a(f"v_xor_b32 v{RK[j]}, 0x8000, v{RK[j]}")
    a("s_waitcnt lgkmcnt(0)")
    a(f"ds_write_b32 v{cPR}, v{cW} offset:256")
    def scale(tl, j):
        o = []
        for r in range(4):
            x = KR + 16 * tl + 4 * j + r
            t0 = T + 2 * (r & 1); t1 = t0 + 1
            o += [f"v_lshlrev_b32 v{t0}, 16, v{x}",
                  f"v_and_b32 v{t1}, s{sMASK}, v{x}",
                  f"v_mul_f32 v{t0}, s{sSCALE}, v{t0}",
                  f"v_mul_f32 v{t1}, s{sSCALE}, v{t1}",
                  f"v_cvt_pk_bf16_f32 v{x}, v{t0}, v{t1}"]
        for r in range(4):
            x = KR + 16 * tl + 4 * j + r
            acc = SQA + 2 * tl + (r & 1)
            if j == 0 and r < 2: o.append(f"v_dot2_f32_bf16 v{acc}, v{x}, v{x}, 0")
            else: o.append(f"v_dot2_f32_bf16 v{acc}, v{x}, v{x}, v{acc}")
        return o
    def projm(tl, j):
        o = []
        for t in range(4):
            d = PR + 16 * tl + 4 * t
            om = OM + 16 * t + 4 * j
            k = KR + 16 * tl + 4 * j
            c = "0" if j == 0 else f"v[{d}:{d+3}]"
            o.append(f"v_mfma_f32_16x16x32_bf16 v[{d}:{d+3}], v[{om}:{om+3}], v[{k}:{k+3}], {c}")
        return o
    def sqsum(tl):
        acc = SQA + 2 * tl
        return [f"v_add_f32 v{acc}, v{acc}, v{acc+1}"]
    def sqm(tl):
        acc = SQA + 2 * tl; d = SQD + 4 * tl
        return [f"v_mfma_f32_16x16x4_f32 v[{d}:{d+3}], v{NH}, v{acc}, 0"]
    def phi(tl):
        d = SQD + 4 * tl
        o = [f"v_cvt_pk_bf16_f32 v{d}, 0, v{d}"]
        for t in range(4):
            p = [PR + 16 * tl + 4 * t + r for r in range(4)]
            for x in p: o.append(f"v_cvt_pk_bf16_f32 v{x}, 0, v{x}")
            for x in p: o.append(f"v_add_f32 v{x}, v{d}, v{x}")
            for x in p: o.append(f"v_cvt_pk_bf16_f32 v{x}, 0, v{x}")
            for x in p: o.append(f"v_mul_f32 v{x}, s{sL2E}, v{x}")
            for x in p: o.append(f"v_exp_f32 v{x}, v{x}")
            h = PH + 8 * tl + 2 * t
            o.append(f"v_cvt_pk_bf16_f32 v{h}, v{p[0]}, v{p[1]}")
            o.append(f"v_cvt_pk_bf16_f32 v{h+1}, v{p[2]}, v{p[3]}")
        return o
    def wm(tl):
        d = WD + 4 * tl; h = PH + 8 * tl
        return [f"v_mfma_f32_16x16x32_bf16 v[{d}:{d+3}], v[{h}:{h+3}], v[{PQ}:{PQ+3}], v[{C}:{C+3}]",
                f"v_mfma_f32_16x16x32_bf16 v[{d}:{d+3}], v[{h+4}:{h+7}], v[{PQ+4}:{PQ+7}], v[{d}:{d+3}]"]
    def bm(t): return KR + 4 * t if t < 8 else BD
    steps = [(tl, j) for tl in range(2) for j in range(4)]
    body = scale(0, 0)
    for i in range(1, 8):
        tl, j = steps[i]
        side = projm(*steps[i - 1])
        main = scale(tl, j)
        if steps[i - 1] == (0, 3):
            main = main[:4] + sqsum(0) + main[4:]
            side = side + sqm(0)
        body += interleave(main, side, 5, lead=2)
    ph0 = phi(0)
    ph0 = ph0[:4] + sqsum(1) + ph0[4:]
    for x in body: a(x)
    a.label("L_phi0", flush=False)
    for x in interleave(ph0, projm(1, 3) + sqm(1), 4, lead=1): a(x)
    a(f"s_cmp_eq_u32 s{sIT}, -1")
    a.flush()
    a("s_cbranch_scc1 L_qpost")
    for x in interleave(phi(1), wm(0), 6, lead=3): a(x)
    for x in wm(1): a(x)
    G = PH
    a.label("L_mask", flush=False)
    a(f"s_add_u32 s{sKK}, s{sKK}, 4")
    a(f"s_lshl_b32 s{sTHR}, s{sKK}, 9")
    a(f"s_cmp_lt_u32 s{sKK}, 8")
    for t in (8, 0, 1, 2, 3, 4, 5, 6, 7):
        for i in range(4): a(f"v_cndmask_b32_e64 v{bm(t)+i}, 0, v{WPK+i}, s[{sMS+2*t}:{sMS+2*t+1}]")
        if t == 0: a(f"v_mfma_f32_16x16x32_bf16 v[{ACC}:{ACC+3}], v[{ONES}:{ONES+3}], v[{BD}:{BD+3}], v[{ACC}:{ACC+3}]")
    for i in range(4): a(f"v_cvt_pk_bf16_f32 v{WPK+i}, v{WD+2*i}, v{WD+2*i+1}")
    a("s_waitcnt vmcnt(0)")
    a("s_cbranch_scc1 L_loop")
    if E > 4: a(f"s_cmp_lt_u32 s{sKK}, {8+E}\n s_cselect_b32 s{sTHR}, 0, s{sTHR}")
    poll()
    stampm()
    for t in range(8):
        r = PR + 4 * t
        a(f"ds_read_b64_tr_b16 v[{r}:{r+1}], v{RV[t]}")
        a(f"ds_read_b64_tr_b16 v[{r+2}:{r+3}], v{RV[t]} offset:4096")
    a(f"""
    s_and_b32 s{sT2}, s{sX}, 0xc0
    s_or_b32 s{sT2}, s{sT2}, s{sKK}
    s_cmpk_eq_u32 s{sT2}, {0xc0+36}
    s_cbranch_scc1 L_spec
    """)
    a.label("L_specret", flush=False)
    a(f"s_cmp_lt_u32 s{sKK}, 32")
    for t in range(8):
        r = PR + 4 * t
        a(f"s_waitcnt lgkmcnt({14-2*t})")
        a(f"v_mfma_f32_16x16x32_bf16 v[{ACC}:{ACC+3}], v[{r}:{r+3}], v[{bm(t)}:{bm(t)+3}], v[{ACC}:{ACC+3}]")
        a(f"v_xor_b32 v{RV[t]}, 0x8000, v{RV[t]}")
    a("s_cbranch_scc1 L_loop")
    a(f"""
    s_cmp_eq_u32 s{sKK}, 39
    s_cbranch_scc1 L_last
    s_cmp_lt_u32 s{sKK}, 36
    s_cbranch_scc1 L_drain
    s_cmpk_eq_u32 s{sT2}, {0xc0+36}
    s_nop 0
    s_cbranch_scc0 L_dep
    """)
    def specloads(B):
        for p in range(3):
            a(f"global_load_dwordx4 v[{B+8*p}:{B+8*p+3}], v{GA+p}, s[{sWS}:{sWS+1}]{glf}")
            a(f"global_load_dwordx4 v[{B+8*p+4}:{B+8*p+7}], v{GA+p}, s[{sWS}:{sWS+1}] offset:512{glf}")
    def check(B):
        if diag: a(f"s_add_u32 s{sIT}, s{sIT}, 256")
        a(f"s_waitcnt vmcnt({6*pg})")
        tags = [B + 8 * p + 2 * i + 1 for p in range(3) for i in range(4)]
        a(f"v_min3_u32 v{T+2}, v{EP}, v{tags[0]}, v{tags[1]}")
        a(f"v_max3_u32 v{T+3}, v{EP}, v{tags[0]}, v{tags[1]}")
        for i in range(2, 12, 2):
            a(f"v_min3_u32 v{T+2}, v{T+2}, v{tags[i]}, v{tags[i+1]}")
            a(f"v_max3_u32 v{T+3}, v{T+3}, v{tags[i]}, v{tags[i+1]}")
        a(f"v_cmp_ne_u32 vcc, v{T+2}, v{T+3}")
        for i in range(4):
            a(f"v_add_f32 v{XR+4+i}, v{ACC+i}, v{B+2*i}")
            a(f"v_add_f32 v{XR+8+i}, v{B+8+2*i}, v{B+16+2*i}")
    a.label("L_gather", flush=False)
    if pg: specloads(OM + 24)
    check(OM)
    if not nog: a("s_cbranch_vccnz L_again")
    a.label("L_got", flush=False)
    for i in range(4): a(f"v_add_f32 v{ACC+i}, v{XR+4+i}, v{XR+8+i}")
    stampc(62)
    a.label("L_dep", flush=False)
    a(f"""
    ds_write_b128 v{cRED}, v[{ACC}:{ACC+3}]
    s_waitcnt lgkmcnt(0)
    s_barrier
    """)
    a("s_branch L_fin" if diag else "s_endpgm")
    a.label("L_drain", flush=False)
    if tlb == 2:
        a(f"global_load_dword v{DUM}, v{cOUT}, s[{sOUT}:{sOUT+1}]")
    a("s_branch L_mask")
    a.label("L_spec", flush=False)
    specloads(OM)
    a("s_branch L_specret")
    a.label("L_again", flush=False)
    specloads(OM)
    if pg:
        check(OM + 24)
        a("s_cbranch_vccz L_got")
    a(f"s_sub_u32 s{sBUD}, s{sBUD}, 16")
    a("s_cbranch_scc0 L_gather")
    a("s_endpgm")
    a.label("L_last", flush=False)
    stampc(61)
    a(f"""
    s_barrier
    ds_read_b128 v[{XR}:{XR+3}], v{CT+4}
    ds_read_b128 v[{XR+4}:{XR+7}], v{CT+4} offset:1024
    ds_read_b128 v[{XR+8}:{XR+11}], v{CT+4} offset:2048
    """)
    for i in range(4): a(f"v_mov_b32 v{G+2*i+1}, v{EP}")
    stampc(4)
    a(f"""
    v_mov_b32 v{T+4}, {hex(f2u(1e-6))}
    s_not_b64 s[{sMS}:{sMS+1}], s[{sMS+16}:{sMS+17}]
    s_cmpk_eq_u32 s{sT2}, {0xc0+39}
    s_waitcnt lgkmcnt(0)
    """)
    for i in range(4):
        a(f"v_add_f32 v{ACC+i}, v{ACC+i}, v{XR+i}")
        a(f"v_add_f32 v{XR+4+i}, v{XR+4+i}, v{XR+8+i}")
    for i in range(4): a(f"v_add_f32 v{G+2*i}, v{ACC+i}, v{XR+4+i}")
    a(f"""
    s_cbranch_scc1 L_final
    s_or_b64 exec, s[{sMS}:{sMS+1}], 0x100
    global_store_dwordx4 v{cWS}, v[{G}:{G+3}], s[{sWS}:{sWS+1}]{asf}
    global_store_dwordx4 v{cWS}, v[{G+4}:{G+7}], s[{sWS}:{sWS+1}] offset:512{asf}
    """)
    if diag: a("s_mov_b64 exec, -1")
    a("s_branch L_fin" if diag else "s_endpgm")
    a.label("L_final", flush=False)
    a(f"""
    v_add_f32_dpp v{T+4}, v{G}, v{T+4} row_ror:8 row_mask:0xf bank_mask:0xf
    v_rcp_f32 v{T+4}, v{T+4}
    s_mov_b64 exec, s[{sMS}:{sMS+1}]
    """)
    for i in range(4): a(f"v_mul_f32 v{XR+i}, v{G+2*i}, v{T+4}")
    a(f"""
    v_cvt_pk_bf16_f32 v{XR}, v{XR}, v{XR+1}
    v_cvt_pk_bf16_f32 v{XR+1}, v{XR+2}, v{XR+3}
    global_store_dwordx2 v{cOUT}, v[{XR}:{XR+1}], s[{sOUT}:{sOUT+1}]{outsc}
    s_mov_b64 exec, 1
    global_store_dword v{cAT}, v{EP}, s[{sWS}:{sWS+1}] offset:128{outsc}
    """)
    if diag:
        a("s_mov_b64 exec, -1")
        stampc(5)
        if diag == 4:
            a("s_waitcnt vmcnt(0)")
            stampc(6)
        a.label("L_fin")
        a(f"s_memrealtime s[{sRAW}:{sRAW+1}]")
        a(f"s_getreg_b32 s76, hwreg(HW_REG_XCC_ID)")
        a("s_waitcnt lgkmcnt(0)")
        a(f"v_writelane_b32 v{DG}, s{sRAW}, 7")
        a(f"v_writelane_b32 v{DG}, s76, 63")
        a(f"v_writelane_b32 v{DG}, s{sIT}, 60")
        a(f"""
        s_mul_i32 s{sT}, s2, 5
        s_lshr_b32 s{sT2}, s{sW}, 6
        s_add_u32 s{sT}, s{sT}, s{sT2}
        s_lshl_b32 s{sT}, s{sT}, 8
        s_add_u32 s{sT}, s{sT}, 0x100000
        v_lshl_add_u32 v{T}, v{LANE}, 2, s{sT}
        global_store_dword v{T}, v{DG}, s[{sWS}:{sWS+1}]
        """)
    a.label("L_end")
    a("s_endpgm")
    a.label("L_qpost")
    a(f"v_mov_b32 v{T+2}, {hex(f2u(1e-6) - (3 << 23))}")
    a(f"s_mov_b32 s{sT}, {hex(f2u(0.015625))}")
    for i in range(8):
        x = PH + i
        a(f"""
        v_lshlrev_b32 v{T}, 16, v{x}
        v_and_b32 v{T+1}, s{sMASK}, v{x}
        v_fma_f32 v{T}, v{T}, s{sT}, v{T+2}
        v_fma_f32 v{T+1}, v{T+1}, s{sT}, v{T+2}
        v_cvt_pk_bf16_f32 v{PQ+i}, v{T}, v{T+1}
        """)
    a(f"v_mfma_f32_16x16x32_bf16 v[{C}:{C+3}], v[{ONES}:{ONES+3}], v[{PQ}:{PQ+3}], 0")
    a(f"s_add_u32 s{sEP}, s{sEP}, 0x9e3779b9")
    a(f"v_mfma_f32_16x16x32_bf16 v[{C}:{C+3}], v[{ONES}:{ONES+3}], v[{PQ+4}:{PQ+7}], v[{C}:{C+3}]")
    a(f"""
    s_mov_b32 s{sIT}, 0
    v_mov_b32 v{EP}, s{sEP}
    v_subrev_u32 v{CT+4}, 0xc00, v{cRED}
    """)
    if el: a(f"""
    s_cmp_eq_u32 s{sEP}, s{sCT+1}
    s_cselect_b32 s{sT}, 4, s{sC}
    s_cmp_lg_u32 s{sT}, {cs}
    s_cbranch_scc1 L_c2
    s_mov_b64 exec, 1
    v_mov_b32 v{CT}, 0
    v_mov_b32 v{CT+1}, s{sEP}
    v_mov_b32 v{CT+2}, s{sCT}
    v_mov_b32 v{CT+3}, s{sCT+1}
    global_atomic_cmpswap_x2 v{cAT}, v[{CT}:{CT+3}], s[{sWS}:{sWS+1}] sc1{csf}
    s_mov_b64 exec, -1
    """)
    a.label("L_c2", flush=False)
    a("s_nop 1")
    for i in range(4): a(f"v_mul_f32 v{C+i}, {hex(f2u(1e-6) + (3 << 23))}, v{C+i}")
    stampc(3)
    a.flush()
    a("s_branch L_loop")
    a.raw("L_codeend:")
    a.raw(f""".section .rodata,"a"
.p2align 6
.amdhsa_kernel {NAME}_kernel
  .amdhsa_next_free_vgpr 256
  .amdhsa_next_free_sgpr {96 if diag == 3 else 80}
  .amdhsa_accum_offset 256
  .amdhsa_group_segment_fixed_size 0
  .amdhsa_kernarg_size 56
  .amdhsa_user_sgpr_count 2
  .amdhsa_user_sgpr_kernarg_segment_ptr 1
  .amdhsa_system_sgpr_workgroup_id_x 1
.end_amdhsa_kernel""")
    return a

if __name__ == "__main__":
    out = sys.argv[1]
    kw = dict(x.split("=") for x in sys.argv[2:])
    for key in ("nt", "outsc", "omf", "qf", "pff", "atf", "csf", "asf", "glf"):
        if key in kw: kw[key] = "" if kw[key] == "0" else " " + kw[key].replace("+", " ")
    a = gen(**kw)
    open(out, "w").write(a.text())
    print("wrote", out, "nops inserted:", a.nops)
```

```python
import sys, struct
from asmlib import Asm, interleave

NAME = "standalone__linear_kernel_rfa__decode"
def f2u(x): return struct.unpack("<I", struct.pack("<f", x))[0]

def gen(nt=" nt", wgmap="mix", diag="0", outsc="", pf="1", al="12", N="16", el="3", K0="4", cs="0", E="8", nog="0", ab="0",
        asf=" sc1", glf=" sc1", lp="7", cz="0", bp="2", SL="11", Nd="16", fb="0", Nf="63", fw="0"):
    E = int(E); nog = int(nog); ab = int(ab); lp = int(lp); cz = int(cz); bp = int(bp); SL = int(SL); Nd = int(Nd); fb = int(fb); Nf = int(Nf); fw = int(fw)
    diag = int(diag); pf = int(pf); N = int(N); el = int(el); K0 = int(K0); cs = int(cs)
    omf = qf = pff = atf = csf = ""; oml = 0; tlb = 0; pt = 0; ed = 0
    P = 3
    a = Asm()
    VRING = 65536; OMB = 131072; LND = 147712; PRG = LND + 256; RED = 151552
    LDS = RED + 4096
    EPOCH = 0x80000; STEP = 32768
    SK, SV, SO, SQ = 4, 8, 12, 16
    sOUT, sWS = 20, 24
    sW, sHEAD, sPART, sT, sT2, sX, sBUD = 26, 27, 28, 29, 30, 31, 32
    sK, sKO, sMK, sMV, sVO = 33, 34, 36, 37, 39
    sF = 40; sC0 = 49
    VK = [176, 177, 178, 179]; VV = [5, 6, 17, 18]; vLN = 8; vPA = 9; vT = 10; vP = 11; vTA = 12; vEL = 15; v64 = 16
    sC, sKK, sTHR, sMASK, sSCALE, sL2E, sIT, sEP = 33, 34, 35, 36, 37, 38, 39, 41
    sMS = 42
    sCT = 62
    RK = [8, 9, 10, 11]; RV = list(range(12, 20))
    NH = 20; LANE = 21; cLN = 1; cPR = 2; cDEP = 3; cW = 4; EP = 151; DENR = 150; cRD = 5; cWS = 6; cOUT = 22; cAT = 161
    ONES = 24; C = 28; PQ = 32; WPK = 40; WD = 44; SQD = 52; SQA = 60
    KR = 64; PR = 96; PH = 128; T = 144; ACC = 152; BD = 156; DUM = 160; DG = 164; XR = 168
    CT = 180; GA = 186; cL16 = 187; TV = 188; OM = 192; GB = OM; GC = OM + 4
    sRAW = 72
    def stampc(i):
        if diag:
            a(f"s_memrealtime s[{sRAW}:{sRAW+1}]")
            a("s_waitcnt lgkmcnt(0)")
            a(f"v_writelane_b32 v{DG}, s{sRAW}, {i}")
    def stampm():
        if diag:
            a(f"s_memrealtime s[{sRAW}:{sRAW+1}]")
            a("s_waitcnt lgkmcnt(0)")
            a(f"v_writelane_b32 v{DG}, s{sRAW}, m0")
            a("s_add_u32 m0, m0, 1")
    def nb(i):
        if diag == 3: a(f"s_memrealtime s[{80+2*i}:{81+2*i}]")
    npoll = [0]
    def poll():
        l = "L_poll%d" % npoll[0]; npoll[0] += 1
        a.label(l, flush=False)
        a(f"""
        ds_read_b32 v{cW}, v{cLN}
        s_sub_u32 s{sBUD}, s{sBUD}, 1
        s_cbranch_scc1 L_end
        s_waitcnt lgkmcnt(0)
        v_readfirstlane_b32 s{sX}, v{cW}
        s_cmp_ge_u32 s{sX}, s{sTHR}
        s_cbranch_scc0 {l}
        """)

    hdr = open("cdna_kernels/%s.s.ref" % NAME).read().split("; Override launch")[0]
    a.raw(hdr.rstrip())
    a.raw("; @launch grid=(256,1,1) block=(320,1,1) lds=%d" % LDS)
    a.raw('.amdgcn_target "amdgcn-amd-amdhsa--gfx950"\n.text\n.globl %s_kernel\n.p2align %s\n.p2align 8\n.type %s_kernel,@function' % (NAME, al, NAME))
    a.label(NAME + "_kernel")
    if diag: a("s_memrealtime s[74:75]")
    a(f"""
    s_load_dwordx2 s[{SK}:{SK+1}], s[0:1], 8
    s_load_dwordx2 s[{SO}:{SO+1}], s[0:1], 24
    s_load_dwordx2 s[{SQ}:{SQ+1}], s[0:1], 0
    """)
    if pf:
        a("s_getpc_b64 s[60:61]")
        a.label("L_pc", flush=False)
        a(f"""
        v_subrev_u32 v7, 64, v0
        v_lshlrev_b32 v7, 7, v7
        v_cmp_gt_u32 vcc, L_codeend-L_pc-3, v7
        v_mov_b32 v{DUM+3}, s61
        s_cbranch_vccz L_nopf
        s_mov_b64 exec, vcc
        v_add_co_u32 v{DUM+2}, vcc, s60, v7
        v_addc_co_u32 v{DUM+3}, vcc, 0, v{DUM+3}, vcc
        global_load_dword v{DUM}, v[{DUM+2}:{DUM+3}], off{pff}
        s_mov_b64 exec, -1
        """)
        a.label("L_nopf", flush=False)
    a(f"""
    v_readfirstlane_b32 s{sW}, v0
    v_bfe_u32 v22, v0, 4, 2                    ; q = lane>>4
    v_and_b32 v23, 15, v0                      ; n = lane&15
    s_cmp_ge_u32 s2, 256
    s_cbranch_scc1 L_end
    v_xor_b32 v7, v22, v23
    v_lshlrev_b32 v7, 4, v7
    v_lshl_add_u32 v{VK[0]}, v22, 8, v7
    v_xor_b32 v{VK[1]}, 0xc40, v{VK[0]}
    v_xor_b32 v{VK[2]}, 0x1880, v{VK[0]}
    v_xor_b32 v{VK[3]}, 0x24c0, v{VK[0]}
    """)
    if wgmap == "xcd":
        a(f"""
        s_and_b32 s{sHEAD}, s2, 7
        s_lshr_b32 s{sT}, s2, 5
        s_lshl_b32 s{sT}, s{sT}, 3
        s_or_b32 s{sHEAD}, s{sHEAD}, s{sT}
        s_bfe_u32 s{sPART}, s2, 0x20003
        """)
    elif wgmap == "lin":
        a(f"""
        s_lshr_b32 s{sHEAD}, s2, 2
        s_and_b32 s{sPART}, s2, 3
        """)
    elif wgmap == "mix":
        a(f"""
        s_bfe_u32 s{sPART}, s2, 0x20001
        s_xor_b32 s{sT}, s2, s{sPART}
        s_and_b32 s{sT}, s{sT}, 1
        s_lshr_b32 s{sHEAD}, s2, 3
        s_lshl1_add_u32 s{sHEAD}, s{sHEAD}, s{sT}
        """)
    a(f"""
    s_cmp_lg_u32 s{sW}, 0
    s_cbranch_scc1 L_cons
    """)
    a(f"""
    s_setprio 3
    s_brev_b32 s{SK+2}, 32
    s_mov_b32 s{SK+3}, 0x20000
    s_lshl_b32 s{sKO}, s{sHEAD}, 10
    s_add_u32 s{sKO}, s{sKO}, s{sPART}
    s_lshl_b32 s{sKO}, s{sKO}, 10
    s_mov_b32 m0, 0
    """)
    if diag:
        a("s_waitcnt lgkmcnt(0)")
        a(f"v_mov_b32 v{DG}, 0")
        a(f"v_writelane_b32 v{DG}, s74, 0")
        if diag != 3: stampc(1)
    a("s_waitcnt lgkmcnt(0)")
    nb(0)
    a.label("L_k0")
    for i in range(4): a(f"buffer_load_dwordx4 v{VK[i]}, s[{SK}:{SK+3}], s{sKO} offen offset:{1024*i}{nt} lds")
    a(f"""
    s_addk_i32 m0, 4096
    s_addk_i32 s{sKO}, 16384
    s_cmpk_lt_u32 m0, {3*8192}
    s_cbranch_scc1 L_k0
    s_branch L_setup
    """)
    a.label("L_cons")
    a(f"""
    v_and_b32 v{LANE}, 63, v0
    s_lshl_b32 s{sT}, s{sHEAD}, 8
    v_lshl_add_u32 v{KR}, v{LANE}, 2, s{sT}
    s_lshl_b32 s{sT2}, s{sW}, 6
    s_add_u32 m0, s{sT2}, {OMB - 4096}
    s_lshl4_add_u32 s{sT2}, s{sW}, {hex(2**32 - 1024)}
    s_movk_i32 s{SO+2}, 16384
    s_mov_b32 s{SO+3}, 0x20000
    s_waitcnt lgkmcnt(0)
    """)
    if oml: a(f"s_mov_b32 s66, s{sT2}\n s_mov_b32 s67, m0")
    else:
        for i in range(4): a(f"buffer_load_dwordx4 v{VK[i]}, s[{SO}:{SO+3}], s{sT2} offen offset:{1024*i}{omf} lds")
    a(f"""
    global_load_dword v{KR}, v{KR}, s[{SQ}:{SQ+1}]{qf}
    s_load_dwordx2 s[{sWS}:{sWS+1}], s[0:1], 48
    s_load_dwordx2 s[{sOUT}:{sOUT+1}], s[0:1], 32
    s_lshr_b32 s{sC}, s{sT2}, 10
    s_mov_b32 s{sBUD}, 0x100000
    v_lshlrev_b32 v{cLN}, 2, v{LANE}
    v_add_u32 v{cLN}, {LND}, v{cLN}
    s_lshl_b32 s{sT2}, s{sC}, 8
    v_add_u32 v{cPR}, s{sT2}, v{cLN}
    v_mov_b32 v{ACC}, 0
    ds_write_b32 v{cPR}, v{ACC} offset:256
    s_lshl_b32 s{sT2}, s{sC}, 13
    v_lshl_add_u32 v7, v23, 8, v7              ; n*256 + ((q^n)*16)
    v_add_u32 v{RK[0]}, s{sT2}, v7
    v_xor_b32 v{RK[1]}, 64, v{RK[0]}
    v_xor_b32 v{RK[2]}, 0x80, v{RK[0]}
    v_xor_b32 v{RK[3]}, 0xc0, v{RK[0]}
    v_add_u32 v{T+4}, {OMB}, v7
    v_xor_b32 v{T+5}, 64, v{T+4}
    v_xor_b32 v{T+6}, 0x80, v{T+4}
    v_xor_b32 v{T+7}, 0xc0, v{T+4}
    s_or_b32 s{sT2}, s{sT2}, {VRING}
    v_lshrrev_b32 v7, 2, v{LANE}
    v_and_b32 v{RV[0]}, 7, v7
    v_lshlrev_b32 v{RV[0]}, 5, v{RV[0]}
    v_lshl_add_u32 v{RV[0]}, v7, 8, v{RV[0]}
    v_and_b32 v7, 3, v{LANE}
    v_lshl_add_u32 v{RV[0]}, v7, 3, v{RV[0]}
    v_add_u32 v{RV[0]}, s{sT2}, v{RV[0]}
    s_add_u32 s{sT2}, s{sT}, {EPOCH}
    v_mov_b32 v{cAT}, s{sT2}
    s_add_u32 s{sX}, s{sT2}, 128
    s_waitcnt lgkmcnt(0)
    s_load_dword s{sEP}, s[{sWS}:{sWS+1}], s{sX}
    """)
    if el: a(f"s_load_dwordx2 s[{sCT}:{sCT+1}], s[{sWS}:{sWS+1}], s{sT2}")
    if tlb: a(f"s_load_dword s{sCT+2}, s[{sOUT}:{sOUT+1}], s{sT}")
    if int(pt):
        a(f"s_lshl2_add_u32 s70, s2, s{sC}\n s_lshl_b32 s70, s70, 11\n s_add_u32 s70, s70, 0x200000")
        for i in range(int(pt)): a(f"s_load_dword s71, s[{sWS}:{sWS+1}], s70\n s_add_u32 s70, s70, 128")
    if diag:
        a(f"v_mov_b32 v{DG}, 0")
        a(f"v_writelane_b32 v{DG}, s74, 0")
        a("s_mov_b32 m0, 8")
    a(f"""
    v_lshlrev_b32 v{PH+3}, 4, v22
    s_lshl_b32 s{sT2}, s{sC}, 8
    v_lshl_add_u32 v{cRD}, v23, 4, s{sT2}       ; 256c + 16n
    v_add_u32 v7, 1, v22
    v_xor_b32 v7, s{sPART}, v7
    s_lshl2_add_u32 s{sT2}, s{sC}, -4
    s_lshl4_add_u32 s{sT}, s{sT2}, s{sT}
    v_lshl_add_u32 v{cOUT}, v{LANE}, 1, s{sT}
    s_lshl_b32 s{sT}, s{sHEAD}, {SL+2}
    v_lshl_add_u32 v{GA}, v7, {SL}, s{sT}
    v_add_u32 v{GA}, v{GA}, v{cRD}
    v_lshlrev_b32 v{cL16}, 4, v{LANE}
    """)
    for t in range(1, 8):
        a(f"v_xor_b32 v{RV[t]}, {hex(32*t)}, v{RV[0]}")
    a(f"""
    s_lshl_b32 s{sT}, s{sC}, 13
    v_add_u32 v{cDEP}, s{sT}, v{cL16}
    s_lshl_b32 s{sT}, s{sC}, 10
    s_add_u32 s{sT}, s{sT}, {RED}
    v_add_u32 v{PH+3}, s{sT}, v{PH+3}
    v_lshl_add_u32 v{PH+2}, v{LANE}, 2, s{sT}
    s_lshl2_add_u32 s{sT}, s{sHEAD}, s{sPART}
    s_lshl_b32 s{sT}, s{sT}, {SL}
    v_add_u32 v{cWS}, s{sT}, v{cRD}
    s_mul_i32 s{sT}, s{sC}, 0x2040
    s_bitset1_b32 s{sT}, 15
    v_xor_b32 v{TV}, s{sT}, v{RV[0]}
    v_xor_b32 v{TV+1}, s{sT}, v{RV[1]}
    s_mov_b32 s{sMASK}, 0xffff0000
    s_mov_b32 s{sSCALE}, {hex(f2u(128.0 ** -0.25))}
    s_mov_b32 s{sL2E}, 0x3fb8aa3b
    v_mov_b32 v{NH}, -0.5
    s_mov_b32 s{sMS}, 0x00010001
    s_mov_b32 s{sMS+1}, s{sMS}
    s_mov_b32 s{sMS+16}, 0x44444444
    s_mov_b32 s{sMS+17}, s{sMS+16}
    """)
    for t in range(1, 8): a(f"s_lshl_b64 s[{sMS+2*t}:{sMS+2*t+1}], s[{sMS}:{sMS+1}], {4*(t>>1)+(t&1)}")
    a(f"v_mov_b32 v{ONES}, 0x3f803f80")
    for i in range(1, 4): a(f"v_mov_b32 v{ONES+i}, v{ONES}")
    for i in range(1, 4): a(f"v_mov_b32 v{ACC+i}, 0")
    for i in range(4): a(f"v_mov_b32 v{WPK+i}, 0")
    if oml:
        a("s_mov_b32 m0, s67\n s_nop 0")
        for i in range(4): a(f"buffer_load_dwordx4 v{VK[i]}, s[{SO}:{SO+3}], s66 offen offset:{1024*i} lds")
        if diag: a("s_mov_b32 m0, 8")
    stampc(1)
    a(f"""
    s_mov_b32 s{sIT}, -1
    s_mov_b32 s{sKK}, s{sC}
    s_waitcnt vmcnt(0)
    v_lshlrev_b32 v{T}, 16, v{KR}
    v_and_b32 v{T+1}, s{sMASK}, v{KR}
    v_mul_f32 v{T}, s{sSCALE}, v{T}
    v_mul_f32 v{T+1}, s{sSCALE}, v{T+1}
    v_cvt_pk_bf16_f32 v{T}, v{T}, v{T+1}
    s_barrier
    ds_write_b32 v{PH+2}, v{T}
    s_waitcnt lgkmcnt(0)
    """)
    for jj in range(4): a(f"ds_read_b128 v[{KR+4*jj}:{KR+4*jj+3}], v{PH+3} offset:{64*jj}")
    for j in range(4):
        for t in range(4):
            r = OM + 16 * t + 4 * j
            a(f"ds_read_b128 v[{r}:{r+3}], v{T+4+j} offset:{4096*t}")
    stampc(2)
    for j in range(4):
        a(f"s_waitcnt lgkmcnt({12-4*j})")
        k = KR + 4 * j
        a(f"v_mfma_f32_16x16x32_bf16 v[{SQD}:{SQD+3}], v[{k}:{k+3}], v[{k}:{k+3}], " + (f"v[{SQD}:{SQD+3}]" if j else "0"))
        for t in range(4):
            d = PR + 4 * t; om = OM + 16 * t + 4 * j
            a(f"v_mfma_f32_16x16x32_bf16 v[{d}:{d+3}], v[{om}:{om+3}], v[{k}:{k+3}], " + (f"v[{d}:{d+3}]" if j else "0"))
    a(f"v_mul_f32 v{SQD}, -0.5, v{SQD}")
    a.flush()
    a("s_branch L_phi0")
    a.label("L_setup")
    nb(1)
    a(f"""
    s_load_dwordx2 s[{SV}:{SV+1}], s[0:1], 16
    s_load_dwordx2 s[{sWS}:{sWS+1}], s[0:1], 48
    s_mov_b32 s{sBUD}, 0x100000
    s_mov_b32 s{sK}, 3
    s_movk_i32 s{sMK}, {3*8192}
    s_mov_b32 s{SV+2}, s{SK+2}
    s_mov_b32 s{SV+3}, s{SK+3}
    v_lshlrev_b32 v7, 1, v22
    v_xor_b32 v7, v7, v23
    v_lshlrev_b32 v7, 4, v7
    v_lshl_add_u32 v{VV[0]}, v22, 8, v7
    v_xor_b32 v{VV[1]}, 0xc80, v{VV[0]}
    v_xor_b32 v{VV[2]}, 0x1800, v{VV[0]}
    v_xor_b32 v{VV[3]}, 0x2480, v{VV[0]}
    v_lshlrev_b32 v{vLN}, 2, v0
    v_and_b32 v7, 3, v0
    v_lshl_add_u32 v{vPA}, v7, 8, v{vLN}
    v_add_u32 v{vPA}, {PRG}, v{vPA}
    v_add_u32 v{vLN}, {LND}, v{vLN}
    s_lshl_b32 s{sT}, s{sHEAD}, 8
    s_add_u32 s{sT}, s{sT}, {EPOCH}
    v_mov_b32 v{vTA}, s{sT}
    v_mov_b32 v{v64}, 64
    s_movk_i32 s{sC0}, 0xc0
    s_sub_u32 s{sVO}, s{sKO}, {3*STEP}
    s_mov_b32 s{sMV}, {VRING}
    """)
    a(f"s_add_u32 s50, s{sT}, 128")
    if fb: a("s_mov_b32 s52, 64")
    if el: a(f"v_mov_b32 v{vEL}, 0")
    else: a(f"s_cmp_eq_u32 s{sPART}, 0\n s_cselect_b32 s{sT2}, 0xc0, 0\n v_mov_b32 v{vEL}, s{sT2}")
    for i in range(3): a(f"s_movk_i32 s{sF+i}, {(2*(2-i)+1)<<8}")
    a("s_waitcnt lgkmcnt(0)")
    nb(2)
    if diag == 3: a(f"s_waitcnt vmcnt({N})")
    nb(3)
    def push(add):
        a(f"v_mov_b32 v{vT}, s{sF+2}")
        a(f"s_lshl_b32 s{sT}, s{sK}, 9")
        a(f"s_mov_b32 s{sF+2}, s{sF+1}")
        a(f"s_mov_b32 s{sF+1}, s{sF}")
        a(f"s_add_u32 s{sF}, s{sT}, {add}")
    a.label("L_k")
    a(f"""
    s_mov_b32 m0, s{sMK}
    s_add_u32 s{sT}, s{sKO}, 16384
    s_waitcnt vmcnt({N})
    """)
    for i in range(4): a(f"buffer_load_dwordx4 v{VK[i]}, s[{SK}:{SK+3}], s{sKO} offen offset:{1024*i}{nt} lds")
    a(f"s_addk_i32 m0, 4096")
    a(f"s_addk_i32 s{sMK}, 8192")
    for i in range(4): a(f"buffer_load_dwordx4 v{VK[i]}, s[{SK}:{SK+3}], s{sT} offen offset:{1024*i}{nt} lds")
    push(256)
    a(f"s_bitset0_b32 s{sMK}, 16")
    a(f"s_cmp_lg_u32 s{sK}, {K0}")
    if N > 16: a(f"s_waitcnt vmcnt(24)")
    a(f"ds_write_b32 v{vLN}, v{vT}")
    a("s_cbranch_scc1 L_v")
    nb(4)
    a("s_waitcnt lgkmcnt(0)")
    a("s_barrier")
    nb(5)
    if diag == 3:
        a("s_waitcnt lgkmcnt(0)")
        for i in range(8): a(f"v_writelane_b32 v{DG}, s{80+2*min(i,5)}, {9+i}")
    a.label("L_v", flush=False)
    a(f"""
    s_sub_u32 s{sT2}, s{sK}, 7
    s_cbranch_scc1 L_noel
    """)
    a.label("L_chk", flush=False)
    a(f"""
    ds_read_b32 v{vP}, v{vPA}
    s_sub_u32 s{sBUD}, s{sBUD}, 1
    s_cbranch_scc1 L_end
    s_and_b32 s{sT}, s{sT2}, 3
    s_waitcnt lgkmcnt(0)
    v_readlane_b32 s{sX}, v{vP}, s{sT}
    s_lshr_b32 s{sT}, s{sT2}, 2
    s_cmp_gt_u32 s{sX}, s{sT}
    s_cbranch_scc0 L_chk
    s_sub_u32 s{sT}, s{sK}, {3+E}
    s_cmp_lt_u32 s{sT}, 4
    s_cbranch_scc1 L_next
    """)
    if el: a(f"""
    s_cmp_lg_u32 s{sT2}, {32-el}
    s_cbranch_scc1 L_noel
    s_mov_b64 exec, 1
    global_atomic_add v{vEL}, v{vTA}, v{v64}, s[{sOUT if ed else sWS}:{(sOUT if ed else sWS)+1}] sc0 sc1{atf}
    s_mov_b64 exec, -1
    """)
    a.label("L_noel", flush=False)
    a(f"""
    s_mov_b32 m0, s{sMV}
    s_add_u32 s{sT}, s{sVO}, 16384
    """)
    if fb:
        a(f"s_cmp_ge_u32 s{sK}, s52")
        if Nf < 63: a(f"s_waitcnt vmcnt({Nf})")
        a("s_cbranch_scc1 L_nw")
    a(f"s_waitcnt vmcnt({N})")
    if fb: a.label("L_nw", flush=False)
    for i in range(4): a(f"buffer_load_dwordx4 v{VV[i]}, s[{SV}:{SV+3}], s{sVO} offen offset:{1024*i}{nt} lds")
    a(f"s_addk_i32 m0, 4096")
    a(f"s_addk_i32 s{sMV}, 8192")
    for i in range(4): a(f"buffer_load_dwordx4 v{VV[i]}, s[{SV}:{SV+3}], s{sT} offen offset:{1024*i}{nt} lds")
    a(f"s_add_u32 s{sVO}, s{sT}, 16384")
    a(f"s_bitset0_b32 s{sMV}, 17")
    a(f"s_bitset1_b32 s{sMV}, 16")
    if fb:
        a(f"s_cmp_ge_u32 s{sK}, s52\n s_cbranch_scc1 L_next")
        a(f"v_readfirstlane_b32 s{sX}, v{vEL}")
    push(512)
    if fb:
        a(f"s_cmp_eq_u32 s{sX}, s{sC0}\n s_cselect_b32 s52, {39-fw}, {39-fb}")
    if N > 16: a(f"s_waitcnt vmcnt(24)")
    a(f"v_and_or_b32 v{vT}, v{vEL}, s{sC0}, v{vT}")
    a(f"ds_write_b32 v{vLN}, v{vT}")
    if diag:
        a(f"s_cmp_eq_u32 s{sK}, 3")
        a("s_cbranch_scc0 L_d1")
        stampc(2)
        a.label("L_d1", flush=False)
        a(f"s_cmp_eq_u32 s{sK}, 19")
        a("s_cbranch_scc0 L_d2")
        stampc(3)
        a.label("L_d2", flush=False)
    a.label("L_next", flush=False)
    a(f"""
    s_add_u32 s{sK}, s{sK}, 1
    s_add_u32 s{sKO}, s{sKO}, {STEP}
    s_cmp_lt_u32 s{sK}, 32
    s_cbranch_scc1 L_k
    s_cmp_lt_u32 s{sK}, 39
    s_cbranch_scc1 L_v
    """)
    stampc(4)
    def lfin():
        if diag:
            stampc(5)
            a(f"s_sub_u32 s{sT}, 0x100000, s{sBUD}")
            a(f"v_writelane_b32 v{DG}, s{sT}, 6")
            a(f"s_or_b32 s{sX}, s{sX}, 32")
            a(f"v_writelane_b32 v{DG}, s{sX}, 8")
            a("s_mov_b64 exec, -1")
            a(f"v_mov_b32 v{LANE}, v0")
            a.flush()
            a("s_branch L_fin")
        else:
            a("s_endpgm")
    a(f"""
    v_readfirstlane_b32 s{sX}, v{vEL}
    s_cmp_eq_u32 s{sX}, s{sC0}
    s_cbranch_scc1 L_lwin
    """)
    def catchup(f, extra=0):
        for j in range(1, f):
            a(f"v_add_u32 v{vT}, 512, v{vT}\n s_waitcnt vmcnt({8*(3+f-j)+extra})\n ds_write_b32 v{vLN}, v{vT}")
        a(f"s_waitcnt vmcnt({24+extra}) lgkmcnt(0)" if f else "s_waitcnt lgkmcnt(0)")
        a("s_barrier")
    catchup(fb)
    for p in range(2, -1, -1):
        a(f"s_waitcnt vmcnt({8*p})")
        a("s_barrier")
    lfin()
    a.label("L_lwin", flush=False)
    npl = 0
    def lpoll():
        a(f"global_load_dword v{vP}, v{vPA}, s[{sWS}:{sWS+1}]{glf}")
    if lp:
        a(f"""
        v_lshrrev_b32 v7, 3, v0
        v_add_u32 v7, 1, v7
        v_xor_b32 v7, s{sPART}, v7
        s_lshl_b32 s{sT}, s{sHEAD}, {SL+2}
        v_lshl_add_u32 v7, v7, {SL}, s{sT}
        v_and_b32 v{vPA}, 7, v0
        v_lshl_add_u32 v{vPA}, v{vPA}, 7, v7
        s_mov_b64 exec, 0xffffff
        """)
    if lp & 1: lpoll(); npl += 1
    a(f"""
    s_mov_b32 s51, 0x9e3779b9
    """)
    catchup(fw, npl)
    a(f"""
    s_atomic_add s51, s[{sWS}:{sWS+1}], s50
    s_waitcnt vmcnt({16+npl})
    s_barrier
    """)
    if lp & 2: lpoll(); npl += 1
    if lp & 8:
        a(f"s_waitcnt vmcnt({12+npl})"); lpoll(); npl += 1
    a(f"s_waitcnt vmcnt({8+npl})\n s_barrier")
    if lp & 16:
        a(f"s_waitcnt vmcnt({6+npl})"); lpoll(); npl += 1
    if lp & 4:
        a(f"s_waitcnt vmcnt({4+npl})"); lpoll(); npl += 1
    if lp & 16:
        a(f"s_waitcnt vmcnt({2+npl})"); lpoll(); npl += 1
    a(f"s_waitcnt vmcnt({npl})\n s_barrier")
    lfin()
    a.label("L_loop")
    a(f"s_lshl_b32 s{sTHR}, s{sKK}, 9")
    a(f"s_bitset1_b32 s{sTHR}, 8")
    poll()
    stampm()
    for tl in range(2):
        for j in range(4): a(f"ds_read_b128 v[{KR+16*tl+4*j}:{KR+16*tl+4*j+3}], v{RK[j]} offset:{4096*tl}")
    a(f"""
    s_add_u32 s{sIT}, s{sIT}, 1
    v_mov_b32 v{cW}, s{sIT}
    """)
    for j in range(4): a(f"v_xor_b32 v{RK[j]}, 0x8000, v{RK[j]}")
    a("s_waitcnt lgkmcnt(0)")
    a(f"ds_write_b32 v{cPR}, v{cW} offset:256")
    def scale(tl, j):
        o = []
        for r in range(4):
            x = KR + 16 * tl + 4 * j + r
            t0 = T + 2 * (r & 1); t1 = t0 + 1
            o += [f"v_lshlrev_b32 v{t0}, 16, v{x}",
                  f"v_and_b32 v{t1}, s{sMASK}, v{x}",
                  f"v_mul_f32 v{t0}, s{sSCALE}, v{t0}",
                  f"v_mul_f32 v{t1}, s{sSCALE}, v{t1}",
                  f"v_cvt_pk_bf16_f32 v{x}, v{t0}, v{t1}"]
        for r in range(4):
            x = KR + 16 * tl + 4 * j + r
            acc = SQA + 2 * tl + (r & 1)
            if j == 0 and r < 2: o.append(f"v_dot2_f32_bf16 v{acc}, v{x}, v{x}, 0")
            else: o.append(f"v_dot2_f32_bf16 v{acc}, v{x}, v{x}, v{acc}")
        return o
    def projm(tl, j):
        o = []
        for t in range(4):
            d = PR + 16 * tl + 4 * t
            om = OM + 16 * t + 4 * j
            k = KR + 16 * tl + 4 * j
            c = "0" if j == 0 else f"v[{d}:{d+3}]"
            o.append(f"v_mfma_f32_16x16x32_bf16 v[{d}:{d+3}], v[{om}:{om+3}], v[{k}:{k+3}], {c}")
        return o
    def sqsum(tl):
        acc = SQA + 2 * tl
        return [f"v_add_f32 v{acc}, v{acc}, v{acc+1}"]
    def sqm(tl):
        acc = SQA + 2 * tl; d = SQD + 4 * tl
        return [f"v_mfma_f32_16x16x4_f32 v[{d}:{d+3}], v{NH}, v{acc}, 0"]
    def phi(tl):
        d = SQD + 4 * tl
        o = [f"v_cvt_pk_bf16_f32 v{d}, 0, v{d}"]
        for t in range(4):
            p = [PR + 16 * tl + 4 * t + r for r in range(4)]
            for x in p: o.append(f"v_cvt_pk_bf16_f32 v{x}, 0, v{x}")
            for x in p: o.append(f"v_add_f32 v{x}, v{d}, v{x}")
            for x in p: o.append(f"v_cvt_pk_bf16_f32 v{x}, 0, v{x}")
            for x in p: o.append(f"v_mul_f32 v{x}, s{sL2E}, v{x}")
            for x in p: o.append(f"v_exp_f32 v{x}, v{x}")
            h = PH + 8 * tl + 2 * t
            o.append(f"v_cvt_pk_bf16_f32 v{h}, v{p[0]}, v{p[1]}")
            o.append(f"v_cvt_pk_bf16_f32 v{h+1}, v{p[2]}, v{p[3]}")
        return o
    def wm(tl):
        d = WD + 4 * tl; h = PH + 8 * tl
        return [f"v_mfma_f32_16x16x32_bf16 v[{d}:{d+3}], v[{h}:{h+3}], v[{PQ}:{PQ+3}], v[{C}:{C+3}]",
                f"v_mfma_f32_16x16x32_bf16 v[{d}:{d+3}], v[{h+4}:{h+7}], v[{PQ+4}:{PQ+7}], v[{d}:{d+3}]"]
    def bm(t): return KR + 4 * t if t < 8 else BD
    steps = [(tl, j) for tl in range(2) for j in range(4)]
    body = scale(0, 0)
    for i in range(1, 8):
        tl, j = steps[i]
        side = projm(*steps[i - 1])
        main = scale(tl, j)
        if steps[i - 1] == (0, 3):
            main = main[:4] + sqsum(0) + main[4:]
            side = side + sqm(0)
        body += interleave(main, side, 5, lead=2)
    ph0 = phi(0)
    ph0 = ph0[:4] + sqsum(1) + ph0[4:]
    for x in body: a(x)
    a.label("L_phi0", flush=False)
    for x in interleave(ph0, projm(1, 3) + sqm(1), 4, lead=1): a(x)
    a(f"s_cmp_eq_u32 s{sIT}, -1")
    a.flush()
    a("s_cbranch_scc1 L_qpost")
    for x in interleave(phi(1), wm(0), 6, lead=3): a(x)
    for x in wm(1): a(x)
    a(f"s_add_u32 s{sKK}, s{sKK}, 4")
    a(f"s_lshl_b32 s{sTHR}, s{sKK}, 9")
    a(f"s_cmp_lt_u32 s{sKK}, 8")
    for t in (8, 0, 1, 2, 3, 4, 5, 6, 7):
        for i in range(4): a(f"v_cndmask_b32_e64 v{bm(t)+i}, 0, v{WPK+i}, s[{sMS+2*t}:{sMS+2*t+1}]")
        if t == 0: a(f"v_mfma_f32_16x16x32_bf16 v[{ACC}:{ACC+3}], v[{BD}:{BD+3}], v[{ONES}:{ONES+3}], v[{ACC}:{ACC+3}]")
    for i in range(4): a(f"v_cvt_pk_bf16_f32 v{WPK+i}, v{WD+2*i}, v{WD+2*i+1}")
    a("s_waitcnt vmcnt(0)")
    a("s_cbranch_scc1 L_loop")
    if E > 4: a(f"s_cmp_lt_u32 s{sKK}, {8+E}\n s_cselect_b32 s{sTHR}, 0, s{sTHR}")
    poll()
    stampm()
    for t in range(8):
        r = PR + 4 * t
        a(f"ds_read_b64_tr_b16 v[{r}:{r+1}], v{RV[t]}")
        a(f"ds_read_b64_tr_b16 v[{r+2}:{r+3}], v{RV[t]} offset:4096")
    a(f"s_cmp_lt_u32 s{sKK}, 32")
    for t in range(8):
        r = PR + 4 * t
        a(f"s_waitcnt lgkmcnt({14-2*t})")
        a(f"v_mfma_f32_16x16x32_bf16 v[{ACC}:{ACC+3}], v[{bm(t)}:{bm(t)+3}], v[{r}:{r+3}], v[{ACC}:{ACC+3}]")
        a(f"v_xor_b32 v{RV[t]}, 0x8000, v{RV[t]}")
    a("s_cbranch_scc1 L_loop")
    for i in range(4): a(f"v_cndmask_b32_e64 v{BD+i}, 0, v{WPK+i}, s[{sMS+16}:{sMS+17}]")
    a(f"s_or_b64 s[{sMS+10}:{sMS+11}], s[{sMS+10}:{sMS+11}], s[{sMS+12}:{sMS+13}]")
    a(f"v_cndmask_b32_e64 v{WD}, 0, v{WPK}, s[{sMS+8}:{sMS+9}]")
    a(f"v_mfma_f32_16x16x32_bf16 v[{ACC}:{ACC+3}], v[{BD}:{BD+3}], v[{ONES}:{ONES+3}], v[{ACC}:{ACC+3}]")
    for i in range(1, 4): a(f"v_cndmask_b32_e64 v{WD+i}, 0, v{WPK+i}, s[{sMS+8}:{sMS+9}]")
    for i in range(4): a(f"v_cndmask_b32_e64 v{WD+4+i}, 0, v{WPK+i}, s[{sMS+10}:{sMS+11}]")
    a(f"""
    ds_write_b128 v{cDEP}, v[{WD}:{WD+3}] offset:1024
    ds_write_b128 v{cDEP}, v[{ACC}:{ACC+3}]
    ds_write_b128 v{cDEP}, v[{WD+4}:{WD+7}] offset:2048
    v_mov_b32 v{GB}, 0
    v_mov_b32 v{GB+1}, v{EP}
    v_mov_b32 v{GB+2}, 0
    v_mov_b32 v{GB+3}, 0
    s_mov_b32 s{sMS}, 0
    s_mov_b32 s{sMS+1}, s{sMASK}
    s_waitcnt lgkmcnt(0)
    """)
    stampc(58)
    a("s_barrier")
    stampc(59)
    def trs(j):
        r = PR + 8 * j
        for h in range(2):
            a(f"ds_read_b64_tr_b16 v[{r+4*h}:{r+4*h+1}], v{TV+h} offset:{8192*j}")
            a(f"ds_read_b64_tr_b16 v[{r+4*h+2}:{r+4*h+3}], v{TV+h} offset:{8192*j+4096}")
    def mms(j, w=True):
        r = PR + 8 * j
        for h in range(2):
            if w: a(f"s_waitcnt lgkmcnt({2-2*h})")
            a(f"v_mfma_f32_16x16x32_bf16 v[{ACC}:{ACC+3}], v[{KR+8*j+4*h}:{KR+8*j+4*h+3}], v[{r+4*h}:{r+4*h+3}], v[{ACC}:{ACC+3}]")
    ng = [0]
    def gload(B, restore=True):
        a(f"s_mov_b32 exec_hi, 0xffff")
        a(f"global_load_dwordx4 v[{B}:{B+3}], v{GA}, s[{sWS}:{sWS+1}]{glf}")
        if restore: a(f"s_mov_b32 exec_hi, -1")
    def wload():
        l = "L_nb%d" % ng[0]; ng[0] += 1
        a(f"s_cbranch_scc0 {l}")
        gload(GB)
        a.label(l, flush=False)
    a(f"ds_read_b32 v{cW}, v{cLN}")
    for j in range(4): a(f"ds_read_b128 v[{PH+4*j}:{PH+4*j+3}], v{cRD} offset:{8192*j}")
    for j in range(4):
        for h in range(2): a(f"ds_read_b128 v[{KR+8*j+4*h}:{KR+8*j+4*h+3}], v{cL16} offset:{8192*j+1024+1024*h}")
    a("s_waitcnt lgkmcnt(8)")
    trs(0)
    a(f"v_readfirstlane_b32 s{sX}, v{cW}")
    for i in range(3):
        a(f"v_add_f32 v{PH+i}, v{PH+i}, v{PH+4+i}")
        a(f"v_add_f32 v{PH+8+i}, v{PH+8+i}, v{PH+12+i}")
    a(f"""
    s_and_b32 s{sT2}, s{sX}, 0xc0
    s_cmpk_eq_u32 s{sT2}, 0xc0
    v_add_f32 v{ACC}, v{PH}, v{PH+8}
    v_add_f32 v{ACC+1}, v{PH+1}, v{PH+9}
    v_add_f32 v{DENR}, v{PH+2}, v{PH+10}
    v_cndmask_b32_e64 v{ACC}, v{ACC}, v{ACC+1}, s[{sMS}:{sMS+1}]
    v_add_f32 v{T}, {hex(f2u(1e-6))}, v{DENR}
    """)
    if bp == 0: wload()
    mms(0)
    a("s_barrier")
    trs(1)
    if bp == 1: wload()
    mms(1)
    a("s_barrier")
    if bp == 2: wload()
    trs(2)
    mms(2)
    if bp == 3: wload()
    stampc(61)
    a("s_barrier")
    trs(3)
    a("s_cbranch_scc1 L_win")
    mms(3)
    a(f"s_mov_b32 exec_lo, 0")
    a(f"s_mov_b32 exec_hi, {0xff if ab & 1 else 0xffff}")
    if not ab & 32: a(f"global_store_dwordx4 v{cWS}, v[{DENR}:{DENR+3}], s[{sWS}:{sWS+1}]{asf}")
    if diag: a("s_mov_b64 exec, -1")
    a("s_branch L_fin" if diag else "s_endpgm")
    a.label("L_retry", flush=False)
    if diag: a(f"s_add_u32 s{sIT}, s{sIT}, 256")
    a(f"""
    s_mov_b32 exec_hi, 0xffff
    s_sub_u32 s{sBUD}, s{sBUD}, 16
    s_cbranch_scc1 L_end
    """)
    if cz:
        a(f"""
        s_waitcnt vmcnt(0)
        v_mov_b64 v[{GB}:{GB+1}], v[{GC}:{GC+1}]
        v_mov_b64 v[{GB+2}:{GB+3}], v[{GC+2}:{GC+3}]
        global_load_dwordx4 v[{GC}:{GC+3}], v{GA}, s[{sWS}:{sWS+1}]{glf}
        """)
    else:
        a(f"global_load_dwordx4 v[{GB}:{GB+3}], v{GA}, s[{sWS}:{sWS+1}]{glf}")
    a("s_mov_b32 exec_hi, -1")
    a("s_branch L_chkb")
    a.label("L_win", flush=False)
    if cz: gload(GC)
    mms(3)
    a.label("L_chkb", flush=False)
    a(f"""
    s_waitcnt vmcnt({cz})
    v_cmp_ne_u32 vcc, v{EP}, v{GB+1}
    {"" if nog else "s_cbranch_vccnz L_retry"}
    """)
    stampc(62)
    a(f"""
    v_add_f32_dpp v{GB}, v{GB}, v{GB} row_bcast:15 row_mask:0xa bank_mask:0xf
    v_permlane16_swap_b32 v{GB+2}, v{GB+3}
    s_nop 0
    v_add_f32_dpp v{GB}, v{GB}, v{GB} row_bcast:31 row_mask:0xc bank_mask:0xf
    v_add_f32 v{GB+2}, v{GB+2}, v{GB+3}
    v_add_f32 v{GB}, v{GB}, v{T}
    v_add_f32 v{GB+3}, v{GB+2}, v{ACC}
    v_permlane32_swap_b32 v{GB+1}, v{GB+2}
    v_rcp_f32 v{GB}, v{GB}
    s_mov_b32 exec_lo, 0
    v_add_f32 v{GB+3}, v{GB+3}, v{GB+1}
    v_mul_f32 v{GB+3}, v{GB+3}, v{GB}
    v_cvt_pk_bf16_f32 v{GB+3}, v{GB+3}, v{GB+3}
    """)
    if not ab & 8: a(f"global_store_short v{cOUT}, v{GB+3}, s[{sOUT}:{sOUT+1}]{outsc}")
    if diag:
        a("s_mov_b64 exec, -1")
        stampc(5)
        if diag == 4:
            a("s_waitcnt vmcnt(0)")
            stampc(6)
        a.label("L_fin")
        a(f"s_memrealtime s[{sRAW}:{sRAW+1}]")
        a(f"s_getreg_b32 s76, hwreg(HW_REG_XCC_ID)")
        a("s_waitcnt lgkmcnt(0)")
        a(f"v_writelane_b32 v{DG}, s{sRAW}, 7")
        a(f"v_writelane_b32 v{DG}, s76, 63")
        a(f"v_writelane_b32 v{DG}, s{sIT}, 60")
        a(f"""
        s_mul_i32 s{sT}, s2, 5
        s_lshr_b32 s{sT2}, s{sW}, 6
        s_add_u32 s{sT}, s{sT}, s{sT2}
        s_lshl_b32 s{sT}, s{sT}, 8
        s_add_u32 s{sT}, s{sT}, 0x100000
        v_lshl_add_u32 v{T}, v{LANE}, 2, s{sT}
        global_store_dword v{T}, v{DG}, s[{sWS}:{sWS+1}]
        """)
    a.label("L_end")
    a("s_endpgm")
    a.label("L_qpost")
    a(f"v_mov_b32 v{T+2}, {hex(f2u(1e-6) - (3 << 23))}")
    a(f"s_mov_b32 s{sT}, {hex(f2u(0.015625))}")
    for i in range(8):
        x = PH + i
        a(f"""
        v_lshlrev_b32 v{T}, 16, v{x}
        v_and_b32 v{T+1}, s{sMASK}, v{x}
        v_fma_f32 v{T}, v{T}, s{sT}, v{T+2}
        v_fma_f32 v{T+1}, v{T+1}, s{sT}, v{T+2}
        v_cvt_pk_bf16_f32 v{PQ+i}, v{T}, v{T+1}
        """)
    a(f"v_mfma_f32_16x16x32_bf16 v[{C}:{C+3}], v[{ONES}:{ONES+3}], v[{PQ}:{PQ+3}], 0")
    a(f"s_add_u32 s{sEP}, s{sEP}, 0x9e3779b9")
    a(f"v_mfma_f32_16x16x32_bf16 v[{C}:{C+3}], v[{ONES}:{ONES+3}], v[{PQ+4}:{PQ+7}], v[{C}:{C+3}]")
    a(f"""
    s_mov_b32 s{sIT}, 0
    v_mov_b32 v{EP}, s{sEP}
    """)
    if el and not ed: a(f"""
    s_cmp_eq_u32 s{sEP}, s{sCT+1}
    s_cselect_b32 s{sT}, 4, s{sC}
    s_cmp_lg_u32 s{sT}, {cs}
    s_cbranch_scc1 L_c2
    {f"s_cmp_lg_u32 s{sPART}, 0" if ab & 2 else ""}
    {"s_cbranch_scc1 L_c2" if ab & 2 else ""}
    s_mov_b64 exec, 1
    v_mov_b32 v{CT}, 0
    v_mov_b32 v{CT+1}, s{sEP}
    v_mov_b32 v{CT+2}, s{sCT}
    v_mov_b32 v{CT+3}, s{sCT+1}
    global_atomic_cmpswap_x2 v{cAT}, v[{CT}:{CT+3}], s[{sWS}:{sWS+1}] sc1{csf}
    s_mov_b64 exec, -1
    """)
    a.label("L_c2", flush=False)
    a("s_nop 1")
    for i in range(4): a(f"v_mul_f32 v{C+i}, {hex(f2u(1e-6) + (3 << 23))}, v{C+i}")
    stampc(3)
    a.flush()
    a("s_branch L_loop")
    a.raw("L_codeend:")
    a.raw(f""".section .rodata,"a"
.p2align 6
.amdhsa_kernel {NAME}_kernel
  .amdhsa_next_free_vgpr 256
  .amdhsa_next_free_sgpr {96 if diag == 3 else 80}
  .amdhsa_accum_offset 256
  .amdhsa_group_segment_fixed_size 0
  .amdhsa_kernarg_size 56
  .amdhsa_user_sgpr_count 2
  .amdhsa_user_sgpr_kernarg_segment_ptr 1
  .amdhsa_system_sgpr_workgroup_id_x 1
.end_amdhsa_kernel""")
    return a

if __name__ == "__main__":
    out = sys.argv[1]
    kw = dict(x.split("=") for x in sys.argv[2:])
    for key in ("nt", "outsc", "asf", "glf"):
        if key in kw: kw[key] = "" if kw[key] == "0" else " " + kw[key].replace("+", " ")
    a = gen(**kw)
    open(out, "w").write(a.text())
    print("wrote", out, "nops inserted:", a.nops)
```

```python
import sys, struct
from asmlib import Asm, interleave

NAME = "standalone__linear_kernel_rfa__decode"
def f2u(x): return struct.unpack("<I", struct.pack("<f", x))[0]

def gen(nt=" nt", wgmap="mix", diag="0", outsc="", pf="1", al="12", N="16", el="3", K0="4", cs="0", E="8", nog="0", ab="0",
        asf=" sc1", glf=" sc1", lp="7", cz="0", bp="2", SL="11", Nd="16", fb="0", Nf="63", fw="0", se="0", si="0", ii="0", dg="0", dk="16", dm="0", cp="", cm="0", gs="0", of="0", R="0", ks="7", ke="31", xb="0", raf="", rlf=" sc1", xs="0", PP="0"):
    E = int(E); nog = int(nog); ab = int(ab); lp = int(lp); cz = int(cz); bp = int(bp); SL = int(SL); Nd = int(Nd); fb = int(fb); Nf = int(Nf); fw = int(fw); se = int(se); si = int(si); ii = int(ii); dg = int(dg); dk = int(dk); dm = int(dm); cp = [tuple(int(y) for y in x.split(":")) for x in cp.split(",") if x]; cm = int(cm); gs = int(gs); of = int(of); R = int(R); ks = int(ks); ke = int(ke); xb = int(xb, 0); xs = int(xs, 0); PP = int(PP)
    if PP: cz = 1
    if xs: dm = 1
    diag = int(diag); pf = int(pf); N = int(N); el = int(el); K0 = int(K0); cs = int(cs)
    if se: cs = se - 1; lp = 0; fb = 0
    omf = qf = pff = atf = csf = ""; oml = 0; tlb = 0; pt = 0; ed = 0
    P = 3
    a = Asm()
    VRING = 65536; OMB = 131072; LND = 147712; PRG = LND + 256; RED = 151552
    LDS = RED + 4096
    EPOCH = 0x80000; STEP = 32768
    SK, SV, SO, SQ = 4, 8, 12, 16
    sOUT, sWS = 20, 24
    sW, sHEAD, sPART, sT, sT2, sX, sBUD = 26, 27, 28, 29, 30, 31, 32
    sK, sKO, sMK, sMV, sVO = 33, 34, 36, 37, 39
    sF = 40; sC0 = 49
    VK = [176, 177, 178, 179]; VV = [5, 6, 17, 18]; vLN = 8; vPA = 9; vT = 10; vP = 11; vTA = 12; vEL = 15; v64 = 16
    sC, sKK, sTHR, sMASK, sSCALE, sL2E, sIT, sEP = 33, 34, 35, 36, 37, 38, 39, 41
    sMS = 42
    sCT = 62
    RK = [8, 9, 10, 11]; RV = list(range(12, 20))
    NH = 20; LANE = 21; cLN = 1; cPR = 2; cDEP = 3; cW = 4; EP = 151; DENR = 150; cRD = 5; cWS = 6; cOUT = 22; cAT = 161
    ONES = 24; C = 28; PQ = 32; WPK = 40; WD = 44; SQD = 52; SQA = 60
    KR = 64; PR = 96; PH = 128; T = 144; ACC = 152; BD = 156; DUM = 160; DG = 164; XR = 168
    CT = 180; GA = 186; cL16 = 187; TV = 188; OM = 192; GB = OM; GC = OM + 4
    sRAW = 72
    def stampc(i):
        if diag:
            a(f"s_memrealtime s[{sRAW}:{sRAW+1}]")
            a("s_waitcnt lgkmcnt(0)")
            a(f"v_writelane_b32 v{DG}, s{sRAW}, {i}")
    def stampm():
        if diag:
            a(f"s_memrealtime s[{sRAW}:{sRAW+1}]")
            a("s_waitcnt lgkmcnt(0)")
            a(f"v_writelane_b32 v{DG}, s{sRAW}, m0")
            a("s_add_u32 m0, m0, 1")
    def nb(i):
        if diag == 3: a(f"s_memrealtime s[{80+2*i}:{81+2*i}]")
    npoll = [0]
    def poll():
        l = "L_poll%d" % npoll[0]; npoll[0] += 1
        a.label(l, flush=False)
        a(f"""
        ds_read_b32 v{cW}, v{cLN}
        s_sub_u32 s{sBUD}, s{sBUD}, 1
        s_cbranch_scc1 L_end
        s_waitcnt lgkmcnt(0)
        v_readfirstlane_b32 s{sX}, v{cW}
        s_cmp_ge_u32 s{sX}, s{sTHR}
        s_cbranch_scc0 {l}
        """)

    hdr = open("cdna_kernels/%s.s.ref" % NAME).read().split("; Override launch")[0]
    a.raw(hdr.rstrip())
    a.raw("; @launch grid=(256,1,1) block=(320,1,1) lds=%d" % LDS)
    a.raw('.amdgcn_target "amdgcn-amd-amdhsa--gfx950"\n.text\n.globl %s_kernel\n.p2align %s\n.p2align 8\n.type %s_kernel,@function' % (NAME, al, NAME))
    a.label(NAME + "_kernel")
    if diag: a("s_memrealtime s[74:75]")
    a(f"""
    s_load_dwordx2 s[{SK}:{SK+1}], s[0:1], 8
    s_load_dwordx2 s[{SO}:{SO+1}], s[0:1], 24
    s_load_dwordx2 s[{SQ}:{SQ+1}], s[0:1], 0
    """)
    if pf:
        a("s_getpc_b64 s[60:61]")
        a.label("L_pc", flush=False)
        a(f"""
        v_subrev_u32 v7, 64, v0
        v_lshlrev_b32 v7, 7, v7
        v_cmp_gt_u32 vcc, L_codeend-L_pc-3, v7
        v_mov_b32 v{DUM+3}, s61
        s_cbranch_vccz L_nopf
        s_mov_b64 exec, vcc
        v_add_co_u32 v{DUM+2}, vcc, s60, v7
        v_addc_co_u32 v{DUM+3}, vcc, 0, v{DUM+3}, vcc
        global_load_dword v{DUM}, v[{DUM+2}:{DUM+3}], off{pff}
        s_mov_b64 exec, -1
        """)
        a.label("L_nopf", flush=False)
    a(f"""
    v_readfirstlane_b32 s{sW}, v0
    v_bfe_u32 v22, v0, 4, 2                    ; q = lane>>4
    v_and_b32 v23, 15, v0                      ; n = lane&15
    s_cmp_ge_u32 s2, 256
    s_cbranch_scc1 L_end
    v_xor_b32 v7, v22, v23
    v_lshlrev_b32 v7, 4, v7
    v_lshl_add_u32 v{VK[0]}, v22, 8, v7
    v_xor_b32 v{VK[1]}, 0xc40, v{VK[0]}
    v_xor_b32 v{VK[2]}, 0x1880, v{VK[0]}
    v_xor_b32 v{VK[3]}, 0x24c0, v{VK[0]}
    """)
    if wgmap == "xcd":
        a(f"""
        s_and_b32 s{sHEAD}, s2, 7
        s_lshr_b32 s{sT}, s2, 5
        s_lshl_b32 s{sT}, s{sT}, 3
        s_or_b32 s{sHEAD}, s{sHEAD}, s{sT}
        s_bfe_u32 s{sPART}, s2, 0x20003
        """)
    elif wgmap == "lin":
        a(f"""
        s_lshr_b32 s{sHEAD}, s2, 2
        s_and_b32 s{sPART}, s2, 3
        """)
    elif wgmap == "mix":
        a(f"""
        s_bfe_u32 s{sPART}, s2, 0x20001
        s_xor_b32 s{sT}, s2, s{sPART}
        s_and_b32 s{sT}, s{sT}, 1
        s_lshr_b32 s{sHEAD}, s2, 3
        s_lshl1_add_u32 s{sHEAD}, s{sHEAD}, s{sT}
        """)
    a(f"""
    s_cmp_lg_u32 s{sW}, 0
    s_cbranch_scc1 L_cons
    """)
    a(f"""
    s_setprio 3
    s_brev_b32 s{SK+2}, 32
    s_mov_b32 s{SK+3}, 0x20000
    s_lshl_b32 s{sKO}, s{sHEAD}, 10
    s_add_u32 s{sKO}, s{sKO}, s{sPART}
    s_lshl_b32 s{sKO}, s{sKO}, 10
    s_mov_b32 m0, 0
    """)
    if diag:
        a("s_waitcnt lgkmcnt(0)")
        a(f"v_mov_b32 v{DG}, 0")
        a(f"v_writelane_b32 v{DG}, s74, 0")
        if diag != 3: stampc(1)
    a("s_waitcnt lgkmcnt(0)")
    nb(0)
    a.label("L_k0")
    for i in range(4): a(f"buffer_load_dwordx4 v{VK[i]}, s[{SK}:{SK+3}], s{sKO} offen offset:{1024*i}{nt} lds")
    a(f"""
    s_addk_i32 m0, 4096
    s_addk_i32 s{sKO}, 16384
    s_cmpk_lt_u32 m0, {3*8192}
    s_cbranch_scc1 L_k0
    s_branch L_setup
    """)
    a.label("L_cons")
    a(f"""
    v_and_b32 v{LANE}, 63, v0
    s_lshl_b32 s{sT}, s{sHEAD}, 8
    v_lshl_add_u32 v{KR}, v{LANE}, 2, s{sT}
    s_lshl_b32 s{sT2}, s{sW}, 6
    s_add_u32 m0, s{sT2}, {OMB - 4096}
    s_lshl4_add_u32 s{sT2}, s{sW}, {hex(2**32 - 1024)}
    s_movk_i32 s{SO+2}, 16384
    s_mov_b32 s{SO+3}, 0x20000
    s_waitcnt lgkmcnt(0)
    """)
    if oml: a(f"s_mov_b32 s66, s{sT2}\n s_mov_b32 s67, m0")
    else:
        for i in range(4): a(f"buffer_load_dwordx4 v{VK[i]}, s[{SO}:{SO+3}], s{sT2} offen offset:{1024*i}{omf} lds")
    a(f"""
    global_load_dword v{KR}, v{KR}, s[{SQ}:{SQ+1}]{qf}
    s_load_dwordx2 s[{sWS}:{sWS+1}], s[0:1], 48
    s_load_dwordx2 s[{sOUT}:{sOUT+1}], s[0:1], 32
    s_lshr_b32 s{sC}, s{sT2}, 10
    s_mov_b32 s{sBUD}, 0x100000
    v_lshlrev_b32 v{cLN}, 2, v{LANE}
    v_add_u32 v{cLN}, {LND}, v{cLN}
    s_lshl_b32 s{sT2}, s{sC}, 8
    v_add_u32 v{cPR}, s{sT2}, v{cLN}
    v_mov_b32 v{ACC}, 0
    ds_write_b32 v{cPR}, v{ACC} offset:256
    {f"ds_write_b32 v{cLN}, v{ACC} offset:1280" if cp else ""}
    s_lshl_b32 s{sT2}, s{sC}, 13
    v_lshl_add_u32 v7, v23, 8, v7              ; n*256 + ((q^n)*16)
    v_add_u32 v{RK[0]}, s{sT2}, v7
    v_xor_b32 v{RK[1]}, 64, v{RK[0]}
    v_xor_b32 v{RK[2]}, 0x80, v{RK[0]}
    v_xor_b32 v{RK[3]}, 0xc0, v{RK[0]}
    v_add_u32 v{T+4}, {OMB}, v7
    v_xor_b32 v{T+5}, 64, v{T+4}
    v_xor_b32 v{T+6}, 0x80, v{T+4}
    v_xor_b32 v{T+7}, 0xc0, v{T+4}
    s_or_b32 s{sT2}, s{sT2}, {VRING}
    v_lshrrev_b32 v7, 2, v{LANE}
    v_and_b32 v{RV[0]}, 7, v7
    v_lshlrev_b32 v{RV[0]}, 5, v{RV[0]}
    v_lshl_add_u32 v{RV[0]}, v7, 8, v{RV[0]}
    v_and_b32 v7, 3, v{LANE}
    v_lshl_add_u32 v{RV[0]}, v7, 3, v{RV[0]}
    v_add_u32 v{RV[0]}, s{sT2}, v{RV[0]}
    s_add_u32 s{sT2}, s{sT}, {EPOCH}
    v_mov_b32 v{cAT}, s{sT2}
    s_mov_b32 s64, s{sT2}
    s_add_u32 s{sX}, s{sT2}, 128
    s_waitcnt lgkmcnt(0)
    s_load_dword s{sEP}, s[{sWS}:{sWS+1}], s{sX}
    """)
    if el: a(f"s_load_dwordx2 s[{sCT}:{sCT+1}], s[{sWS}:{sWS+1}], s{sT2}")
    if cp: a(f"""
    s_bfe_u32 s68, s2, {hex((gs << 16) | 3)}
    s_lshl_b32 s68, s68, 8
    s_add_u32 s68, s68, 0x90000
    s_load_dword s22, s[{sWS}:{sWS+1}], s68
    """)
    if tlb: a(f"s_load_dword s{sCT+2}, s[{sOUT}:{sOUT+1}], s{sT}")
    if int(pt):
        a(f"s_lshl2_add_u32 s70, s2, s{sC}\n s_lshl_b32 s70, s70, 11\n s_add_u32 s70, s70, 0x200000")
        for i in range(int(pt)): a(f"s_load_dword s71, s[{sWS}:{sWS+1}], s70\n s_add_u32 s70, s70, 128")
    if diag:
        a(f"v_mov_b32 v{DG}, 0")
        a(f"v_writelane_b32 v{DG}, s74, 0")
        a("s_mov_b32 m0, 8")
    a(f"""
    v_lshlrev_b32 v{PH+3}, 4, v22
    s_lshl_b32 s{sT2}, s{sC}, 8
    v_lshl_add_u32 v{cRD}, v23, 4, s{sT2}       ; 256c + 16n
    v_add_u32 v7, 1, v22
    v_xor_b32 v7, s{sPART}, v7
    s_lshl2_add_u32 s{sT2}, s{sC}, -4
    s_lshl4_add_u32 s{sT}, s{sT2}, s{sT}
    v_lshl_add_u32 v{cOUT}, v{LANE}, 1, s{sT}
    s_lshl_b32 s{sT}, s{sHEAD}, {SL+2}
    v_lshl_add_u32 v{GA}, v7, {SL}, s{sT}
    v_add_u32 v{GA}, v{GA}, v{cRD}
    v_lshlrev_b32 v{cL16}, 4, v{LANE}
    """)
    for t in range(1, 8):
        a(f"v_xor_b32 v{RV[t]}, {hex(32*t)}, v{RV[0]}")
    a(f"""
    s_lshl_b32 s{sT}, s{sC}, 13
    v_add_u32 v{cDEP}, s{sT}, v{cL16}
    s_lshl_b32 s{sT}, s{sC}, 10
    s_add_u32 s{sT}, s{sT}, {RED}
    v_add_u32 v{PH+3}, s{sT}, v{PH+3}
    v_lshl_add_u32 v{PH+2}, v{LANE}, 2, s{sT}
    s_lshl2_add_u32 s{sT}, s{sHEAD}, s{sPART}
    s_lshl_b32 s{sT}, s{sT}, {SL}
    v_add_u32 v{cWS}, s{sT}, v{cRD}
    s_mul_i32 s{sT}, s{sC}, 0x2040
    s_bitset1_b32 s{sT}, 15
    v_xor_b32 v{TV}, s{sT}, v{RV[0]}
    v_xor_b32 v{TV+1}, s{sT}, v{RV[1]}
    s_mov_b32 s{sMASK}, 0xffff0000
    s_mov_b32 s{sSCALE}, {hex(f2u(128.0 ** -0.25))}
    s_mov_b32 s{sL2E}, 0x3fb8aa3b
    v_mov_b32 v{NH}, -0.5
    s_mov_b32 s{sMS}, 0x00010001
    s_mov_b32 s{sMS+1}, s{sMS}
    s_mov_b32 s{sMS+16}, 0x44444444
    s_mov_b32 s{sMS+17}, s{sMS+16}
    """)
    for t in range(1, 8): a(f"s_lshl_b64 s[{sMS+2*t}:{sMS+2*t+1}], s[{sMS}:{sMS+1}], {4*(t>>1)+(t&1)}")
    a(f"v_mov_b32 v{ONES}, 0x3f803f80")
    for i in range(1, 4): a(f"v_mov_b32 v{ONES+i}, v{ONES}")
    for i in range(1, 4): a(f"v_mov_b32 v{ACC+i}, 0")
    for i in range(4): a(f"v_mov_b32 v{WPK+i}, 0")
    if oml:
        a("s_mov_b32 m0, s67\n s_nop 0")
        for i in range(4): a(f"buffer_load_dwordx4 v{VK[i]}, s[{SO}:{SO+3}], s66 offen offset:{1024*i} lds")
        if diag: a("s_mov_b32 m0, 8")
    stampc(1)
    a(f"""
    s_mov_b32 s{sIT}, -1
    s_mov_b32 s{sKK}, s{sC}
    s_waitcnt vmcnt(0)
    v_lshlrev_b32 v{T}, 16, v{KR}
    v_and_b32 v{T+1}, s{sMASK}, v{KR}
    v_mul_f32 v{T}, s{sSCALE}, v{T}
    v_mul_f32 v{T+1}, s{sSCALE}, v{T+1}
    v_cvt_pk_bf16_f32 v{T}, v{T}, v{T+1}
    s_barrier
    ds_write_b32 v{PH+2}, v{T}
    s_waitcnt lgkmcnt(0)
    """)
    for jj in range(4): a(f"ds_read_b128 v[{KR+4*jj}:{KR+4*jj+3}], v{PH+3} offset:{64*jj}")
    for j in range(4):
        for t in range(4):
            r = OM + 16 * t + 4 * j
            a(f"ds_read_b128 v[{r}:{r+3}], v{T+4+j} offset:{4096*t}")
    stampc(2)
    for j in range(4):
        a(f"s_waitcnt lgkmcnt({12-4*j})")
        k = KR + 4 * j
        a(f"v_mfma_f32_16x16x32_bf16 v[{SQD}:{SQD+3}], v[{k}:{k+3}], v[{k}:{k+3}], " + (f"v[{SQD}:{SQD+3}]" if j else "0"))
        for t in range(4):
            d = PR + 4 * t; om = OM + 16 * t + 4 * j
            a(f"v_mfma_f32_16x16x32_bf16 v[{d}:{d+3}], v[{om}:{om+3}], v[{k}:{k+3}], " + (f"v[{d}:{d+3}]" if j else "0"))
    a(f"v_mul_f32 v{SQD}, -0.5, v{SQD}")
    a.flush()
    a("s_branch L_phi0")
    a.label("L_setup")
    nb(1)
    a(f"""
    s_load_dwordx2 s[{SV}:{SV+1}], s[0:1], 16
    s_load_dwordx2 s[{sWS}:{sWS+1}], s[0:1], 48
    s_mov_b32 s{sBUD}, 0x100000
    s_mov_b32 s{sK}, 3
    s_movk_i32 s{sMK}, {3*8192}
    s_mov_b32 s{SV+2}, s{SK+2}
    s_mov_b32 s{SV+3}, s{SK+3}
    v_lshlrev_b32 v7, 1, v22
    v_xor_b32 v7, v7, v23
    v_lshlrev_b32 v7, 4, v7
    v_lshl_add_u32 v{VV[0]}, v22, 8, v7
    v_xor_b32 v{VV[1]}, 0xc80, v{VV[0]}
    v_xor_b32 v{VV[2]}, 0x1800, v{VV[0]}
    v_xor_b32 v{VV[3]}, 0x2480, v{VV[0]}
    v_lshlrev_b32 v{vLN}, 2, v0
    v_and_b32 v7, {7 if cp else 3}, v0
    v_lshl_add_u32 v{vPA}, v7, 8, v{vLN}
    v_add_u32 v{vPA}, {PRG}, v{vPA}
    v_add_u32 v{vLN}, {LND}, v{vLN}
    s_lshl_b32 s{sT}, s{sHEAD}, 8
    s_add_u32 s{sT}, s{sT}, {EPOCH}
    v_mov_b32 v{vTA}, s{sT}
    v_mov_b32 v{v64}, 64
    s_movk_i32 s{sC0}, 0xc0
    s_sub_u32 s{sVO}, s{sKO}, {3*STEP}
    s_mov_b32 s{sMV}, {VRING}
    """)
    a(f"s_add_u32 s50, s{sT}, 128")
    if fb: a("s_mov_b32 s52, 64")
    if el: a(f"v_mov_b32 v{vEL}, 0")
    else: a(f"s_cmp_eq_u32 s{sPART}, 0\n s_cselect_b32 s{sT2}, 0xc0, 0\n v_mov_b32 v{vEL}, s{sT2}")
    for i in range(3): a(f"s_movk_i32 s{sF+i}, {(2*(2-i)+1)<<8}")
    a("s_waitcnt lgkmcnt(0)")
    nb(2)
    if diag == 3: a(f"s_waitcnt vmcnt({N})")
    nb(3)
    def push(add):
        a(f"v_mov_b32 v{vT}, s{sF+2}")
        a(f"s_lshl_b32 s{sT}, s{sK}, 9")
        a(f"s_mov_b32 s{sF+2}, s{sF+1}")
        a(f"s_mov_b32 s{sF+1}, s{sF}")
        a(f"s_add_u32 s{sF}, s{sT}, {add}")
    nw = [0]
    def prewait():
        if not dm and not cp and not R:
            a(f"s_waitcnt vmcnt({N})"); return
        l = "L_w%d" % nw[0]; nw[0] += 1
        if cp or R: a("s_cmp_lg_u32 s54, 0")
        else: a(f"s_bitcmp1_b64 s[54:55], s{sK}")
        if Nd > N:
            if Nd < 24: a(f"s_waitcnt vmcnt({Nd})")
            a(f"s_cbranch_scc1 {l}\n s_waitcnt vmcnt({N})")
        else:
            a(f"s_waitcnt vmcnt({N})\n s_cbranch_scc0 {l}\n s_waitcnt vmcnt({Nd})")
        a.label(l, flush=False)
    if cp or R: a("s_mov_b64 s[54:55], 0")
    if R: a(f"""
    s_and_b32 s58, s2, 7
    s_lshl_b32 s59, s58, 2
    s_lshl_b32 s58, s58, 8
    s_add_u32 s58, s58, 0x90000
    v_and_b32 v14, 31, v0
    v_lshl_add_u32 v14, v14, 2, s58
    global_load_dword v19, v14, s[{sWS}:{sWS+1}]{rlf}
    s_lshr_b32 s59, {hex(xb)}, s59
    s_and_b32 s59, s59, 15
    s_sub_u32 s59, {R}, s59
    s_lshr_b32 s58, s2, 3
    s_lshl_b64 s[56:57], 1, s58
    s_mov_b32 s60, -1
    s_mov_b32 s61, 0
    """)
    if xs:
        a(f"""
        s_lshl_b32 s{sT}, s2, 2
        s_lshr_b32 s{sT}, {hex(xs)}, s{sT}
        s_and_b32 s{sT}, s{sT}, 15
        s_bfm_b64 s[54:55], s{sT}, {dk}
        """)
    elif dm:
        m = ((1 << dm) - 1) << dk
        a(f"s_and_b32 s{sT}, s2, {dg}\n s_cselect_b32 s54, {hex(m & 0xffffffff)}, 0\n s_cselect_b32 s55, {hex(m >> 32)}, 0")
    a.label("L_k")
    a(f"""
    s_mov_b32 m0, s{sMK}
    s_add_u32 s{sT}, s{sKO}, 16384
    """)
    prewait()
    for i in range(4): a(f"buffer_load_dwordx4 v{VK[i]}, s[{SK}:{SK+3}], s{sKO} offen offset:{1024*i}{nt} lds")
    a(f"s_addk_i32 m0, 4096")
    a(f"s_addk_i32 s{sMK}, 8192")
    for i in range(4): a(f"buffer_load_dwordx4 v{VK[i]}, s[{SK}:{SK+3}], s{sT} offen offset:{1024*i}{nt} lds")
    push(256)
    a(f"s_bitset0_b32 s{sMK}, 16")
    a(f"s_cmp_lg_u32 s{sK}, {K0}")
    if N > 16 or dm or cp or R: a(f"s_waitcnt vmcnt(24)")
    a(f"ds_write_b32 v{vLN}, v{vT}")
    a("s_cbranch_scc1 L_v")
    nb(4)
    a("s_waitcnt lgkmcnt(0)")
    a("s_barrier")
    nb(5)
    if diag == 3:
        a("s_waitcnt lgkmcnt(0)")
        for i in range(8): a(f"v_writelane_b32 v{DG}, s{80+2*min(i,5)}, {9+i}")
    a.label("L_v", flush=False)
    a(f"""
    s_sub_u32 s{sT2}, s{sK}, 7
    s_cbranch_scc1 L_noel
    """)
    a.label("L_chk", flush=False)
    a(f"""
    ds_read_b32 v{vP}, v{vPA}
    s_sub_u32 s{sBUD}, s{sBUD}, 1
    s_cbranch_scc1 L_end
    s_and_b32 s{sT}, s{sT2}, 3
    s_waitcnt lgkmcnt(0)
    v_readlane_b32 s{sX}, v{vP}, s{sT}
    s_lshr_b32 s{sT}, s{sT2}, 2
    s_cmp_gt_u32 s{sX}, s{sT}
    s_cbranch_scc0 L_chk
    """)
    if R:
        a(f"""
        s_sub_u32 s{sT}, s{sK}, {ks}
        s_cmp_gt_u32 s{sT}, {ke-ks}
        s_cbranch_scc1 L_noc
        v_add_u32 v19, 1, v19
        s_not_b64 s[60:61], s[60:61]
        s_mov_b64 exec, s[56:57]
        global_store_dword v14, v19, s[{sWS}:{sWS+1}]{raf}
        s_mov_b64 exec, s[60:61]
        global_load_dword v13, v14, s[{sWS}:{sWS+1}]{rlf}
        s_mov_b64 exec, -1
        """)
        a.label("L_noc", flush=False)
    if cp: a(f"""
    v_readlane_b32 s{sX}, v{vP}, 4
    s_cmp_lt_u32 s55, s{sX}
    s_cselect_b32 s54, 1, 0
    s_add_u32 s55, s55, s54
    """)
    a(f"""
    s_sub_u32 s{sT}, s{sK}, {3+E}
    s_cmp_lt_u32 s{sT}, 4
    s_cbranch_scc1 L_next
    """)
    if el and not se and not ab & 64: a(f"""
    s_cmp_lg_u32 s{sT2}, {32-el}
    s_cbranch_scc1 L_noel
    s_mov_b64 exec, 1
    global_atomic_add v{vEL}, v{vTA}, v{v64}, s[{sOUT if ed else sWS}:{(sOUT if ed else sWS)+1}] sc0 sc1{atf}
    s_mov_b64 exec, -1
    """)
    a.label("L_noel", flush=False)
    a(f"""
    s_mov_b32 m0, s{sMV}
    s_add_u32 s{sT}, s{sVO}, 16384
    """)
    if fb:
        a(f"s_cmp_ge_u32 s{sK}, s52")
        if Nf < 63: a(f"s_waitcnt vmcnt({Nf})")
        a("s_cbranch_scc1 L_nw")
    prewait()
    if fb: a.label("L_nw", flush=False)
    for i in range(4): a(f"buffer_load_dwordx4 v{VV[i]}, s[{SV}:{SV+3}], s{sVO} offen offset:{1024*i}{nt} lds")
    a(f"s_addk_i32 m0, 4096")
    a(f"s_addk_i32 s{sMV}, 8192")
    for i in range(4): a(f"buffer_load_dwordx4 v{VV[i]}, s[{SV}:{SV+3}], s{sT} offen offset:{1024*i}{nt} lds")
    a(f"s_add_u32 s{sVO}, s{sT}, 16384")
    a(f"s_bitset0_b32 s{sMV}, 17")
    a(f"s_bitset1_b32 s{sMV}, 16")
    if fb:
        a(f"s_cmp_ge_u32 s{sK}, s52\n s_cbranch_scc1 L_next")
        a(f"v_readfirstlane_b32 s{sX}, v{vEL}")
    push(512)
    if fb:
        a(f"s_cmp_eq_u32 s{sX}, s{sC0}\n s_cselect_b32 s52, {39-fw}, {39-fb}")
    if N > 16 or dm or cp or R: a(f"s_waitcnt vmcnt(24)")
    if not se: a(f"v_and_or_b32 v{vT}, v{vEL}, s{sC0}, v{vT}")
    a(f"ds_write_b32 v{vLN}, v{vT}")
    if R:
        a(f"""
        v_sub_u32 v7, v13, v19
        s_sub_u32 s{sT}, s{sK}, {ks+1}
        v_cmp_le_i32 vcc, -1, v7
        s_cmp_gt_u32 s{sT}, {ke-ks-1}
        s_cbranch_scc1 L_nod
        s_andn2_b64 vcc, vcc, s[60:61]
        s_bcnt1_i32_b64 s{sT}, vcc
        s_cmp_gt_u32 s{sT}, s59
        s_cselect_b32 s54, 1, 0
        """)
        a.label("L_nod", flush=False)
        if diag: a("s_add_u32 s55, s55, s54")
    if diag:
        a(f"s_cmp_eq_u32 s{sK}, 3")
        a("s_cbranch_scc0 L_d1")
        stampc(2)
        a.label("L_d1", flush=False)
        a(f"s_cmp_eq_u32 s{sK}, 19")
        a("s_cbranch_scc0 L_d2")
        stampc(3)
        a.label("L_d2", flush=False)
    a.label("L_next", flush=False)
    a(f"""
    s_add_u32 s{sK}, s{sK}, 1
    s_add_u32 s{sKO}, s{sKO}, {STEP}
    s_cmp_lt_u32 s{sK}, 32
    s_cbranch_scc1 L_k
    s_cmp_lt_u32 s{sK}, 39
    s_cbranch_scc1 L_v
    """)
    stampc(4)
    def lfin():
        if diag:
            stampc(5)
            a(f"s_mov_b32 s{sT}, s55" if cp or R else f"s_sub_u32 s{sT}, 0x100000, s{sBUD}")
            a(f"v_writelane_b32 v{DG}, s{sT}, 6")
            a(f"s_or_b32 s{sX}, s{sX}, 32")
            a(f"v_writelane_b32 v{DG}, s{sX}, 8")
            a("s_mov_b64 exec, -1")
            a(f"v_mov_b32 v{LANE}, v0")
            a.flush()
            a("s_branch L_fin")
        else:
            a("s_endpgm")
    def ltail():
        a(f"""
        v_readfirstlane_b32 s{sX}, v{vEL}
        s_cmp_eq_u32 s{sX}, s{sC0}
        s_cbranch_scc1 L_lwin
        """)
        def catchup(f, extra=0):
            for j in range(1, f):
                a(f"v_add_u32 v{vT}, 512, v{vT}\n s_waitcnt vmcnt({8*(3+f-j)+extra})\n ds_write_b32 v{vLN}, v{vT}")
            a(f"s_waitcnt vmcnt({24+extra}) lgkmcnt(0)" if f else "s_waitcnt lgkmcnt(0)")
            a("s_barrier")
        catchup(fb)
        for p in range(2, -1, -1):
            a(f"s_waitcnt vmcnt({8*p})")
            a("s_barrier")
        lfin()
        a.label("L_lwin", flush=False)
        npl = 0
        def lpoll():
            a(f"global_load_dword v{vP}, v{vPA}, s[{sWS}:{sWS+1}]{glf}")
        if lp:
            a(f"""
            v_lshrrev_b32 v7, 3, v0
            v_add_u32 v7, 1, v7
            v_xor_b32 v7, s{sPART}, v7
            s_lshl_b32 s{sT}, s{sHEAD}, {SL+2}
            v_lshl_add_u32 v7, v7, {SL}, s{sT}
            v_and_b32 v{vPA}, 7, v0
            v_lshl_add_u32 v{vPA}, v{vPA}, 7, v7
            s_mov_b64 exec, 0xffffff
            """)
        if lp & 1: lpoll(); npl += 1
        a(f"""
        s_mov_b32 s51, 0x9e3779b9
        """)
        catchup(fw, npl)
        a(f"""
        {"" if ab & 4 else f"s_atomic_add s51, s[{sWS}:{sWS+1}], s50"}
        s_waitcnt vmcnt({16+npl})
        s_barrier
        """)
        if lp & 2: lpoll(); npl += 1
        if lp & 8:
            a(f"s_waitcnt vmcnt({12+npl})"); lpoll(); npl += 1
        a(f"s_waitcnt vmcnt({8+npl})\n s_barrier")
        if lp & 16:
            a(f"s_waitcnt vmcnt({6+npl})"); lpoll(); npl += 1
        if lp & 4:
            a(f"s_waitcnt vmcnt({4+npl})"); lpoll(); npl += 1
        if lp & 16:
            a(f"s_waitcnt vmcnt({2+npl})"); lpoll(); npl += 1
        a(f"s_waitcnt vmcnt({npl})\n s_barrier")
        lfin()
    if se:
        a(f"""
        s_barrier
        ds_read_b32 v{vEL}, v{vLN} offset:1536
        s_mov_b32 s51, 0x9e3779b9
        s_waitcnt lgkmcnt(0)
        v_readfirstlane_b32 s{sX}, v{vEL}
        s_and_b32 s{sX}, s{sX}, s{sC0}
        s_cmp_eq_u32 s{sX}, s{sC0}
        s_cbranch_scc0 L_lnw
        s_atomic_add s51, s[{sWS}:{sWS+1}], s50
        """)
        a.label("L_lnw", flush=False)
        for p in range(2, -1, -1):
            a(f"s_waitcnt vmcnt({8*p})")
            a("s_barrier")
        lfin()
    if not se: ltail()
    a.label("L_loop")
    a(f"s_lshl_b32 s{sTHR}, s{sKK}, 9")
    a(f"s_bitset1_b32 s{sTHR}, 8")
    poll()
    stampm()
    for tl in range(2):
        for j in range(4): a(f"ds_read_b128 v[{KR+16*tl+4*j}:{KR+16*tl+4*j+3}], v{RK[j]} offset:{4096*tl}")
    a(f"""
    s_add_u32 s{sIT}, s{sIT}, 1
    v_mov_b32 v{cW}, s{sIT}
    """)
    for j in range(4): a(f"v_xor_b32 v{RK[j]}, 0x8000, v{RK[j]}")
    if ii: a(f"s_cmp_lg_u32 s{sIT}, s66")
    a("s_waitcnt lgkmcnt(0)")
    a(f"ds_write_b32 v{cPR}, v{cW} offset:256")
    if cp:
        a(f"""
        s_and_b32 s70, s67, 15
        s_cbranch_scc0 L_nocp
        s_mov_b32 s71, 2
        s_atomic_add s71, s[{sWS}:{sWS+1}], s68 glc
        """)
        a.label("L_nocp", flush=False)
        a("s_lshr_b32 s67, s67, 4")
    if ii:
        a(f"s_cbranch_scc1 L_noi\n s_atomic_cmpswap_x2 s[60:63], s[{sWS}:{sWS+1}], s64 glc")
        a.label("L_noi", flush=False)
    def scale(tl, j):
        o = []
        for r in range(4):
            x = KR + 16 * tl + 4 * j + r
            t0 = T + 2 * (r & 1); t1 = t0 + 1
            o += [f"v_lshlrev_b32 v{t0}, 16, v{x}",
                  f"v_and_b32 v{t1}, s{sMASK}, v{x}",
                  f"v_mul_f32 v{t0}, s{sSCALE}, v{t0}",
                  f"v_mul_f32 v{t1}, s{sSCALE}, v{t1}",
                  f"v_cvt_pk_bf16_f32 v{x}, v{t0}, v{t1}"]
        for r in range(4):
            x = KR + 16 * tl + 4 * j + r
            acc = SQA + 2 * tl + (r & 1)
            if j == 0 and r < 2: o.append(f"v_dot2_f32_bf16 v{acc}, v{x}, v{x}, 0")
            else: o.append(f"v_dot2_f32_bf16 v{acc}, v{x}, v{x}, v{acc}")
        return o
    def projm(tl, j):
        o = []
        for t in range(4):
            d = PR + 16 * tl + 4 * t
            om = OM + 16 * t + 4 * j
            k = KR + 16 * tl + 4 * j
            c = "0" if j == 0 else f"v[{d}:{d+3}]"
            o.append(f"v_mfma_f32_16x16x32_bf16 v[{d}:{d+3}], v[{om}:{om+3}], v[{k}:{k+3}], {c}")
        return o
    def sqsum(tl):
        acc = SQA + 2 * tl
        return [f"v_add_f32 v{acc}, v{acc}, v{acc+1}"]
    def sqm(tl):
        acc = SQA + 2 * tl; d = SQD + 4 * tl
        return [f"v_mfma_f32_16x16x4_f32 v[{d}:{d+3}], v{NH}, v{acc}, 0"]
    def phi(tl):
        d = SQD + 4 * tl
        o = [f"v_cvt_pk_bf16_f32 v{d}, 0, v{d}"]
        for t in range(4):
            p = [PR + 16 * tl + 4 * t + r for r in range(4)]
            for x in p: o.append(f"v_cvt_pk_bf16_f32 v{x}, 0, v{x}")
            for x in p: o.append(f"v_add_f32 v{x}, v{d}, v{x}")
            for x in p: o.append(f"v_cvt_pk_bf16_f32 v{x}, 0, v{x}")
            for x in p: o.append(f"v_mul_f32 v{x}, s{sL2E}, v{x}")
            for x in p: o.append(f"v_exp_f32 v{x}, v{x}")
            h = PH + 8 * tl + 2 * t
            o.append(f"v_cvt_pk_bf16_f32 v{h}, v{p[0]}, v{p[1]}")
            o.append(f"v_cvt_pk_bf16_f32 v{h+1}, v{p[2]}, v{p[3]}")
        return o
    def wm(tl):
        d = WD + 4 * tl; h = PH + 8 * tl
        return [f"v_mfma_f32_16x16x32_bf16 v[{d}:{d+3}], v[{h}:{h+3}], v[{PQ}:{PQ+3}], v[{C}:{C+3}]",
                f"v_mfma_f32_16x16x32_bf16 v[{d}:{d+3}], v[{h+4}:{h+7}], v[{PQ+4}:{PQ+7}], v[{d}:{d+3}]"]
    def bm(t): return KR + 4 * t if t < 8 else BD
    steps = [(tl, j) for tl in range(2) for j in range(4)]
    body = scale(0, 0)
    for i in range(1, 8):
        tl, j = steps[i]
        side = projm(*steps[i - 1])
        main = scale(tl, j)
        if steps[i - 1] == (0, 3):
            main = main[:4] + sqsum(0) + main[4:]
            side = side + sqm(0)
        body += interleave(main, side, 5, lead=2)
    ph0 = phi(0)
    ph0 = ph0[:4] + sqsum(1) + ph0[4:]
    for x in body: a(x)
    a.label("L_phi0", flush=False)
    for x in interleave(ph0, projm(1, 3) + sqm(1), 4, lead=1): a(x)
    a(f"s_cmp_eq_u32 s{sIT}, -1")
    a.flush()
    a("s_cbranch_scc1 L_qpost")
    for x in interleave(phi(1), wm(0), 6, lead=3): a(x)
    for x in wm(1): a(x)
    a(f"s_add_u32 s{sKK}, s{sKK}, 4")
    a(f"s_lshl_b32 s{sTHR}, s{sKK}, 9")
    a(f"s_cmp_lt_u32 s{sKK}, 8")
    for t in (8, 0, 1, 2, 3, 4, 5, 6, 7):
        for i in range(4): a(f"v_cndmask_b32_e64 v{bm(t)+i}, 0, v{WPK+i}, s[{sMS+2*t}:{sMS+2*t+1}]")
        if t == 0: a(f"v_mfma_f32_16x16x32_bf16 v[{ACC}:{ACC+3}], v[{BD}:{BD+3}], v[{ONES}:{ONES+3}], v[{ACC}:{ACC+3}]")
    for i in range(4): a(f"v_cvt_pk_bf16_f32 v{WPK+i}, v{WD+2*i}, v{WD+2*i+1}")
    a("s_waitcnt vmcnt(0)")
    a("s_cbranch_scc1 L_loop")
    if E > 4: a(f"s_cmp_lt_u32 s{sKK}, {8+E}\n s_cselect_b32 s{sTHR}, 0, s{sTHR}")
    if cp:
        lg = 8 - gs
        a(f"""
        s_cmp_eq_u32 s70, 0
        s_cbranch_scc1 L_nocq
        s_waitcnt lgkmcnt(0)
        s_sub_u32 s71, s22, s71
        s_max_i32 s71, s71, 1
        s_flbit_i32_b32 s71, s71
        s_sub_u32 s71, s71, {31 - lg + of}
        s_max_i32 s71, s71, 0
        s_mul_i32 s71, s71, s70
        s_lshr_b32 s71, s71, 1
        s_add_u32 s69, s69, s71
        s_add_u32 s22, s22, {2 << lg}
        v_mov_b32 v{cW}, s69
        ds_write_b32 v{cLN}, v{cW} offset:1280
        """)
        a.label("L_nocq", flush=False)
    poll()
    stampm()
    for t in range(8):
        r = PR + 4 * t
        a(f"ds_read_b64_tr_b16 v[{r}:{r+1}], v{RV[t]}")
        a(f"ds_read_b64_tr_b16 v[{r+2}:{r+3}], v{RV[t]} offset:4096")
    a(f"s_cmp_lt_u32 s{sKK}, 32")
    for t in range(8):
        r = PR + 4 * t
        a(f"s_waitcnt lgkmcnt({14-2*t})")
        a(f"v_mfma_f32_16x16x32_bf16 v[{ACC}:{ACC+3}], v[{bm(t)}:{bm(t)+3}], v[{r}:{r+3}], v[{ACC}:{ACC+3}]")
        a(f"v_xor_b32 v{RV[t]}, 0x8000, v{RV[t]}")
    a("s_cbranch_scc1 L_loop")
    for i in range(4): a(f"v_cndmask_b32_e64 v{BD+i}, 0, v{WPK+i}, s[{sMS+16}:{sMS+17}]")
    a(f"s_or_b64 s[{sMS+10}:{sMS+11}], s[{sMS+10}:{sMS+11}], s[{sMS+12}:{sMS+13}]")
    if se:
        a(f"""
        s_movk_i32 s65, 64
        s_cmp_lg_u32 s{sC}, {cs}
        s_cbranch_scc1 L_ne1
        s_atomic_add s65, s[{sWS}:{sWS+1}], s64 glc
        """)
        a.label("L_ne1", flush=False)
    a(f"v_cndmask_b32_e64 v{WD}, 0, v{WPK}, s[{sMS+8}:{sMS+9}]")
    a(f"v_mfma_f32_16x16x32_bf16 v[{ACC}:{ACC+3}], v[{BD}:{BD+3}], v[{ONES}:{ONES+3}], v[{ACC}:{ACC+3}]")
    for i in range(1, 4): a(f"v_cndmask_b32_e64 v{WD+i}, 0, v{WPK+i}, s[{sMS+8}:{sMS+9}]")
    for i in range(4): a(f"v_cndmask_b32_e64 v{WD+4+i}, 0, v{WPK+i}, s[{sMS+10}:{sMS+11}]")
    a(f"""
    ds_write_b128 v{cDEP}, v[{WD}:{WD+3}] offset:1024
    ds_write_b128 v{cDEP}, v[{ACC}:{ACC+3}]
    ds_write_b128 v{cDEP}, v[{WD+4}:{WD+7}] offset:2048
    v_mov_b32 v{GB}, 0
    v_mov_b32 v{GB+1}, v{EP}
    v_mov_b32 v{GB+2}, 0
    v_mov_b32 v{GB+3}, 0
    s_mov_b32 s{sMS}, 0
    s_mov_b32 s{sMS+1}, s{sMASK}
    s_waitcnt lgkmcnt(0)
    """)
    if se:
        a(f"""
        s_cbranch_scc1 L_ne2
        v_mov_b32 v{cW}, s65
        ds_write_b32 v{cLN}, v{cW} offset:1536
        s_waitcnt lgkmcnt(0)
        """)
        a.label("L_ne2", flush=False)
    stampc(58)
    a("s_barrier")
    stampc(59)
    def trs(j):
        r = PR + 8 * j
        for h in range(2):
            a(f"ds_read_b64_tr_b16 v[{r+4*h}:{r+4*h+1}], v{TV+h} offset:{8192*j}")
            a(f"ds_read_b64_tr_b16 v[{r+4*h+2}:{r+4*h+3}], v{TV+h} offset:{8192*j+4096}")
    def mms(j, w=True):
        r = PR + 8 * j
        for h in range(2):
            if w: a(f"s_waitcnt lgkmcnt({2-2*h})")
            a(f"v_mfma_f32_16x16x32_bf16 v[{ACC}:{ACC+3}], v[{KR+8*j+4*h}:{KR+8*j+4*h+3}], v[{r+4*h}:{r+4*h+3}], v[{ACC}:{ACC+3}]")
    ng = [0]
    def gload(B, restore=True):
        a(f"s_mov_b32 exec_hi, {0xff if ab & 1 else 0xffff}")
        if ab & 1: a("s_mov_b32 exec_lo, 0x00ff00ff")
        a(f"global_load_dwordx4 v[{B}:{B+3}], v{GA}, s[{sWS}:{sWS+1}]{glf}")
        if restore: a(f"s_mov_b64 exec, -1")
    def wload():
        l = "L_nb%d" % ng[0]; ng[0] += 1
        a(f"s_cbranch_scc0 {l}")
        gload(GB)
        a.label(l, flush=False)
    a(f"ds_read_b32 v{cW}, v{cLN}" + (" offset:1536" if se else ""))
    for j in range(4): a(f"ds_read_b128 v[{PH+4*j}:{PH+4*j+3}], v{cRD} offset:{8192*j}")
    for j in range(4):
        for h in range(2): a(f"ds_read_b128 v[{KR+8*j+4*h}:{KR+8*j+4*h+3}], v{cL16} offset:{8192*j+1024+1024*h}")
    a("s_waitcnt lgkmcnt(8)")
    trs(0)
    a(f"v_readfirstlane_b32 s{sX}, v{cW}")
    for i in range(3):
        a(f"v_add_f32 v{PH+i}, v{PH+i}, v{PH+4+i}")
        a(f"v_add_f32 v{PH+8+i}, v{PH+8+i}, v{PH+12+i}")
    a(f"""
    s_and_b32 s{sT2}, s{sX}, 0xc0
    s_cmpk_eq_u32 s{sT2}, 0xc0
    v_add_f32 v{ACC}, v{PH}, v{PH+8}
    v_add_f32 v{ACC+1}, v{PH+1}, v{PH+9}
    v_add_f32 v{DENR}, v{PH+2}, v{PH+10}
    v_cndmask_b32_e64 v{ACC}, v{ACC}, v{ACC+1}, s[{sMS}:{sMS+1}]
    v_add_f32 v{T}, {hex(f2u(1e-6))}, v{DENR}
    """)
    if bp == 0: wload()
    mms(0)
    a("s_barrier")
    trs(1)
    if bp == 1: wload()
    mms(1)
    a("s_barrier")
    if bp == 2: wload()
    trs(2)
    mms(2)
    if bp == 3: wload()
    stampc(61)
    a("s_barrier")
    trs(3)
    a("s_cbranch_scc1 L_win")
    mms(3)
    a(f"s_mov_b32 exec_lo, 0")
    a(f"s_mov_b32 exec_hi, {0xff if ab & 1 else 0xffff}")
    if not ab & 32: a(f"global_store_dwordx4 v{cWS}, v[{DENR}:{DENR+3}], s[{sWS}:{sWS+1}]{asf}")
    if diag: a("s_mov_b64 exec, -1")
    a("s_branch L_fin" if diag else "s_endpgm")
    if PP:
        a.label("L_retry", flush=False)
        a("s_mov_b32 exec_hi, 0xffff")
        for j in range(1, PP): a(f"global_load_dwordx4 v[{GC+4*j}:{GC+4*j+3}], v{GA}, s[{sWS}:{sWS+1}]{glf}")
        a.label("L_ring", flush=False)
        for j in range(PP):
            if diag: a(f"s_add_u32 s{sIT}, s{sIT}, 256")
            a(f"""
            s_waitcnt vmcnt({PP-1})
            v_cmp_ne_u32 vcc, v{EP}, v{GC+4*j+1}
            v_mov_b64 v[{GB}:{GB+1}], v[{GC+4*j}:{GC+4*j+1}]
            v_mov_b64 v[{GB+2}:{GB+3}], v[{GC+4*j+2}:{GC+4*j+3}]
            s_cbranch_vccz L_gotp
            global_load_dwordx4 v[{GC+4*j}:{GC+4*j+3}], v{GA}, s[{sWS}:{sWS+1}]{glf}
            """)
        a(f"""
        s_sub_u32 s{sBUD}, s{sBUD}, 16
        s_cbranch_scc0 L_ring
        s_endpgm
        """)
    a.label("L_retry0" if PP else "L_retry", flush=False)
    if diag: a(f"s_add_u32 s{sIT}, s{sIT}, 256")
    if ab & 1: a("s_mov_b32 exec_lo, 0x00ff00ff")
    a(f"""
    s_mov_b32 exec_hi, {0xff if ab & 1 else 0xffff}
    s_sub_u32 s{sBUD}, s{sBUD}, 16
    s_cbranch_scc1 L_end
    """)
    if cz:
        a(f"""
        s_waitcnt vmcnt(0)
        v_mov_b64 v[{GB}:{GB+1}], v[{GC}:{GC+1}]
        v_mov_b64 v[{GB+2}:{GB+3}], v[{GC+2}:{GC+3}]
        global_load_dwordx4 v[{GC}:{GC+3}], v{GA}, s[{sWS}:{sWS+1}]{glf}
        """)
    else:
        a(f"global_load_dwordx4 v[{GB}:{GB+3}], v{GA}, s[{sWS}:{sWS+1}]{glf}")
    a("s_mov_b64 exec, -1")
    a("s_branch L_chkb")
    a.label("L_win", flush=False)
    if cz: gload(GC)
    mms(3)
    a.label("L_chkb", flush=False)
    a(f"""
    s_waitcnt vmcnt({cz})
    v_cmp_ne_u32 vcc, v{EP}, v{GB+1}
    {"" if nog else "s_cbranch_vccnz L_retry"}
    """)
    if PP:
        a.label("L_gotp", flush=False)
        a("s_mov_b32 exec_hi, -1")
    stampc(62)
    a(f"""
    v_add_f32_dpp v{GB}, v{GB}, v{GB} row_bcast:15 row_mask:0xa bank_mask:0xf
    v_permlane16_swap_b32 v{GB+2}, v{GB+3}
    s_nop 0
    v_add_f32_dpp v{GB}, v{GB}, v{GB} row_bcast:31 row_mask:0xc bank_mask:0xf
    v_add_f32 v{GB+2}, v{GB+2}, v{GB+3}
    v_add_f32 v{GB}, v{GB}, v{T}
    v_add_f32 v{GB+3}, v{GB+2}, v{ACC}
    v_permlane32_swap_b32 v{GB+1}, v{GB+2}
    v_rcp_f32 v{GB}, v{GB}
    s_mov_b32 exec_lo, 0
    v_add_f32 v{GB+3}, v{GB+3}, v{GB+1}
    v_mul_f32 v{GB+3}, v{GB+3}, v{GB}
    v_cvt_pk_bf16_f32 v{GB+3}, v{GB+3}, v{GB+3}
    """)
    if not ab & 8: a(f"global_store_short v{cOUT}, v{GB+3}, s[{sOUT}:{sOUT+1}]{outsc}")
    if diag:
        a("s_mov_b64 exec, -1")
        stampc(5)
        if diag == 4:
            a("s_waitcnt vmcnt(0)")
            stampc(6)
        a.label("L_fin")
        a(f"s_memrealtime s[{sRAW}:{sRAW+1}]")
        a(f"s_getreg_b32 s76, hwreg(HW_REG_XCC_ID)")
        a("s_waitcnt lgkmcnt(0)")
        a(f"v_writelane_b32 v{DG}, s{sRAW}, 7")
        a(f"v_writelane_b32 v{DG}, s76, 63")
        a(f"v_writelane_b32 v{DG}, s{sIT}, 60")
        a(f"""
        s_mul_i32 s{sT}, s2, 5
        s_lshr_b32 s{sT2}, s{sW}, 6
        s_add_u32 s{sT}, s{sT}, s{sT2}
        s_lshl_b32 s{sT}, s{sT}, 8
        s_add_u32 s{sT}, s{sT}, 0x100000
        v_lshl_add_u32 v{T}, v{LANE}, 2, s{sT}
        global_store_dword v{T}, v{DG}, s[{sWS}:{sWS+1}]
        """)
    a.label("L_end", flush=False)
    a("s_endpgm")
    a.label("L_qpost")
    a(f"v_mov_b32 v{T+2}, {hex(f2u(1e-6) - (3 << 23))}")
    a(f"s_mov_b32 s{sT}, {hex(f2u(0.015625))}")
    for i in range(8):
        x = PH + i
        a(f"""
        v_lshlrev_b32 v{T}, 16, v{x}
        v_and_b32 v{T+1}, s{sMASK}, v{x}
        v_fma_f32 v{T}, v{T}, s{sT}, v{T+2}
        v_fma_f32 v{T+1}, v{T+1}, s{sT}, v{T+2}
        v_cvt_pk_bf16_f32 v{PQ+i}, v{T}, v{T+1}
        """)
    a(f"v_mfma_f32_16x16x32_bf16 v[{C}:{C+3}], v[{ONES}:{ONES+3}], v[{PQ}:{PQ+3}], 0")
    a(f"s_add_u32 s{sEP}, s{sEP}, 0x9e3779b9")
    a(f"v_mfma_f32_16x16x32_bf16 v[{C}:{C+3}], v[{ONES}:{ONES+3}], v[{PQ+4}:{PQ+7}], v[{C}:{C+3}]")
    a(f"""
    s_mov_b32 s{sIT}, 0
    v_mov_b32 v{EP}, s{sEP}
    """)
    if cp:
        tab = sum(g << (4 * (it - 1)) for it, g in cp)
        a(f"""
        s_cmp_eq_u32 s{sC}, {cm}
        s_cselect_b32 s67, {hex(tab)}, 0
        s_add_u32 s22, s22, {(2 << (8 - gs)) - 1}
        s_mov_b32 s69, 0
        """)
    if ii:
        si = 2
        a(f"""
        s_cmp_eq_u32 s{sEP}, s{sCT+1}
        s_cselect_b32 s{sT}, 4, s{sC}
        s_cmp_lg_u32 s{sT}, {cs}
        s_cselect_b32 s66, 0, {ii}
        s_mov_b32 s60, 0
        s_mov_b32 s61, s{sEP}
        """)
    if el and not ii: a(f"""
    s_cmp_eq_u32 s{sEP}, s{sCT+1}
    s_cselect_b32 s{sT}, 4, s{sC}
    s_cmp_lg_u32 s{sT}, {cs}
    s_cbranch_scc1 L_c2
    {f"s_cmp_lg_u32 s{sPART}, 0" if ab & 2 else ""}
    {"s_cbranch_scc1 L_c2" if ab & 2 else ""}
    """)
    if el and si == 1: a(f"""
    s_mov_b32 s60, 0
    s_mov_b32 s61, s{sEP}
    s_atomic_cmpswap_x2 s[60:63], s[{sWS}:{sWS+1}], s64 glc
    """)
    if el and si == 0: a(f"""
    s_mov_b64 exec, 1
    v_mov_b32 v{CT}, 0
    v_mov_b32 v{CT+1}, s{sEP}
    v_mov_b32 v{CT+2}, s{sCT}
    v_mov_b32 v{CT+3}, s{sCT+1}
    global_atomic_cmpswap_x2 v{cAT}, v[{CT}:{CT+3}], s[{sWS}:{sWS+1}] sc1{csf}
    s_mov_b64 exec, -1
    """)
    a.label("L_c2", flush=False)
    a("s_nop 1")
    for i in range(4): a(f"v_mul_f32 v{C+i}, {hex(f2u(1e-6) + (3 << 23))}, v{C+i}")
    stampc(3)
    a.flush()
    a("s_branch L_loop")
    a.raw("L_codeend:")
    a.raw(f""".section .rodata,"a"
.p2align 6
.amdhsa_kernel {NAME}_kernel
  .amdhsa_next_free_vgpr 256
  .amdhsa_next_free_sgpr {96 if diag == 3 else 80}
  .amdhsa_accum_offset 256
  .amdhsa_group_segment_fixed_size 0
  .amdhsa_kernarg_size 56
  .amdhsa_user_sgpr_count 2
  .amdhsa_user_sgpr_kernarg_segment_ptr 1
  .amdhsa_system_sgpr_workgroup_id_x 1
.end_amdhsa_kernel""")
    return a

if __name__ == "__main__":
    out = sys.argv[1]
    kw = dict(x.split("=") for x in sys.argv[2:])
    for key in ("nt", "outsc", "asf", "glf", "raf", "rlf"):
        if key in kw: kw[key] = "" if kw[key] == "0" else " " + kw[key].replace("+", " ")
    a = gen(**kw)
    open(out, "w").write(a.text())
    print("wrote", out, "nops inserted:", a.nops)
```

```python
import sys, struct
from asmlib import Asm, interleave

NAME = "standalone__linear_kernel_rfa__decode"
def f2u(x): return struct.unpack("<I", struct.pack("<f", x))[0]

def gen(nt=" nt", wgmap="mix", diag="0", outsc="", pf="1", al="12", N="16", el="3", K0="4", cs="0", E="8", nog="0", ab="0",
        asf=" sc1", glf=" sc1", lp="7", cz="0", bp="2", SL="11", Nd="16", fb="0", Nf="63", fw="0", se="0", si="0", ii="0", dg="0", dk="16", dm="0", cp="", cm="0", gs="0", of="0", R="0", ks="7", ke="31", xb="0", raf="", rlf=" sc1", xs="0", PP="0", sa="", saw="-1"):
    saw = int(saw)
    E = int(E); nog = int(nog); ab = int(ab); lp = int(lp); cz = int(cz); bp = int(bp); SL = int(SL); Nd = int(Nd); fb = int(fb); Nf = int(Nf); fw = int(fw); se = int(se); si = int(si); ii = int(ii); dg = int(dg); dk = int(dk); dm = int(dm); cp = [tuple(int(y) for y in x.split(":")) for x in cp.split(",") if x]; cm = int(cm); gs = int(gs); of = int(of); R = int(R); ks = int(ks); ke = int(ke); xb = int(xb, 0); xs = int(xs, 0); PP = int(PP)
    if PP: cz = 1
    if xs: dm = 1
    diag = int(diag); pf = int(pf); N = int(N); el = int(el); K0 = int(K0); cs = int(cs)
    if se: cs = se - 1; lp = 0; fb = 0
    omf = qf = pff = atf = csf = ""; oml = 0; tlb = 0; pt = 0; ed = 0
    P = 3
    a = Asm()
    VRING = 65536; OMB = 131072; LND = 147712; PRG = LND + 256; RED = 151552
    LDS = RED + 4096
    EPOCH = 0x80000; STEP = 32768
    SK, SV, SO, SQ = 4, 8, 12, 16
    sOUT, sWS = 20, 24
    sW, sHEAD, sPART, sT, sT2, sX, sBUD = 26, 27, 28, 29, 30, 31, 32
    sK, sKO, sMK, sMV, sVO = 33, 34, 36, 37, 39
    sF = 40; sC0 = 49
    VK = [176, 177, 178, 179]; VV = [5, 6, 17, 18]; vLN = 8; vPA = 9; vT = 10; vP = 11; vTA = 12; vEL = 15; v64 = 16
    sC, sKK, sTHR, sMASK, sSCALE, sL2E, sIT, sEP = 33, 34, 35, 36, 37, 38, 39, 41
    sMS = 42
    sCT = 62
    RK = [8, 9, 10, 11]; RV = list(range(12, 20))
    NH = 20; LANE = 21; cLN = 1; cPR = 2; cDEP = 3; cW = 4; EP = 151; DENR = 150; cRD = 5; cWS = 6; cOUT = 22; cAT = 161
    ONES = 24; C = 28; PQ = 32; WPK = 40; WD = 44; SQD = 52; SQA = 60
    KR = 64; PR = 96; PH = 128; T = 144; ACC = 152; BD = 156; DUM = 160; DG = 164; XR = 168
    CT = 180; GA = 186; cL16 = 187; TV = 188; OM = 192; GB = OM; GC = OM + 4
    sRAW = 72
    def stampc(i):
        if diag:
            a(f"s_memrealtime s[{sRAW}:{sRAW+1}]")
            a("s_waitcnt lgkmcnt(0)")
            a(f"v_writelane_b32 v{DG}, s{sRAW}, {i}")
    def stampm():
        if diag:
            a(f"s_memrealtime s[{sRAW}:{sRAW+1}]")
            a("s_waitcnt lgkmcnt(0)")
            a(f"v_writelane_b32 v{DG}, s{sRAW}, m0")
            a("s_add_u32 m0, m0, 1")
    def nb(i):
        if diag == 3: a(f"s_memrealtime s[{80+2*i}:{81+2*i}]")
    npoll = [0]
    def poll():
        l = "L_poll%d" % npoll[0]; npoll[0] += 1
        a.label(l, flush=False)
        a(f"""
        ds_read_b32 v{cW}, v{cLN}
        s_sub_u32 s{sBUD}, s{sBUD}, 1
        s_cbranch_scc1 L_end
        s_waitcnt lgkmcnt(0)
        v_readfirstlane_b32 s{sX}, v{cW}
        s_cmp_ge_u32 s{sX}, s{sTHR}
        s_cbranch_scc0 {l}
        """)

    hdr = open("cdna_kernels/%s.s.ref" % NAME).read().split("; Override launch")[0]
    a.raw(hdr.rstrip())
    a.raw("; @launch grid=(256,1,1) block=(320,1,1) lds=%d" % LDS)
    a.raw('.amdgcn_target "amdgcn-amd-amdhsa--gfx950"\n.text\n.globl %s_kernel\n.p2align %s\n.p2align 8\n.type %s_kernel,@function' % (NAME, al, NAME))
    a.label(NAME + "_kernel")
    if diag or sa == "s": a("s_memrealtime s[74:75]")
    a(f"""
    s_load_dwordx2 s[{SK}:{SK+1}], s[0:1], 8
    s_load_dwordx2 s[{SO}:{SO+1}], s[0:1], 24
    s_load_dwordx2 s[{SQ}:{SQ+1}], s[0:1], 0
    """)
    if sa == "k": a("s_waitcnt lgkmcnt(0)\n s_memrealtime s[74:75]")
    if pf:
        a("s_getpc_b64 s[60:61]")
        a.label("L_pc", flush=False)
        a(f"""
        v_subrev_u32 v7, 64, v0
        v_lshlrev_b32 v7, 7, v7
        v_cmp_gt_u32 vcc, L_codeend-L_pc-3, v7
        v_mov_b32 v{DUM+3}, s61
        s_cbranch_vccz L_nopf
        s_mov_b64 exec, vcc
        v_add_co_u32 v{DUM+2}, vcc, s60, v7
        v_addc_co_u32 v{DUM+3}, vcc, 0, v{DUM+3}, vcc
        global_load_dword v{DUM}, v[{DUM+2}:{DUM+3}], off{pff}
        s_mov_b64 exec, -1
        """)
        a.label("L_nopf", flush=False)
    a(f"""
    v_readfirstlane_b32 s{sW}, v0
    v_bfe_u32 v22, v0, 4, 2                    ; q = lane>>4
    v_and_b32 v23, 15, v0                      ; n = lane&15
    s_cmp_ge_u32 s2, 256
    s_cbranch_scc1 L_end
    v_xor_b32 v7, v22, v23
    v_lshlrev_b32 v7, 4, v7
    v_lshl_add_u32 v{VK[0]}, v22, 8, v7
    v_xor_b32 v{VK[1]}, 0xc40, v{VK[0]}
    v_xor_b32 v{VK[2]}, 0x1880, v{VK[0]}
    v_xor_b32 v{VK[3]}, 0x24c0, v{VK[0]}
    """)
    if wgmap == "xcd":
        a(f"""
        s_and_b32 s{sHEAD}, s2, 7
        s_lshr_b32 s{sT}, s2, 5
        s_lshl_b32 s{sT}, s{sT}, 3
        s_or_b32 s{sHEAD}, s{sHEAD}, s{sT}
        s_bfe_u32 s{sPART}, s2, 0x20003
        """)
    elif wgmap == "lin":
        a(f"""
        s_lshr_b32 s{sHEAD}, s2, 2
        s_and_b32 s{sPART}, s2, 3
        """)
    elif wgmap == "mix":
        a(f"""
        s_bfe_u32 s{sPART}, s2, 0x20001
        s_xor_b32 s{sT}, s2, s{sPART}
        s_and_b32 s{sT}, s{sT}, 1
        s_lshr_b32 s{sHEAD}, s2, 3
        s_lshl1_add_u32 s{sHEAD}, s{sHEAD}, s{sT}
        """)
    a(f"""
    s_cmp_lg_u32 s{sW}, 0
    s_cbranch_scc1 L_cons
    """)
    a(f"""
    s_setprio 3
    s_brev_b32 s{SK+2}, 32
    s_mov_b32 s{SK+3}, 0x20000
    s_lshl_b32 s{sKO}, s{sHEAD}, 10
    s_add_u32 s{sKO}, s{sKO}, s{sPART}
    s_lshl_b32 s{sKO}, s{sKO}, 10
    s_mov_b32 m0, 0
    """)
    if diag:
        a("s_waitcnt lgkmcnt(0)")
        a(f"v_mov_b32 v{DG}, 0")
        a(f"v_writelane_b32 v{DG}, s74, 0")
        if diag != 3: stampc(1)
    if sa == "b": a("s_memrealtime s[74:75]")
    a("s_waitcnt lgkmcnt(0)")
    if sa == "a": a("s_memrealtime s[74:75]")
    nb(0)
    a.label("L_k0")
    for i in range(4): a(f"buffer_load_dwordx4 v{VK[i]}, s[{SK}:{SK+3}], s{sKO} offen offset:{1024*i}{nt} lds")
    a(f"""
    s_addk_i32 m0, 4096
    s_addk_i32 s{sKO}, 16384
    s_cmpk_lt_u32 m0, {3*8192}
    s_cbranch_scc1 L_k0
    s_branch L_setup
    """)
    a.label("L_cons")
    a(f"""
    v_and_b32 v{LANE}, 63, v0
    s_lshl_b32 s{sT}, s{sHEAD}, 8
    v_lshl_add_u32 v{KR}, v{LANE}, 2, s{sT}
    s_lshl_b32 s{sT2}, s{sW}, 6
    s_add_u32 m0, s{sT2}, {OMB - 4096}
    s_lshl4_add_u32 s{sT2}, s{sW}, {hex(2**32 - 1024)}
    s_movk_i32 s{SO+2}, 16384
    s_mov_b32 s{SO+3}, 0x20000
    s_waitcnt lgkmcnt(0)
    """)
    if oml: a(f"s_mov_b32 s66, s{sT2}\n s_mov_b32 s67, m0")
    else:
        for i in range(4): a(f"buffer_load_dwordx4 v{VK[i]}, s[{SO}:{SO+3}], s{sT2} offen offset:{1024*i}{omf} lds")
    a(f"""
    global_load_dword v{KR}, v{KR}, s[{SQ}:{SQ+1}]{qf}
    s_load_dwordx2 s[{sWS}:{sWS+1}], s[0:1], 48
    s_load_dwordx2 s[{sOUT}:{sOUT+1}], s[0:1], 32
    s_lshr_b32 s{sC}, s{sT2}, 10
    s_mov_b32 s{sBUD}, 0x100000
    v_lshlrev_b32 v{cLN}, 2, v{LANE}
    v_add_u32 v{cLN}, {LND}, v{cLN}
    s_lshl_b32 s{sT2}, s{sC}, 8
    v_add_u32 v{cPR}, s{sT2}, v{cLN}
    v_mov_b32 v{ACC}, 0
    ds_write_b32 v{cPR}, v{ACC} offset:256
    {f"ds_write_b32 v{cLN}, v{ACC} offset:1280" if cp else ""}
    s_lshl_b32 s{sT2}, s{sC}, 13
    v_lshl_add_u32 v7, v23, 8, v7              ; n*256 + ((q^n)*16)
    v_add_u32 v{RK[0]}, s{sT2}, v7
    v_xor_b32 v{RK[1]}, 64, v{RK[0]}
    v_xor_b32 v{RK[2]}, 0x80, v{RK[0]}
    v_xor_b32 v{RK[3]}, 0xc0, v{RK[0]}
    v_add_u32 v{T+4}, {OMB}, v7
    v_xor_b32 v{T+5}, 64, v{T+4}
    v_xor_b32 v{T+6}, 0x80, v{T+4}
    v_xor_b32 v{T+7}, 0xc0, v{T+4}
    s_or_b32 s{sT2}, s{sT2}, {VRING}
    v_lshrrev_b32 v7, 2, v{LANE}
    v_and_b32 v{RV[0]}, 7, v7
    v_lshlrev_b32 v{RV[0]}, 5, v{RV[0]}
    v_lshl_add_u32 v{RV[0]}, v7, 8, v{RV[0]}
    v_and_b32 v7, 3, v{LANE}
    v_lshl_add_u32 v{RV[0]}, v7, 3, v{RV[0]}
    v_add_u32 v{RV[0]}, s{sT2}, v{RV[0]}
    s_add_u32 s{sT2}, s{sT}, {EPOCH}
    v_mov_b32 v{cAT}, s{sT2}
    s_mov_b32 s64, s{sT2}
    s_add_u32 s{sX}, s{sT2}, 128
    s_waitcnt lgkmcnt(0)
    s_load_dword s{sEP}, s[{sWS}:{sWS+1}], s{sX}
    """)
    if el: a(f"s_load_dwordx2 s[{sCT}:{sCT+1}], s[{sWS}:{sWS+1}], s{sT2}")
    if cp: a(f"""
    s_bfe_u32 s68, s2, {hex((gs << 16) | 3)}
    s_lshl_b32 s68, s68, 8
    s_add_u32 s68, s68, 0x90000
    s_load_dword s22, s[{sWS}:{sWS+1}], s68
    """)
    if tlb: a(f"s_load_dword s{sCT+2}, s[{sOUT}:{sOUT+1}], s{sT}")
    if int(pt):
        a(f"s_lshl2_add_u32 s70, s2, s{sC}\n s_lshl_b32 s70, s70, 11\n s_add_u32 s70, s70, 0x200000")
        for i in range(int(pt)): a(f"s_load_dword s71, s[{sWS}:{sWS+1}], s70\n s_add_u32 s70, s70, 128")
    if diag:
        a(f"v_mov_b32 v{DG}, 0")
        a(f"v_writelane_b32 v{DG}, s74, 0")
        a("s_mov_b32 m0, 8")
    a(f"""
    v_lshlrev_b32 v{PH+3}, 4, v22
    s_lshl_b32 s{sT2}, s{sC}, 8
    v_lshl_add_u32 v{cRD}, v23, 4, s{sT2}       ; 256c + 16n
    v_add_u32 v7, 1, v22
    v_xor_b32 v7, s{sPART}, v7
    s_lshl2_add_u32 s{sT2}, s{sC}, -4
    s_lshl4_add_u32 s{sT}, s{sT2}, s{sT}
    v_lshl_add_u32 v{cOUT}, v{LANE}, 1, s{sT}
    s_lshl_b32 s{sT}, s{sHEAD}, {SL+2}
    v_lshl_add_u32 v{GA}, v7, {SL}, s{sT}
    v_add_u32 v{GA}, v{GA}, v{cRD}
    v_lshlrev_b32 v{cL16}, 4, v{LANE}
    """)
    for t in range(1, 8):
        a(f"v_xor_b32 v{RV[t]}, {hex(32*t)}, v{RV[0]}")
    a(f"""
    s_lshl_b32 s{sT}, s{sC}, 13
    v_add_u32 v{cDEP}, s{sT}, v{cL16}
    s_lshl_b32 s{sT}, s{sC}, 10
    s_add_u32 s{sT}, s{sT}, {RED}
    v_add_u32 v{PH+3}, s{sT}, v{PH+3}
    v_lshl_add_u32 v{PH+2}, v{LANE}, 2, s{sT}
    s_lshl2_add_u32 s{sT}, s{sHEAD}, s{sPART}
    s_lshl_b32 s{sT}, s{sT}, {SL}
    v_add_u32 v{cWS}, s{sT}, v{cRD}
    s_mul_i32 s{sT}, s{sC}, 0x2040
    s_bitset1_b32 s{sT}, 15
    v_xor_b32 v{TV}, s{sT}, v{RV[0]}
    v_xor_b32 v{TV+1}, s{sT}, v{RV[1]}
    s_mov_b32 s{sMASK}, 0xffff0000
    s_mov_b32 s{sSCALE}, {hex(f2u(128.0 ** -0.25))}
    s_mov_b32 s{sL2E}, 0x3fb8aa3b
    v_mov_b32 v{NH}, -0.5
    s_mov_b32 s{sMS}, 0x00010001
    s_mov_b32 s{sMS+1}, s{sMS}
    s_mov_b32 s{sMS+16}, 0x44444444
    s_mov_b32 s{sMS+17}, s{sMS+16}
    """)
    for t in range(1, 8): a(f"s_lshl_b64 s[{sMS+2*t}:{sMS+2*t+1}], s[{sMS}:{sMS+1}], {4*(t>>1)+(t&1)}")
    a(f"v_mov_b32 v{ONES}, 0x3f803f80")
    for i in range(1, 4): a(f"v_mov_b32 v{ONES+i}, v{ONES}")
    for i in range(1, 4): a(f"v_mov_b32 v{ACC+i}, 0")
    for i in range(4): a(f"v_mov_b32 v{WPK+i}, 0")
    if oml:
        a("s_mov_b32 m0, s67\n s_nop 0")
        for i in range(4): a(f"buffer_load_dwordx4 v{VK[i]}, s[{SO}:{SO+3}], s66 offen offset:{1024*i} lds")
        if diag: a("s_mov_b32 m0, 8")
    stampc(1)
    a(f"""
    s_mov_b32 s{sIT}, -1
    s_mov_b32 s{sKK}, s{sC}
    s_waitcnt vmcnt(0)
    v_lshlrev_b32 v{T}, 16, v{KR}
    v_and_b32 v{T+1}, s{sMASK}, v{KR}
    v_mul_f32 v{T}, s{sSCALE}, v{T}
    v_mul_f32 v{T+1}, s{sSCALE}, v{T+1}
    v_cvt_pk_bf16_f32 v{T}, v{T}, v{T+1}
    s_barrier
    ds_write_b32 v{PH+2}, v{T}
    s_waitcnt lgkmcnt(0)
    """)
    for jj in range(4): a(f"ds_read_b128 v[{KR+4*jj}:{KR+4*jj+3}], v{PH+3} offset:{64*jj}")
    for j in range(4):
        for t in range(4):
            r = OM + 16 * t + 4 * j
            a(f"ds_read_b128 v[{r}:{r+3}], v{T+4+j} offset:{4096*t}")
    stampc(2)
    for j in range(4):
        a(f"s_waitcnt lgkmcnt({12-4*j})")
        k = KR + 4 * j
        a(f"v_mfma_f32_16x16x32_bf16 v[{SQD}:{SQD+3}], v[{k}:{k+3}], v[{k}:{k+3}], " + (f"v[{SQD}:{SQD+3}]" if j else "0"))
        for t in range(4):
            d = PR + 4 * t; om = OM + 16 * t + 4 * j
            a(f"v_mfma_f32_16x16x32_bf16 v[{d}:{d+3}], v[{om}:{om+3}], v[{k}:{k+3}], " + (f"v[{d}:{d+3}]" if j else "0"))
    a(f"v_mul_f32 v{SQD}, -0.5, v{SQD}")
    a.flush()
    a("s_branch L_phi0")
    a.label("L_setup")
    nb(1)
    a(f"""
    s_load_dwordx2 s[{SV}:{SV+1}], s[0:1], 16
    s_load_dwordx2 s[{sWS}:{sWS+1}], s[0:1], 48
    s_mov_b32 s{sBUD}, 0x100000
    s_mov_b32 s{sK}, 3
    s_movk_i32 s{sMK}, {3*8192}
    s_mov_b32 s{SV+2}, s{SK+2}
    s_mov_b32 s{SV+3}, s{SK+3}
    v_lshlrev_b32 v7, 1, v22
    v_xor_b32 v7, v7, v23
    v_lshlrev_b32 v7, 4, v7
    v_lshl_add_u32 v{VV[0]}, v22, 8, v7
    v_xor_b32 v{VV[1]}, 0xc80, v{VV[0]}
    v_xor_b32 v{VV[2]}, 0x1800, v{VV[0]}
    v_xor_b32 v{VV[3]}, 0x2480, v{VV[0]}
    v_lshlrev_b32 v{vLN}, 2, v0
    v_and_b32 v7, {7 if cp else 3}, v0
    v_lshl_add_u32 v{vPA}, v7, 8, v{vLN}
    v_add_u32 v{vPA}, {PRG}, v{vPA}
    v_add_u32 v{vLN}, {LND}, v{vLN}
    s_lshl_b32 s{sT}, s{sHEAD}, 8
    s_add_u32 s{sT}, s{sT}, {EPOCH}
    v_mov_b32 v{vTA}, s{sT}
    v_mov_b32 v{v64}, 64
    s_movk_i32 s{sC0}, 0xc0
    s_sub_u32 s{sVO}, s{sKO}, {3*STEP}
    s_mov_b32 s{sMV}, {VRING}
    """)
    a(f"s_add_u32 s50, s{sT}, 128")
    if fb: a("s_mov_b32 s52, 64")
    if el: a(f"v_mov_b32 v{vEL}, 0")
    else: a(f"s_cmp_eq_u32 s{sPART}, 0\n s_cselect_b32 s{sT2}, 0xc0, 0\n v_mov_b32 v{vEL}, s{sT2}")
    for i in range(3): a(f"s_movk_i32 s{sF+i}, {(2*(2-i)+1)<<8}")
    a("s_waitcnt lgkmcnt(0)")
    nb(2)
    if diag == 3: a(f"s_waitcnt vmcnt({N})")
    nb(3)
    def push(add):
        a(f"v_mov_b32 v{vT}, s{sF+2}")
        a(f"s_lshl_b32 s{sT}, s{sK}, 9")
        a(f"s_mov_b32 s{sF+2}, s{sF+1}")
        a(f"s_mov_b32 s{sF+1}, s{sF}")
        a(f"s_add_u32 s{sF}, s{sT}, {add}")
    nw = [0]
    def prewait():
        if not dm and not cp and not R:
            a(f"s_waitcnt vmcnt({N})"); return
        l = "L_w%d" % nw[0]; nw[0] += 1
        if cp or R: a("s_cmp_lg_u32 s54, 0")
        else: a(f"s_bitcmp1_b64 s[54:55], s{sK}")
        if Nd > N:
            if Nd < 24: a(f"s_waitcnt vmcnt({Nd})")
            a(f"s_cbranch_scc1 {l}\n s_waitcnt vmcnt({N})")
        else:
            a(f"s_waitcnt vmcnt({N})\n s_cbranch_scc0 {l}\n s_waitcnt vmcnt({Nd})")
        a.label(l, flush=False)
    if cp or R: a("s_mov_b64 s[54:55], 0")
    if R: a(f"""
    s_and_b32 s58, s2, 7
    s_lshl_b32 s59, s58, 2
    s_lshl_b32 s58, s58, 8
    s_add_u32 s58, s58, 0x90000
    v_and_b32 v14, 31, v0
    v_lshl_add_u32 v14, v14, 2, s58
    global_load_dword v19, v14, s[{sWS}:{sWS+1}]{rlf}
    s_lshr_b32 s59, {hex(xb)}, s59
    s_and_b32 s59, s59, 15
    s_sub_u32 s59, {R}, s59
    s_lshr_b32 s58, s2, 3
    s_lshl_b64 s[56:57], 1, s58
    s_mov_b32 s60, -1
    s_mov_b32 s61, 0
    """)
    if xs:
        a(f"""
        s_lshl_b32 s{sT}, s2, 2
        s_lshr_b32 s{sT}, {hex(xs)}, s{sT}
        s_and_b32 s{sT}, s{sT}, 15
        s_bfm_b64 s[54:55], s{sT}, {dk}
        """)
    elif dm:
        m = ((1 << dm) - 1) << dk
        a(f"s_and_b32 s{sT}, s2, {dg}\n s_cselect_b32 s54, {hex(m & 0xffffffff)}, 0\n s_cselect_b32 s55, {hex(m >> 32)}, 0")
    a.label("L_k")
    a(f"""
    s_mov_b32 m0, s{sMK}
    s_add_u32 s{sT}, s{sKO}, 16384
    """)
    prewait()
    for i in range(4): a(f"buffer_load_dwordx4 v{VK[i]}, s[{SK}:{SK+3}], s{sKO} offen offset:{1024*i}{nt} lds")
    a(f"s_addk_i32 m0, 4096")
    a(f"s_addk_i32 s{sMK}, 8192")
    for i in range(4): a(f"buffer_load_dwordx4 v{VK[i]}, s[{SK}:{SK+3}], s{sT} offen offset:{1024*i}{nt} lds")
    push(256)
    a(f"s_bitset0_b32 s{sMK}, 16")
    a(f"s_cmp_lg_u32 s{sK}, {K0}")
    if N > 16 or dm or cp or R: a(f"s_waitcnt vmcnt(24)")
    a(f"ds_write_b32 v{vLN}, v{vT}")
    a("s_cbranch_scc1 L_v")
    nb(4)
    a("s_waitcnt lgkmcnt(0)")
    a("s_barrier")
    nb(5)
    if diag == 3:
        a("s_waitcnt lgkmcnt(0)")
        for i in range(8): a(f"v_writelane_b32 v{DG}, s{80+2*min(i,5)}, {9+i}")
    a.label("L_v", flush=False)
    a(f"""
    s_sub_u32 s{sT2}, s{sK}, 7
    s_cbranch_scc1 L_noel
    """)
    a.label("L_chk", flush=False)
    a(f"""
    ds_read_b32 v{vP}, v{vPA}
    s_sub_u32 s{sBUD}, s{sBUD}, 1
    s_cbranch_scc1 L_end
    s_and_b32 s{sT}, s{sT2}, 3
    s_waitcnt lgkmcnt(0)
    v_readlane_b32 s{sX}, v{vP}, s{sT}
    s_lshr_b32 s{sT}, s{sT2}, 2
    s_cmp_gt_u32 s{sX}, s{sT}
    s_cbranch_scc0 L_chk
    """)
    if R:
        a(f"""
        s_sub_u32 s{sT}, s{sK}, {ks}
        s_cmp_gt_u32 s{sT}, {ke-ks}
        s_cbranch_scc1 L_noc
        v_add_u32 v19, 1, v19
        s_not_b64 s[60:61], s[60:61]
        s_mov_b64 exec, s[56:57]
        global_store_dword v14, v19, s[{sWS}:{sWS+1}]{raf}
        s_mov_b64 exec, s[60:61]
        global_load_dword v13, v14, s[{sWS}:{sWS+1}]{rlf}
        s_mov_b64 exec, -1
        """)
        a.label("L_noc", flush=False)
    if cp: a(f"""
    v_readlane_b32 s{sX}, v{vP}, 4
    s_cmp_lt_u32 s55, s{sX}
    s_cselect_b32 s54, 1, 0
    s_add_u32 s55, s55, s54
    """)
    a(f"""
    s_sub_u32 s{sT}, s{sK}, {3+E}
    s_cmp_lt_u32 s{sT}, 4
    s_cbranch_scc1 L_next
    """)
    if el and not se and not ab & 64: a(f"""
    s_cmp_lg_u32 s{sT2}, {32-el}
    s_cbranch_scc1 L_noel
    s_mov_b64 exec, 1
    global_atomic_add v{vEL}, v{vTA}, v{v64}, s[{sOUT if ed else sWS}:{(sOUT if ed else sWS)+1}] sc0 sc1{atf}
    s_mov_b64 exec, -1
    """)
    a.label("L_noel", flush=False)
    a(f"""
    s_mov_b32 m0, s{sMV}
    s_add_u32 s{sT}, s{sVO}, 16384
    """)
    if fb:
        a(f"s_cmp_ge_u32 s{sK}, s52")
        if Nf < 63: a(f"s_waitcnt vmcnt({Nf})")
        a("s_cbranch_scc1 L_nw")
    prewait()
    if fb: a.label("L_nw", flush=False)
    for i in range(4): a(f"buffer_load_dwordx4 v{VV[i]}, s[{SV}:{SV+3}], s{sVO} offen offset:{1024*i}{nt} lds")
    a(f"s_addk_i32 m0, 4096")
    a(f"s_addk_i32 s{sMV}, 8192")
    for i in range(4): a(f"buffer_load_dwordx4 v{VV[i]}, s[{SV}:{SV+3}], s{sT} offen offset:{1024*i}{nt} lds")
    a(f"s_add_u32 s{sVO}, s{sT}, 16384")
    a(f"s_bitset0_b32 s{sMV}, 17")
    a(f"s_bitset1_b32 s{sMV}, 16")
    if fb:
        a(f"s_cmp_ge_u32 s{sK}, s52\n s_cbranch_scc1 L_next")
        a(f"v_readfirstlane_b32 s{sX}, v{vEL}")
    push(512)
    if fb:
        a(f"s_cmp_eq_u32 s{sX}, s{sC0}\n s_cselect_b32 s52, {39-fw}, {39-fb}")
    if N > 16 or dm or cp or R: a(f"s_waitcnt vmcnt(24)")
    if not se: a(f"v_and_or_b32 v{vT}, v{vEL}, s{sC0}, v{vT}")
    a(f"ds_write_b32 v{vLN}, v{vT}")
    if R:
        a(f"""
        v_sub_u32 v7, v13, v19
        s_sub_u32 s{sT}, s{sK}, {ks+1}
        v_cmp_le_i32 vcc, -1, v7
        s_cmp_gt_u32 s{sT}, {ke-ks-1}
        s_cbranch_scc1 L_nod
        s_andn2_b64 vcc, vcc, s[60:61]
        s_bcnt1_i32_b64 s{sT}, vcc
        s_cmp_gt_u32 s{sT}, s59
        s_cselect_b32 s54, 1, 0
        """)
        a.label("L_nod", flush=False)
        if diag: a("s_add_u32 s55, s55, s54")
    if diag:
        a(f"s_cmp_eq_u32 s{sK}, 3")
        a("s_cbranch_scc0 L_d1")
        stampc(2)
        a.label("L_d1", flush=False)
        a(f"s_cmp_eq_u32 s{sK}, 19")
        a("s_cbranch_scc0 L_d2")
        stampc(3)
        a.label("L_d2", flush=False)
    a.label("L_next", flush=False)
    if sa.isdigit():
        a(f"s_cmp_eq_u32 s{sK}, {sa}\n s_cbranch_scc0 L_sa\n s_memrealtime s[74:75]")
        a.label("L_sa", flush=False)
    a(f"""
    s_add_u32 s{sK}, s{sK}, 1
    s_add_u32 s{sKO}, s{sKO}, {STEP}
    s_cmp_lt_u32 s{sK}, 32
    s_cbranch_scc1 L_k
    s_cmp_lt_u32 s{sK}, 39
    s_cbranch_scc1 L_v
    """)
    stampc(4)
    def lfin():
        if diag:
            stampc(5)
            a(f"s_mov_b32 s{sT}, s55" if cp or R else f"s_sub_u32 s{sT}, 0x100000, s{sBUD}")
            a(f"v_writelane_b32 v{DG}, s{sT}, 6")
            a(f"s_or_b32 s{sX}, s{sX}, 32")
            a(f"v_writelane_b32 v{DG}, s{sX}, 8")
            a("s_mov_b64 exec, -1")
            a(f"v_mov_b32 v{LANE}, v0")
            a.flush()
            a("s_branch L_fin")
        elif sa:
            if sa == "e": a("s_memrealtime s[74:75]")
            a("s_branch L_spin0")
        else:
            a("s_endpgm")
    def ltail():
        a(f"""
        v_readfirstlane_b32 s{sX}, v{vEL}
        s_cmp_eq_u32 s{sX}, s{sC0}
        s_cbranch_scc1 L_lwin
        """)
        def catchup(f, extra=0):
            for j in range(1, f):
                a(f"v_add_u32 v{vT}, 512, v{vT}\n s_waitcnt vmcnt({8*(3+f-j)+extra})\n ds_write_b32 v{vLN}, v{vT}")
            a(f"s_waitcnt vmcnt({24+extra}) lgkmcnt(0)" if f else "s_waitcnt lgkmcnt(0)")
            a("s_barrier")
        catchup(fb)
        for p in range(2, -1, -1):
            a(f"s_waitcnt vmcnt({8*p})")
            a("s_barrier")
        lfin()
        a.label("L_lwin", flush=False)
        npl = 0
        def lpoll():
            a(f"global_load_dword v{vP}, v{vPA}, s[{sWS}:{sWS+1}]{glf}")
        if lp:
            a(f"""
            v_lshrrev_b32 v7, 3, v0
            v_add_u32 v7, 1, v7
            v_xor_b32 v7, s{sPART}, v7
            s_lshl_b32 s{sT}, s{sHEAD}, {SL+2}
            v_lshl_add_u32 v7, v7, {SL}, s{sT}
            v_and_b32 v{vPA}, 7, v0
            v_lshl_add_u32 v{vPA}, v{vPA}, 7, v7
            s_mov_b64 exec, 0xffffff
            """)
        if lp & 1: lpoll(); npl += 1
        a(f"""
        s_mov_b32 s51, 0x9e3779b9
        """)
        catchup(fw, npl)
        a(f"""
        {"" if ab & 4 else f"s_atomic_add s51, s[{sWS}:{sWS+1}], s50"}
        s_waitcnt vmcnt({16+npl})
        s_barrier
        """)
        if lp & 2: lpoll(); npl += 1
        if lp & 8:
            a(f"s_waitcnt vmcnt({12+npl})"); lpoll(); npl += 1
        a(f"s_waitcnt vmcnt({8+npl})\n s_barrier")
        if lp & 16:
            a(f"s_waitcnt vmcnt({6+npl})"); lpoll(); npl += 1
        if lp & 4:
            a(f"s_waitcnt vmcnt({4+npl})"); lpoll(); npl += 1
        if lp & 16:
            a(f"s_waitcnt vmcnt({2+npl})"); lpoll(); npl += 1
        a(f"s_waitcnt vmcnt({npl})\n s_barrier")
        lfin()
    if se:
        a(f"""
        s_barrier
        ds_read_b32 v{vEL}, v{vLN} offset:1536
        s_mov_b32 s51, 0x9e3779b9
        s_waitcnt lgkmcnt(0)
        v_readfirstlane_b32 s{sX}, v{vEL}
        s_and_b32 s{sX}, s{sX}, s{sC0}
        s_cmp_eq_u32 s{sX}, s{sC0}
        s_cbranch_scc0 L_lnw
        s_atomic_add s51, s[{sWS}:{sWS+1}], s50
        """)
        a.label("L_lnw", flush=False)
        for p in range(2, -1, -1):
            a(f"s_waitcnt vmcnt({8*p})")
            a("s_barrier")
        lfin()
    if not se: ltail()
    if sa:
        a.label("L_spin0")
        if saw >= 0: a(f"s_cmp_eq_u32 s2, {saw}\n s_cbranch_scc0 L_end")
        a.label("L_spin")
        a("""
        s_memrealtime s[72:73]
        s_waitcnt lgkmcnt(0)
        s_sub_u32 s72, s72, s74
        s_cmp_lt_u32 s72, 2500
        s_cbranch_scc1 L_spin
        s_endpgm
        """)
    a.label("L_loop")
    a(f"s_lshl_b32 s{sTHR}, s{sKK}, 9")
    a(f"s_bitset1_b32 s{sTHR}, 8")
    poll()
    stampm()
    for tl in range(2):
        for j in range(4): a(f"ds_read_b128 v[{KR+16*tl+4*j}:{KR+16*tl+4*j+3}], v{RK[j]} offset:{4096*tl}")
    a(f"""
    s_add_u32 s{sIT}, s{sIT}, 1
    v_mov_b32 v{cW}, s{sIT}
    """)
    for j in range(4): a(f"v_xor_b32 v{RK[j]}, 0x8000, v{RK[j]}")
    if ii: a(f"s_cmp_lg_u32 s{sIT}, s66")
    a("s_waitcnt lgkmcnt(0)")
    a(f"ds_write_b32 v{cPR}, v{cW} offset:256")
    if cp:
        a(f"""
        s_and_b32 s70, s67, 15
        s_cbranch_scc0 L_nocp
        s_mov_b32 s71, 2
        s_atomic_add s71, s[{sWS}:{sWS+1}], s68 glc
        """)
        a.label("L_nocp", flush=False)
        a("s_lshr_b32 s67, s67, 4")
    if ii:
        a(f"s_cbranch_scc1 L_noi\n s_atomic_cmpswap_x2 s[60:63], s[{sWS}:{sWS+1}], s64 glc")
        a.label("L_noi", flush=False)
    def scale(tl, j):
        o = []
        for r in range(4):
            x = KR + 16 * tl + 4 * j + r
            t0 = T + 2 * (r & 1); t1 = t0 + 1
            o += [f"v_lshlrev_b32 v{t0}, 16, v{x}",
                  f"v_and_b32 v{t1}, s{sMASK}, v{x}",
                  f"v_mul_f32 v{t0}, s{sSCALE}, v{t0}",
                  f"v_mul_f32 v{t1}, s{sSCALE}, v{t1}",
                  f"v_cvt_pk_bf16_f32 v{x}, v{t0}, v{t1}"]
        for r in range(4):
            x = KR + 16 * tl + 4 * j + r
            acc = SQA + 2 * tl + (r & 1)
            if j == 0 and r < 2: o.append(f"v_dot2_f32_bf16 v{acc}, v{x}, v{x}, 0")
            else: o.append(f"v_dot2_f32_bf16 v{acc}, v{x}, v{x}, v{acc}")
        return o
    def projm(tl, j):
        o = []
        for t in range(4):
            d = PR + 16 * tl + 4 * t
            om = OM + 16 * t + 4 * j
            k = KR + 16 * tl + 4 * j
            c = "0" if j == 0 else f"v[{d}:{d+3}]"
            o.append(f"v_mfma_f32_16x16x32_bf16 v[{d}:{d+3}], v[{om}:{om+3}], v[{k}:{k+3}], {c}")
        return o
    def sqsum(tl):
        acc = SQA + 2 * tl
        return [f"v_add_f32 v{acc}, v{acc}, v{acc+1}"]
    def sqm(tl):
        acc = SQA + 2 * tl; d = SQD + 4 * tl
        return [f"v_mfma_f32_16x16x4_f32 v[{d}:{d+3}], v{NH}, v{acc}, 0"]
    def phi(tl):
        d = SQD + 4 * tl
        o = [f"v_cvt_pk_bf16_f32 v{d}, 0, v{d}"]
        for t in range(4):
            p = [PR + 16 * tl + 4 * t + r for r in range(4)]
            for x in p: o.append(f"v_cvt_pk_bf16_f32 v{x}, 0, v{x}")
            for x in p: o.append(f"v_add_f32 v{x}, v{d}, v{x}")
            for x in p: o.append(f"v_cvt_pk_bf16_f32 v{x}, 0, v{x}")
            for x in p: o.append(f"v_mul_f32 v{x}, s{sL2E}, v{x}")
            for x in p: o.append(f"v_exp_f32 v{x}, v{x}")
            h = PH + 8 * tl + 2 * t
            o.append(f"v_cvt_pk_bf16_f32 v{h}, v{p[0]}, v{p[1]}")
            o.append(f"v_cvt_pk_bf16_f32 v{h+1}, v{p[2]}, v{p[3]}")
        return o
    def wm(tl):
        d = WD + 4 * tl; h = PH + 8 * tl
        return [f"v_mfma_f32_16x16x32_bf16 v[{d}:{d+3}], v[{h}:{h+3}], v[{PQ}:{PQ+3}], v[{C}:{C+3}]",
                f"v_mfma_f32_16x16x32_bf16 v[{d}:{d+3}], v[{h+4}:{h+7}], v[{PQ+4}:{PQ+7}], v[{d}:{d+3}]"]
    def bm(t): return KR + 4 * t if t < 8 else BD
    steps = [(tl, j) for tl in range(2) for j in range(4)]
    body = scale(0, 0)
    for i in range(1, 8):
        tl, j = steps[i]
        side = projm(*steps[i - 1])
        main = scale(tl, j)
        if steps[i - 1] == (0, 3):
            main = main[:4] + sqsum(0) + main[4:]
            side = side + sqm(0)
        body += interleave(main, side, 5, lead=2)
    ph0 = phi(0)
    ph0 = ph0[:4] + sqsum(1) + ph0[4:]
    for x in body: a(x)
    a.label("L_phi0", flush=False)
    for x in interleave(ph0, projm(1, 3) + sqm(1), 4, lead=1): a(x)
    a(f"s_cmp_eq_u32 s{sIT}, -1")
    a.flush()
    a("s_cbranch_scc1 L_qpost")
    for x in interleave(phi(1), wm(0), 6, lead=3): a(x)
    for x in wm(1): a(x)
    a(f"s_add_u32 s{sKK}, s{sKK}, 4")
    a(f"s_lshl_b32 s{sTHR}, s{sKK}, 9")
    a(f"s_cmp_lt_u32 s{sKK}, 8")
    for t in (8, 0, 1, 2, 3, 4, 5, 6, 7):
        for i in range(4): a(f"v_cndmask_b32_e64 v{bm(t)+i}, 0, v{WPK+i}, s[{sMS+2*t}:{sMS+2*t+1}]")
        if t == 0: a(f"v_mfma_f32_16x16x32_bf16 v[{ACC}:{ACC+3}], v[{BD}:{BD+3}], v[{ONES}:{ONES+3}], v[{ACC}:{ACC+3}]")
    for i in range(4): a(f"v_cvt_pk_bf16_f32 v{WPK+i}, v{WD+2*i}, v{WD+2*i+1}")
    a("s_waitcnt vmcnt(0)")
    a("s_cbranch_scc1 L_loop")
    if E > 4: a(f"s_cmp_lt_u32 s{sKK}, {8+E}\n s_cselect_b32 s{sTHR}, 0, s{sTHR}")
    if cp:
        lg = 8 - gs
        a(f"""
        s_cmp_eq_u32 s70, 0
        s_cbranch_scc1 L_nocq
        s_waitcnt lgkmcnt(0)
        s_sub_u32 s71, s22, s71
        s_max_i32 s71, s71, 1
        s_flbit_i32_b32 s71, s71
        s_sub_u32 s71, s71, {31 - lg + of}
        s_max_i32 s71, s71, 0
        s_mul_i32 s71, s71, s70
        s_lshr_b32 s71, s71, 1
        s_add_u32 s69, s69, s71
        s_add_u32 s22, s22, {2 << lg}
        v_mov_b32 v{cW}, s69
        ds_write_b32 v{cLN}, v{cW} offset:1280
        """)
        a.label("L_nocq", flush=False)
    poll()
    stampm()
    for t in range(8):
        r = PR + 4 * t
        a(f"ds_read_b64_tr_b16 v[{r}:{r+1}], v{RV[t]}")
        a(f"ds_read_b64_tr_b16 v[{r+2}:{r+3}], v{RV[t]} offset:4096")
    a(f"s_cmp_lt_u32 s{sKK}, 32")
    for t in range(8):
        r = PR + 4 * t
        a(f"s_waitcnt lgkmcnt({14-2*t})")
        a(f"v_mfma_f32_16x16x32_bf16 v[{ACC}:{ACC+3}], v[{bm(t)}:{bm(t)+3}], v[{r}:{r+3}], v[{ACC}:{ACC+3}]")
        a(f"v_xor_b32 v{RV[t]}, 0x8000, v{RV[t]}")
    a("s_cbranch_scc1 L_loop")
    for i in range(4): a(f"v_cndmask_b32_e64 v{BD+i}, 0, v{WPK+i}, s[{sMS+16}:{sMS+17}]")
    a(f"s_or_b64 s[{sMS+10}:{sMS+11}], s[{sMS+10}:{sMS+11}], s[{sMS+12}:{sMS+13}]")
    if se:
        a(f"""
        s_movk_i32 s65, 64
        s_cmp_lg_u32 s{sC}, {cs}
        s_cbranch_scc1 L_ne1
        s_atomic_add s65, s[{sWS}:{sWS+1}], s64 glc
        """)
        a.label("L_ne1", flush=False)
    a(f"v_cndmask_b32_e64 v{WD}, 0, v{WPK}, s[{sMS+8}:{sMS+9}]")
    a(f"v_mfma_f32_16x16x32_bf16 v[{ACC}:{ACC+3}], v[{BD}:{BD+3}], v[{ONES}:{ONES+3}], v[{ACC}:{ACC+3}]")
    for i in range(1, 4): a(f"v_cndmask_b32_e64 v{WD+i}, 0, v{WPK+i}, s[{sMS+8}:{sMS+9}]")
    for i in range(4): a(f"v_cndmask_b32_e64 v{WD+4+i}, 0, v{WPK+i}, s[{sMS+10}:{sMS+11}]")
    a(f"""
    ds_write_b128 v{cDEP}, v[{WD}:{WD+3}] offset:1024
    ds_write_b128 v{cDEP}, v[{ACC}:{ACC+3}]
    ds_write_b128 v{cDEP}, v[{WD+4}:{WD+7}] offset:2048
    v_mov_b32 v{GB}, 0
    v_mov_b32 v{GB+1}, v{EP}
    v_mov_b32 v{GB+2}, 0
    v_mov_b32 v{GB+3}, 0
    s_mov_b32 s{sMS}, 0
    s_mov_b32 s{sMS+1}, s{sMASK}
    s_waitcnt lgkmcnt(0)
    """)
    if se:
        a(f"""
        s_cbranch_scc1 L_ne2
        v_mov_b32 v{cW}, s65
        ds_write_b32 v{cLN}, v{cW} offset:1536
        s_waitcnt lgkmcnt(0)
        """)
        a.label("L_ne2", flush=False)
    stampc(58)
    a("s_barrier")
    stampc(59)
    def trs(j):
        r = PR + 8 * j
        for h in range(2):
            a(f"ds_read_b64_tr_b16 v[{r+4*h}:{r+4*h+1}], v{TV+h} offset:{8192*j}")
            a(f"ds_read_b64_tr_b16 v[{r+4*h+2}:{r+4*h+3}], v{TV+h} offset:{8192*j+4096}")
    def mms(j, w=True):
        r = PR + 8 * j
        for h in range(2):
            if w: a(f"s_waitcnt lgkmcnt({2-2*h})")
            a(f"v_mfma_f32_16x16x32_bf16 v[{ACC}:{ACC+3}], v[{KR+8*j+4*h}:{KR+8*j+4*h+3}], v[{r+4*h}:{r+4*h+3}], v[{ACC}:{ACC+3}]")
    ng = [0]
    def gload(B, restore=True):
        a(f"s_mov_b32 exec_hi, {0xff if ab & 1 else 0xffff}")
        if ab & 1: a("s_mov_b32 exec_lo, 0x00ff00ff")
        a(f"global_load_dwordx4 v[{B}:{B+3}], v{GA}, s[{sWS}:{sWS+1}]{glf}")
        if restore: a(f"s_mov_b64 exec, -1")
    def wload():
        l = "L_nb%d" % ng[0]; ng[0] += 1
        a(f"s_cbranch_scc0 {l}")
        gload(GB)
        a.label(l, flush=False)
    a(f"ds_read_b32 v{cW}, v{cLN}" + (" offset:1536" if se else ""))
    for j in range(4): a(f"ds_read_b128 v[{PH+4*j}:{PH+4*j+3}], v{cRD} offset:{8192*j}")
    for j in range(4):
        for h in range(2): a(f"ds_read_b128 v[{KR+8*j+4*h}:{KR+8*j+4*h+3}], v{cL16} offset:{8192*j+1024+1024*h}")
    a("s_waitcnt lgkmcnt(8)")
    trs(0)
    a(f"v_readfirstlane_b32 s{sX}, v{cW}")
    for i in range(3):
        a(f"v_add_f32 v{PH+i}, v{PH+i}, v{PH+4+i}")
        a(f"v_add_f32 v{PH+8+i}, v{PH+8+i}, v{PH+12+i}")
    a(f"""
    s_and_b32 s{sT2}, s{sX}, 0xc0
    s_cmpk_eq_u32 s{sT2}, 0xc0
    v_add_f32 v{ACC}, v{PH}, v{PH+8}
    v_add_f32 v{ACC+1}, v{PH+1}, v{PH+9}
    v_add_f32 v{DENR}, v{PH+2}, v{PH+10}
    v_cndmask_b32_e64 v{ACC}, v{ACC}, v{ACC+1}, s[{sMS}:{sMS+1}]
    v_add_f32 v{T}, {hex(f2u(1e-6))}, v{DENR}
    """)
    if bp == 0: wload()
    mms(0)
    a("s_barrier")
    trs(1)
    if bp == 1: wload()
    mms(1)
    a("s_barrier")
    if bp == 2: wload()
    trs(2)
    mms(2)
    if bp == 3: wload()
    stampc(61)
    a("s_barrier")
    trs(3)
    a("s_cbranch_scc1 L_win")
    mms(3)
    a(f"s_mov_b32 exec_lo, 0")
    a(f"s_mov_b32 exec_hi, {0xff if ab & 1 else 0xffff}")
    if not ab & 32: a(f"global_store_dwordx4 v{cWS}, v[{DENR}:{DENR+3}], s[{sWS}:{sWS+1}]{asf}")
    if diag: a("s_mov_b64 exec, -1")
    a("s_branch L_fin" if diag else "s_endpgm")
    if PP:
        a.label("L_retry", flush=False)
        a("s_mov_b32 exec_hi, 0xffff")
        for j in range(1, PP): a(f"global_load_dwordx4 v[{GC+4*j}:{GC+4*j+3}], v{GA}, s[{sWS}:{sWS+1}]{glf}")
        a.label("L_ring", flush=False)
        for j in range(PP):
            if diag: a(f"s_add_u32 s{sIT}, s{sIT}, 256")
            a(f"""
            s_waitcnt vmcnt({PP-1})
            v_cmp_ne_u32 vcc, v{EP}, v{GC+4*j+1}
            v_mov_b64 v[{GB}:{GB+1}], v[{GC+4*j}:{GC+4*j+1}]
            v_mov_b64 v[{GB+2}:{GB+3}], v[{GC+4*j+2}:{GC+4*j+3}]
            s_cbranch_vccz L_gotp
            global_load_dwordx4 v[{GC+4*j}:{GC+4*j+3}], v{GA}, s[{sWS}:{sWS+1}]{glf}
            """)
        a(f"""
        s_sub_u32 s{sBUD}, s{sBUD}, 16
        s_cbranch_scc0 L_ring
        s_endpgm
        """)
    a.label("L_retry0" if PP else "L_retry", flush=False)
    if diag: a(f"s_add_u32 s{sIT}, s{sIT}, 256")
    if ab & 1: a("s_mov_b32 exec_lo, 0x00ff00ff")
    a(f"""
    s_mov_b32 exec_hi, {0xff if ab & 1 else 0xffff}
    s_sub_u32 s{sBUD}, s{sBUD}, 16
    s_cbranch_scc1 L_end
    """)
    if cz:
        a(f"""
        s_waitcnt vmcnt(0)
        v_mov_b64 v[{GB}:{GB+1}], v[{GC}:{GC+1}]
        v_mov_b64 v[{GB+2}:{GB+3}], v[{GC+2}:{GC+3}]
        global_load_dwordx4 v[{GC}:{GC+3}], v{GA}, s[{sWS}:{sWS+1}]{glf}
        """)
    else:
        a(f"global_load_dwordx4 v[{GB}:{GB+3}], v{GA}, s[{sWS}:{sWS+1}]{glf}")
    a("s_mov_b64 exec, -1")
    a("s_branch L_chkb")
    a.label("L_win", flush=False)
    if cz: gload(GC)
    mms(3)
    a.label("L_chkb", flush=False)
    a(f"""
    s_waitcnt vmcnt({cz})
    v_cmp_ne_u32 vcc, v{EP}, v{GB+1}
    {"" if nog else "s_cbranch_vccnz L_retry"}
    """)
    if PP:
        a.label("L_gotp", flush=False)
        a("s_mov_b32 exec_hi, -1")
    stampc(62)
    a(f"""
    v_add_f32_dpp v{GB}, v{GB}, v{GB} row_bcast:15 row_mask:0xa bank_mask:0xf
    v_permlane16_swap_b32 v{GB+2}, v{GB+3}
    s_nop 0
    v_add_f32_dpp v{GB}, v{GB}, v{GB} row_bcast:31 row_mask:0xc bank_mask:0xf
    v_add_f32 v{GB+2}, v{GB+2}, v{GB+3}
    v_add_f32 v{GB}, v{GB}, v{T}
    v_add_f32 v{GB+3}, v{GB+2}, v{ACC}
    v_permlane32_swap_b32 v{GB+1}, v{GB+2}
    v_rcp_f32 v{GB}, v{GB}
    s_mov_b32 exec_lo, 0
    v_add_f32 v{GB+3}, v{GB+3}, v{GB+1}
    v_mul_f32 v{GB+3}, v{GB+3}, v{GB}
    v_cvt_pk_bf16_f32 v{GB+3}, v{GB+3}, v{GB+3}
    """)
    if not ab & 8: a(f"global_store_short v{cOUT}, v{GB+3}, s[{sOUT}:{sOUT+1}]{outsc}")
    if diag:
        a("s_mov_b64 exec, -1")
        stampc(5)
        if diag == 4:
            a("s_waitcnt vmcnt(0)")
            stampc(6)
        a.label("L_fin")
        a(f"s_memrealtime s[{sRAW}:{sRAW+1}]")
        a(f"s_getreg_b32 s76, hwreg(HW_REG_XCC_ID)")
        a("s_waitcnt lgkmcnt(0)")
        a(f"v_writelane_b32 v{DG}, s{sRAW}, 7")
        a(f"v_writelane_b32 v{DG}, s76, 63")
        a(f"v_writelane_b32 v{DG}, s{sIT}, 60")
        a(f"""
        s_mul_i32 s{sT}, s2, 5
        s_lshr_b32 s{sT2}, s{sW}, 6
        s_add_u32 s{sT}, s{sT}, s{sT2}
        s_lshl_b32 s{sT}, s{sT}, 8
        s_add_u32 s{sT}, s{sT}, 0x100000
        v_lshl_add_u32 v{T}, v{LANE}, 2, s{sT}
        global_store_dword v{T}, v{DG}, s[{sWS}:{sWS+1}]
        """)
    a.label("L_end", flush=False)
    a("s_endpgm")
    a.label("L_qpost")
    a(f"v_mov_b32 v{T+2}, {hex(f2u(1e-6) - (3 << 23))}")
    a(f"s_mov_b32 s{sT}, {hex(f2u(0.015625))}")
    for i in range(8):
        x = PH + i
        a(f"""
        v_lshlrev_b32 v{T}, 16, v{x}
        v_and_b32 v{T+1}, s{sMASK}, v{x}
        v_fma_f32 v{T}, v{T}, s{sT}, v{T+2}
        v_fma_f32 v{T+1}, v{T+1}, s{sT}, v{T+2}
        v_cvt_pk_bf16_f32 v{PQ+i}, v{T}, v{T+1}
        """)
    a(f"v_mfma_f32_16x16x32_bf16 v[{C}:{C+3}], v[{ONES}:{ONES+3}], v[{PQ}:{PQ+3}], 0")
    a(f"s_add_u32 s{sEP}, s{sEP}, 0x9e3779b9")
    a(f"v_mfma_f32_16x16x32_bf16 v[{C}:{C+3}], v[{ONES}:{ONES+3}], v[{PQ+4}:{PQ+7}], v[{C}:{C+3}]")
    a(f"""
    s_mov_b32 s{sIT}, 0
    v_mov_b32 v{EP}, s{sEP}
    """)
    if cp:
        tab = sum(g << (4 * (it - 1)) for it, g in cp)
        a(f"""
        s_cmp_eq_u32 s{sC}, {cm}
        s_cselect_b32 s67, {hex(tab)}, 0
        s_add_u32 s22, s22, {(2 << (8 - gs)) - 1}
        s_mov_b32 s69, 0
        """)
    if ii:
        si = 2
        a(f"""
        s_cmp_eq_u32 s{sEP}, s{sCT+1}
        s_cselect_b32 s{sT}, 4, s{sC}
        s_cmp_lg_u32 s{sT}, {cs}
        s_cselect_b32 s66, 0, {ii}
        s_mov_b32 s60, 0
        s_mov_b32 s61, s{sEP}
        """)
    if el and not ii: a(f"""
    s_cmp_eq_u32 s{sEP}, s{sCT+1}
    s_cselect_b32 s{sT}, 4, s{sC}
    s_cmp_lg_u32 s{sT}, {cs}
    s_cbranch_scc1 L_c2
    {f"s_cmp_lg_u32 s{sPART}, 0" if ab & 2 else ""}
    {"s_cbranch_scc1 L_c2" if ab & 2 else ""}
    """)
    if el and si == 1: a(f"""
    s_mov_b32 s60, 0
    s_mov_b32 s61, s{sEP}
    s_atomic_cmpswap_x2 s[60:63], s[{sWS}:{sWS+1}], s64 glc
    """)
    if el and si == 0: a(f"""
    s_mov_b64 exec, 1
    v_mov_b32 v{CT}, 0
    v_mov_b32 v{CT+1}, s{sEP}
    v_mov_b32 v{CT+2}, s{sCT}
    v_mov_b32 v{CT+3}, s{sCT+1}
    global_atomic_cmpswap_x2 v{cAT}, v[{CT}:{CT+3}], s[{sWS}:{sWS+1}] sc1{csf}
    s_mov_b64 exec, -1
    """)
    a.label("L_c2", flush=False)
    a("s_nop 1")
    for i in range(4): a(f"v_mul_f32 v{C+i}, {hex(f2u(1e-6) + (3 << 23))}, v{C+i}")
    stampc(3)
    a.flush()
    a("s_branch L_loop")
    a.raw("L_codeend:")
    a.raw(f""".section .rodata,"a"
.p2align 6
.amdhsa_kernel {NAME}_kernel
  .amdhsa_next_free_vgpr 256
  .amdhsa_next_free_sgpr {96 if diag == 3 else 80}
  .amdhsa_accum_offset 256
  .amdhsa_group_segment_fixed_size 0
  .amdhsa_kernarg_size 56
  .amdhsa_user_sgpr_count 2
  .amdhsa_user_sgpr_kernarg_segment_ptr 1
  .amdhsa_system_sgpr_workgroup_id_x 1
.end_amdhsa_kernel""")
    return a

if __name__ == "__main__":
    out = sys.argv[1]
    kw = dict(x.split("=") for x in sys.argv[2:])
    for key in ("nt", "outsc", "asf", "glf", "raf", "rlf"):
        if key in kw: kw[key] = "" if kw[key] == "0" else " " + kw[key].replace("+", " ")
    a = gen(**kw)
    open(out, "w").write(a.text())
    print("wrote", out, "nops inserted:", a.nops)
```

```python
import sys, struct
from asmlib import Asm, interleave

NAME = "standalone__linear_kernel_rfa__decode"
def f2u(x): return struct.unpack("<I", struct.pack("<f", x))[0]

def gen(nt=" nt", diag="0", al="12", N="16", el="3", K0="4", SL="11", am="g0", pk="0", bp="0", pr="3", cpr="0", gr="1", amp=""):
    gr = int(gr)
    diag = int(diag); N = int(N); el = int(el); K0 = int(K0); SL = int(SL); pk = int(pk); bp = int(bp); cpr = int(cpr)
    a = Asm()
    OMB = 131072; LND = 147712; PRG = LND + 256; RED = 151552; WB = RED + 4096 + 256
    LDS = WB + 2048
    EPOCH = 0x80000; STEP = 32768
    SK, SV, SO, SQ = 4, 8, 12, 16
    sOUT, sWS = 20, 24
    sW, sHEAD, sPART, sT, sT2, sX, sBUD = 26, 27, 28, 29, 30, 31, 32
    sL, sKO, sM, sC0, sFL = 33, 34, 36, 49, 37
    VK = [176, 177, 178, 179]; VV = [5, 6, 17, 18]; vLN = 8; vPA = 9; vT = 10; vP = 11; vTA = 12; vEL = 15; v64 = 16
    sC, sXR, sTHR, sMASK, sSCALE, sL2E, sEP = 33, 34, 35, 36, 38, 40, 42
    sMS = 44; sM3 = 46; sDG = 48
    sCT = 62
    RK = [8, 9, 10, 11]; TV = 12; cWW = 14; cWA = 15; cPA = 16
    NH = 20; LANE = 21; cLN = 1; cPR = 2; cW = 4; EP = 151; DENR = 150; cRD = 5; cWS = 6; cOUT = 22; cAT = 161
    ONES = 24; C = 28; PQ = 32; WPK = 40; WD = 44; SQD = 52; SQA = 60
    KR = 64; PR = 96; PH = 128; T = 144; ACC = 152; AC1 = 156; DUM = 160; DG = 164; DEN = 168
    CT = 180; GA = 186; OM = 192; GB = 172
    sRAW = 72
    def stampc(i):
        if diag:
            a(f"s_memrealtime s[{sRAW}:{sRAW+1}]")
            a("s_waitcnt lgkmcnt(0)")
            a(f"v_writelane_b32 v{DG}, s{sRAW}, {i}")
    def stampm():
        if diag:
            a(f"{'s_memtime' if diag == 2 else 's_memrealtime'} s[{sRAW}:{sRAW+1}]")
            a("s_waitcnt lgkmcnt(0)")
            a(f"v_writelane_b32 v{DG}, s{sRAW}, m0")
            a("s_add_u32 m0, m0, 1")
    npoll = [0]
    def poll(adr, thr, reg):
        l = "L_poll%d" % npoll[0]; npoll[0] += 1
        a.label(l, flush=False)
        a(f"""
        ds_read_b32 v{reg}, v{adr}
        s_sub_u32 s{sBUD}, s{sBUD}, 1
        s_cbranch_scc1 L_end
        s_waitcnt lgkmcnt(0)
        v_cmp_gt_u32 vcc, {thr}, v{reg}
        s_cbranch_vccnz {l}
        """)

    hdr = open("cdna_kernels/%s.s.ref" % NAME).read().split("; Override launch")[0]
    a.raw(hdr.rstrip())
    a.raw("; @launch grid=(256,1,1) block=(320,1,1) lds=%d" % LDS)
    a.raw('.amdgcn_target "amdgcn-amd-amdhsa--gfx950"\n.text\n.globl %s_kernel\n.p2align %s\n.p2align 8\n.type %s_kernel,@function' % (NAME, al, NAME))
    a.label(NAME + "_kernel")
    if diag or amp: a("s_memrealtime s[74:75]")
    a(f"""
    s_load_dwordx2 s[{SK}:{SK+1}], s[0:1], 8
    s_load_dwordx2 s[{SO}:{SO+1}], s[0:1], 24
    s_load_dwordx2 s[{SQ}:{SQ+1}], s[0:1], 0
    """)
    a("s_getpc_b64 s[60:61]")
    a.label("L_pc", flush=False)
    a(f"""
    v_subrev_u32 v7, 64, v0
    v_lshlrev_b32 v7, 7, v7
    v_cmp_gt_u32 vcc, L_codeend-L_pc-3, v7
    v_mov_b32 v{DUM+3}, s61
    s_cbranch_vccz L_nopf
    s_mov_b64 exec, vcc
    v_add_co_u32 v{DUM+2}, vcc, s60, v7
    v_addc_co_u32 v{DUM+3}, vcc, 0, v{DUM+3}, vcc
    global_load_dword v{DUM}, v[{DUM+2}:{DUM+3}], off
    s_mov_b64 exec, -1
    """)
    a.label("L_nopf", flush=False)
    a(f"""
    v_readfirstlane_b32 s{sW}, v0
    v_bfe_u32 v22, v0, 4, 2                    ; q = lane>>4
    v_and_b32 v23, 15, v0                      ; n = lane&15
    s_cmp_ge_u32 s2, 256
    s_cbranch_scc1 L_end
    v_xor_b32 v7, v22, v23
    v_lshlrev_b32 v7, 4, v7
    v_lshl_add_u32 v{VK[0]}, v22, 8, v7
    v_xor_b32 v{VK[1]}, 0xc40, v{VK[0]}
    v_xor_b32 v{VK[2]}, 0x1880, v{VK[0]}
    v_xor_b32 v{VK[3]}, 0x24c0, v{VK[0]}
    s_bfe_u32 s{sPART}, s2, 0x20001
    s_xor_b32 s{sT}, s2, s{sPART}
    s_and_b32 s{sT}, s{sT}, 1
    s_lshr_b32 s{sHEAD}, s2, 3
    s_lshl1_add_u32 s{sHEAD}, s{sHEAD}, s{sT}
    s_cmp_lg_u32 s{sW}, 0
    s_cbranch_scc1 L_cons
    """)
    a(f"""
    s_setprio {pr}
    s_brev_b32 s{SK+2}, 32
    s_mov_b32 s{SK+3}, 0x20000
    s_lshl_b32 s{sKO}, s{sHEAD}, 10
    s_add_u32 s{sKO}, s{sKO}, s{sPART}
    s_lshl_b32 s{sKO}, s{sKO}, 10
    s_mov_b32 m0, 0
    v_and_b32 v19, {16 << int(am[1])}, v0
    v_lshlrev_b32 v19, {15 - int(am[1])}, v19
    """)
    for i in range(4): a(f"v_xor_b32 v{VK[i]}, v19, v{VK[i]}")
    if diag:
        a("s_waitcnt lgkmcnt(0)")
        a(f"v_mov_b32 v{DG}, 0")
        a(f"v_writelane_b32 v{DG}, s74, 0")
        stampc(1)
    a("s_waitcnt lgkmcnt(0)")
    a.label("L_k0", flush=False)
    for i in range(4): a(f"buffer_load_dwordx4 v{VK[i]}, s[{SK}:{SK+3}], s{sKO} offen offset:{1024*i}{nt} lds")
    a(f"""
    s_addk_i32 m0, 4096
    s_addk_i32 s{sKO}, 16384
    s_cmpk_lt_u32 m0, {3*8192}
    s_cbranch_scc1 L_k0
    s_branch L_setup
    """)
    a.label("L_cons")
    a(f"""
    v_and_b32 v{LANE}, 63, v0
    s_lshl_b32 s{sT}, s{sHEAD}, 8
    v_lshl_add_u32 v{KR}, v{LANE}, 2, s{sT}
    s_lshl_b32 s{sT2}, s{sW}, 6
    s_add_u32 m0, s{sT2}, {OMB - 4096}
    s_lshl4_add_u32 s{sT2}, s{sW}, {hex(2**32 - 1024)}
    s_movk_i32 s{SO+2}, 16384
    s_mov_b32 s{SO+3}, 0x20000
    s_waitcnt lgkmcnt(0)
    """)
    for i in range(4): a(f"buffer_load_dwordx4 v{VK[i]}, s[{SO}:{SO+3}], s{sT2} offen offset:{1024*i} lds")
    a(f"""
    global_load_dword v{KR}, v{KR}, s[{SQ}:{SQ+1}]
    s_load_dwordx2 s[{sWS}:{sWS+1}], s[0:1], 48
    s_load_dwordx2 s[{sOUT}:{sOUT+1}], s[0:1], 32
    {f"s_setprio {cpr}" if cpr else ""}
    s_lshr_b32 s{sC}, s{sT2}, 10
    s_mov_b32 s{sBUD}, 0x100000
    v_lshlrev_b32 v{cLN}, 2, v{LANE}
    v_add_u32 v{cLN}, {LND}, v{cLN}
    s_lshl_b32 s{sT2}, s{sC}, 8
    v_add_u32 v{cPR}, s{sT2}, v{cLN}
    v_mov_b32 v{ACC}, 0
    ds_write_b32 v{cPR}, v{ACC} offset:256
    s_lshl_b32 s{sT2}, s{sC}, 13
    v_lshl_add_u32 v7, v23, 8, v7              ; n*256 + ((q^n)*16)
    v_add_u32 v{RK[0]}, s{sT2}, v7
    v_xor_b32 v{RK[1]}, 64, v{RK[0]}
    v_xor_b32 v{RK[2]}, 0x80, v{RK[0]}
    v_xor_b32 v{RK[3]}, 0xc0, v{RK[0]}
    v_add_u32 v{T+4}, {OMB}, v7
    v_xor_b32 v{T+5}, 64, v{T+4}
    v_xor_b32 v{T+6}, 0x80, v{T+4}
    v_xor_b32 v{T+7}, 0xc0, v{T+4}
    v_lshrrev_b32 v7, 2, v{LANE}
    v_and_b32 v{TV}, 7, v7
    v_lshlrev_b32 v{TV}, 5, v{TV}
    v_lshl_add_u32 v{TV}, v7, 8, v{TV}
    v_and_b32 v7, 3, v{LANE}
    v_lshl_add_u32 v{TV}, v7, 3, v{TV}
    v_lshl_add_u32 v{cPA}, v7, 8, v{cLN}
    s_add_u32 s{sT2}, s{sT}, {EPOCH}
    v_mov_b32 v{cAT}, s{sT2}
    s_add_u32 s{sX}, s{sT2}, 128
    s_waitcnt lgkmcnt(0)
    s_load_dword s{sEP}, s[{sWS}:{sWS+1}], s{sX}
    s_load_dwordx2 s[{sCT}:{sCT+1}], s[{sWS}:{sWS+1}], s{sT2}
    """)
    if diag:
        a(f"v_mov_b32 v{DG}, 0")
        a(f"v_writelane_b32 v{DG}, s74, 0")
        a("s_mov_b32 m0, 8")
    a(f"""
    v_lshlrev_b32 v{PH+3}, 4, v22
    s_lshl_b32 s{sT2}, s{sC}, 8
    v_lshl_add_u32 v{cRD}, v23, 4, s{sT2}       ; 256c + 16n
    v_add_u32 v7, 1, v22
    v_xor_b32 v7, s{sPART}, v7
    s_lshl2_add_u32 s{sT2}, s{sC}, -4
    s_lshl4_add_u32 s{sT}, s{sT2}, s{sT}
    v_lshl_add_u32 v{cOUT}, v{LANE}, 1, s{sT}
    s_lshl_b32 s{sT}, s{sHEAD}, {SL+2}
    v_lshl_add_u32 v{GA}, v7, {SL}, s{sT}
    v_add_u32 v{GA}, v{GA}, v{cRD}
    s_lshl_b32 s{sT}, s{sC}, 6
    v_xor_b32 v{TV}, s{sT}, v{TV}
    v_xor_b32 v{TV+1}, 32, v{TV}
    v_add_u32 v{cWA}, {WB - 256}, v{PH+3}
    v_add_u32 v{cWW}, s{sT}, v{cWA}
    s_lshl_b32 s{sT}, s{sC}, 10
    s_add_u32 s{sT}, s{sT}, {RED}
    v_add_u32 v{PH+3}, s{sT}, v{PH+3}
    v_lshl_add_u32 v{PH+2}, v{LANE}, 2, s{sT}
    s_lshl2_add_u32 s{sT}, s{sHEAD}, s{sPART}
    s_lshl_b32 s{sT}, s{sT}, {SL}
    v_add_u32 v{cWS}, s{sT}, v{cRD}
    s_mov_b32 s{sMASK}, 0xffff0000
    s_mov_b32 s{sSCALE}, {hex(f2u(128.0 ** -0.25))}
    s_mov_b32 s{sL2E}, 0x3fb8aa3b
    v_mov_b32 v{NH}, -0.5
    s_mov_b32 s{sMS}, 0x00010001
    s_mov_b32 s{sMS+1}, s{sMS}
    s_mov_b32 s{sXR}, 0x8000
    """)
    if gr:
        a(f"s_mov_b32 s{sDG}, 0x00100001\n s_mov_b32 s{sDG+1}, 0x10000100")
        for r in range(1, 4): a(f"s_lshl_b64 s[{sDG+2*r}:{sDG+2*r+1}], s[{sDG}:{sDG+1}], {r}")
    if pk: a(f"s_mov_b32 s{sSCALE+1}, s{sSCALE}\n s_mov_b32 s{sL2E+1}, s{sL2E}")
    a(f"v_mov_b32 v{ONES}, 0x3f803f80")
    for i in range(1, 4): a(f"v_mov_b32 v{ONES+i}, v{ONES}")
    stampc(1)
    a(f"""
    s_mov_b32 s{sTHR}, 0
    s_waitcnt vmcnt(0)
    v_lshlrev_b32 v{T}, 16, v{KR}
    v_and_b32 v{T+1}, s{sMASK}, v{KR}
    v_mul_f32 v{T}, s{sSCALE}, v{T}
    v_mul_f32 v{T+1}, s{sSCALE}, v{T+1}
    v_cvt_pk_bf16_f32 v{T}, v{T}, v{T+1}
    s_barrier
    ds_write_b32 v{PH+2}, v{T}
    s_waitcnt lgkmcnt(0)
    """)
    for jj in range(4): a(f"ds_read_b128 v[{KR+4*jj}:{KR+4*jj+3}], v{PH+3} offset:{64*jj}")
    for j in range(4):
        for t in range(4):
            r = OM + 16 * t + 4 * j
            a(f"ds_read_b128 v[{r}:{r+3}], v{T+4+j} offset:{4096*t}")
    stampc(2)
    for j in range(4):
        a(f"s_waitcnt lgkmcnt({12-4*j})")
        k = KR + 4 * j
        a(f"v_mfma_f32_16x16x32_bf16 v[{SQD}:{SQD+3}], v[{k}:{k+3}], v[{k}:{k+3}], " + (f"v[{SQD}:{SQD+3}]" if j else "0"))
        for t in range(4):
            d = PR + 4 * t; om = OM + 16 * t + 4 * j
            a(f"v_mfma_f32_16x16x32_bf16 v[{d}:{d+3}], v[{om}:{om+3}], v[{k}:{k+3}], " + (f"v[{d}:{d+3}]" if j else "0"))
    a(f"v_mul_f32 v{SQD}, -0.5, v{SQD}")
    a.flush()
    a("s_branch L_phi0")
    a.label("L_setup")
    a(f"""
    s_load_dwordx2 s[{SV}:{SV+1}], s[0:1], 16
    s_load_dwordx2 s[{sWS}:{sWS+1}], s[0:1], 48
    s_mov_b32 s{sBUD}, 0x100000
    s_movk_i32 s{sL}, 256
    s_movk_i32 s{sM}, {3*8192}
    v_lshlrev_b32 v7, 1, v22
    v_xor_b32 v7, v7, v23
    v_lshl_add_u32 v7, v7, 4, v19
    v_lshl_add_u32 v{VV[0]}, v22, 8, v7
    v_xor_b32 v{VV[1]}, 0xc80, v{VV[0]}
    v_xor_b32 v{VV[2]}, 0x1800, v{VV[0]}
    v_xor_b32 v{VV[3]}, 0x2480, v{VV[0]}
    v_lshlrev_b32 v{vLN}, 2, v0
    v_add_u32 v{vLN}, {LND}, v{vLN}
    v_and_b32 v7, 3, v0
    v_lshl_add_u32 v{vPA}, v7, 8, v{vLN}
    s_lshl_b32 s{sT}, s{sHEAD}, 8
    s_mov_b32 s{sFL}, {EPOCH}
    s_add_u32 s{sT}, s{sT}, s{sFL}
    v_mov_b32 v{vTA}, s{sT}
    v_mov_b32 v{v64}, 64
    s_movk_i32 s{sC0}, 0xc0
    s_add_u32 s50, s{sT}, 128
    v_mov_b32 v{vEL}, 0
    """)
    if diag: a("s_mov_b32 s52, 8")
    a.label("L_k")
    a(f"""
    s_mov_b32 m0, s{sM}
    s_add_u32 s{sT}, s{sKO}, 16384
    s_waitcnt vmcnt({N})
    """)
    for i in range(4): a(f"buffer_load_dwordx4 v{VK[i]}, s[{SK}:{SK+3}], s{sKO} offen offset:{1024*i}{nt} lds")
    a(f"s_addk_i32 m0, 4096")
    a(f"s_addk_i32 s{sM}, 8192")
    for i in range(4): a(f"buffer_load_dwordx4 v{VK[i]}, s[{SK}:{SK+3}], s{sT} offen offset:{1024*i}{nt} lds")
    if N > 16: a("s_waitcnt vmcnt(24)")
    a(f"""
    v_mov_b32 v{vT}, s{sL}
    s_add_u32 s{sKO}, s{sT}, 16384
    s_bitset0_b32 s{sM}, 17
    v_and_or_b32 v{vT}, v{vEL}, s{sC0}, v{vT}
    s_addk_i32 s{sL}, 256
    s_sub_u32 s{sT2}, s{sL}, {13*256}
    ds_write_b32 v{vLN}, v{vT}
    s_cbranch_scc0 L_poll0
    s_cmpk_lg_u32 s{sL}, {(K0-1)*256}
    s_cbranch_scc1 L_k
    s_waitcnt lgkmcnt(0)
    s_barrier
    s_branch L_k
    """)
    assert npoll[0] == 0
    a.flush()
    l = "L_poll0"; npoll[0] = 1
    a.label(l, flush=False)
    a(f"""
    ds_read_b32 v{vP}, v{vPA} offset:256
    s_sub_u32 s{sBUD}, s{sBUD}, 1
    s_cbranch_scc1 L_end
    s_bitcmp1_b32 s{sKO}, 19
    s_waitcnt lgkmcnt(0)
    v_cmp_gt_u32 vcc, s{sT2}, v{vP}
    s_cbranch_vccnz {l}
    """)
    if diag:
        a(f"""
        s_cselect_b32 s53, 1, 0
        s_memrealtime s[{sRAW}:{sRAW+1}]
        s_mov_b32 m0, s52
        s_add_u32 s52, s52, 1
        s_waitcnt lgkmcnt(0)
        v_writelane_b32 v{DG}, s{sRAW}, m0
        s_cmp_eq_u32 s53, 1
        """)
    a(f"""
    s_cbranch_scc1 L_flip
    s_cmpk_lg_u32 s{sL}, {(64-el-2)*256}
    s_cbranch_scc1 L_k
    s_mov_b64 exec, 1
    global_atomic_add v{vEL}, v{vTA}, v{v64}, s[{sWS}:{sWS+1}] sc0 sc1
    s_mov_b64 exec, -1
    s_branch L_k
    """)
    a.label("L_flip")
    a(f"s_bitset0_b32 s{sKO}, 19")
    for r in VK: a(f"v_xor_b32 v{r}, s{sFL}, v{r}")
    a(f"""
    s_bitcmp1_b32 s{sL}, 12
    s_cbranch_scc0 L_k
    s_mov_b64 s[{SK}:{SK+1}], s[{SV}:{SV+1}]
    """)
    for i in range(4): a(f"v_mov_b32 v{VK[i]}, v{VV[i]}")
    a(f"""
    s_bitcmp1_b32 s{sL}, 13
    s_cbranch_scc0 L_k
    """)
    stampc(4)
    def lfin():
        if diag:
            stampc(5)
            a(f"s_sub_u32 s{sT}, 0x100000, s{sBUD}")
            a(f"v_writelane_b32 v{DG}, s{sT}, 6")
            a(f"s_or_b32 s{sX}, s{sX}, 32")
            a(f"v_writelane_b32 v{DG}, s{sX}, 2")
            a(f"v_mov_b32 v{LANE}, v0")
            a.flush()
            a("s_branch L_fin")
        else:
            a("s_endpgm")
    a(f"""
    v_readfirstlane_b32 s{sX}, v{vEL}
    s_mov_b32 s51, 0x9e3779b9
    s_cmp_eq_u32 s{sX}, s{sC0}
    s_barrier
    s_cbranch_scc0 L_lnw
    s_atomic_add s51, s[{sWS}:{sWS+1}], s50
    """)
    a.label("L_lnw", flush=False)
    for p in range(2, -1, -1):
        a(f"s_waitcnt vmcnt({8*p})")
        a("s_barrier")
    lfin()
    def putw():
        for i in range(4): a(f"v_cvt_pk_bf16_f32 v{WPK+i}, v{WD+2*i}, v{WD+2*i+1}")
        a(f"""
        s_mov_b64 exec, s[{sMS}:{sMS+1}]
        ds_write_b128 v{cWW}, v[{WPK}:{WPK+3}]
        s_mov_b64 exec, -1
        """)
    a.label("L_loop")
    poll(cLN, f"s{sTHR}", cW)
    stampm()
    for tl in range(2):
        for j in range(4): a(f"ds_read_b128 v[{KR+16*tl+4*j}:{KR+16*tl+4*j+3}], v{RK[j]} offset:{4096*tl}")
    a(f"""
    s_add_u32 s{sT}, s{sTHR}, 768
    s_min_u32 s{sT}, s{sT}, 8192
    """)
    putw()
    a(f"v_mov_b32 v{cW}, s{sT}")
    for j in range(4): a(f"v_xor_b32 v{RK[j]}, s{sXR}, v{RK[j]}")
    a(f"""
    v_add_u32 v{cWW}, 256, v{cWW}
    s_xor_b32 s{sXR}, s{sXR}, 0x10000
    s_waitcnt lgkmcnt(1)
    ds_write_b32 v{cPR}, v{cW} offset:256
    """)
    def scale(tl, j):
        o = []
        for r in range(4):
            x = KR + 16 * tl + 4 * j + r
            t0 = T + 2 * (r & 1); t1 = t0 + 1
            o += [f"v_lshlrev_b32 v{t0}, 16, v{x}",
                  f"v_and_b32 v{t1}, s{sMASK}, v{x}"]
            if pk & 1: o += [f"v_pk_mul_f32 v[{t0}:{t1}], v[{t0}:{t1}], s[{sSCALE}:{sSCALE+1}]"]
            else: o += [f"v_mul_f32 v{t0}, s{sSCALE}, v{t0}", f"v_mul_f32 v{t1}, s{sSCALE}, v{t1}"]
            o += [f"v_cvt_pk_bf16_f32 v{x}, v{t0}, v{t1}"]
        for r in range(0 if gr else 4):
            x = KR + 16 * tl + 4 * j + r
            acc = SQA + 2 * tl + (r & 1)
            if j == 0 and r < 2: o.append(f"v_dot2_f32_bf16 v{acc}, v{x}, v{x}, 0")
            else: o.append(f"v_dot2_f32_bf16 v{acc}, v{x}, v{x}, v{acc}")
        return o
    def projm(tl, j):
        o = []
        if gr:
            d = SQD + 4 * tl; k = KR + 16 * tl + 4 * j
            o.append(f"v_mfma_f32_16x16x32_bf16 v[{d}:{d+3}], v[{k}:{k+3}], v[{k}:{k+3}], " + (f"v[{d}:{d+3}]" if j else "0"))
        for t in range(4):
            d = PR + 16 * tl + 4 * t
            om = OM + 16 * t + 4 * j
            k = KR + 16 * tl + 4 * j
            c = "0" if j == 0 else f"v[{d}:{d+3}]"
            o.append(f"v_mfma_f32_16x16x32_bf16 v[{d}:{d+3}], v[{om}:{om+3}], v[{k}:{k+3}], {c}")
        return o
    def sqsum(tl):
        acc = SQA + 2 * tl; d = SQD + 4 * tl
        if gr: return [f"v_cndmask_b32_e64 v{acc}, {f'v{acc}' if r else 0}, v{d+r}, s[{sDG+2*r}:{sDG+2*r+1}]" for r in range(4)]
        return [f"v_add_f32 v{acc}, v{acc}, v{acc+1}"]
    def sqm(tl):
        acc = SQA + 2 * tl; d = SQD + 4 * tl
        return [f"v_mfma_f32_16x16x4_f32 v[{d}:{d+3}], v{NH}, v{acc}, 0"]
    def phi(tl):
        d = SQD + 4 * tl
        o = [f"v_cvt_pk_bf16_f32 v{d}, 0, v{d}"]
        for t in range(4):
            p = [PR + 16 * tl + 4 * t + r for r in range(4)]
            for x in p: o.append(f"v_cvt_pk_bf16_f32 v{x}, 0, v{x}")
            if pk & 2:
                for x in p[::2]: o.append(f"v_pk_add_f32 v[{x}:{x+1}], v[{x}:{x+1}], v[{d}:{d+1}] op_sel_hi:[1,0]")
            else:
                for x in p: o.append(f"v_add_f32 v{x}, v{d}, v{x}")
            for x in p: o.append(f"v_cvt_pk_bf16_f32 v{x}, 0, v{x}")
            if pk & 2:
                for x in p[::2]: o.append(f"v_pk_mul_f32 v[{x}:{x+1}], v[{x}:{x+1}], s[{sL2E}:{sL2E+1}]")
            else:
                for x in p: o.append(f"v_mul_f32 v{x}, s{sL2E}, v{x}")
            for x in p: o.append(f"v_exp_f32 v{x}, v{x}")
            h = PH + 8 * tl + 2 * t
            o.append(f"v_cvt_pk_bf16_f32 v{h}, v{p[0]}, v{p[1]}")
            o.append(f"v_cvt_pk_bf16_f32 v{h+1}, v{p[2]}, v{p[3]}")
        return o
    def wm(tl):
        d = WD + 4 * tl; h = PH + 8 * tl
        return [f"v_mfma_f32_16x16x32_bf16 v[{d}:{d+3}], v[{h}:{h+3}], v[{PQ}:{PQ+3}], v[{C}:{C+3}]",
                f"v_mfma_f32_16x16x32_bf16 v[{d}:{d+3}], v[{h+4}:{h+7}], v[{PQ+4}:{PQ+7}], v[{d}:{d+3}]"]
    steps = [(tl, j) for tl in range(2) for j in range(4)]
    body = scale(0, 0)
    for i in range(1, 8):
        tl, j = steps[i]
        side = projm(*steps[i - 1])
        main = scale(tl, j)
        if gr:
            if steps[i - 1] == (0, 3): main = main + sqsum(0)
            if steps[i - 1] == (1, 0): side = side + sqm(0)
            body += interleave(main, side, 3 if pk & 1 or len(side) > 5 else 4, lead=2)
            continue
        if steps[i - 1] == (0, 3):
            main = main[:4] + sqsum(0) + main[4:]
            side = side + sqm(0)
        body += interleave(main, side, 4 if pk & 1 else 5, lead=2)
    ph0 = phi(0)
    ph0 = ph0[:14] + sqsum(1) + ph0[14:] if gr else ph0[:4] + sqsum(1) + ph0[4:]
    for x in body: a(x)
    a.label("L_phi0", flush=False)
    for x in interleave(ph0, projm(1, 3) + sqm(1), 4, lead=2 if gr else 1): a(x)
    a(f"s_cmp_eq_u32 s{sTHR}, 0")
    a.flush()
    a("s_cbranch_scc1 L_qpost")
    for x in interleave(phi(1), wm(0), 6, lead=3): a(x)
    a(f"s_addk_i32 s{sTHR}, 1024")
    a(wm(1)[0])
    a(f"s_cmpk_le_u32 s{sTHR}, 8192")
    a(wm(1)[1])
    a("s_waitcnt vmcnt(0)")
    a("s_cbranch_scc1 L_loop")
    for i in range(1, 4): a(f"v_mov_b32 v{ACC+i}, 0")
    for i in range(4): a(f"v_mov_b32 v{AC1+i}, 0")
    for i in range(4): a(f"v_mov_b32 v{DEN+i}, 0")
    a(f"s_movk_i32 s{sTHR}, {8192+128}")
    a(f"v_mov_b32 v{cW}, s{sTHR}")
    putw()
    a(f"ds_write_b32 v{cPR}, v{cW} offset:256")
    a(f"v_add_u32 v{cPA}, 256, v{cPA}")
    a(f"""
    v_mov_b32 v{GB}, 0
    v_mov_b32 v{GB+1}, v{EP}
    v_mov_b32 v{GB+2}, 0
    v_mov_b32 v{GB+3}, 0
    s_mov_b32 s{sM3}, 0
    s_mov_b32 s{sM3+1}, s{sMASK}
    """)
    stampm()
    poll(cPA, f"s{sTHR}", cW)
    if amp == "d": a("s_memrealtime s[76:77]")
    stampm()
    a(f"s_movk_i32 s{sTHR}, {36*256}")
    def areads():
        for u in range(4): a(f"ds_read_b128 v[{KR+4*u}:{KR+4*u+3}], v{cWA} offset:{256+64*u}")
    def denm(u): a(f"v_mfma_f32_16x16x32_bf16 v[{DEN}:{DEN+3}], v[{KR+4*u}:{KR+4*u+3}], v[{ONES}:{ONES+3}], v[{DEN}:{DEN+3}]")
    def trs(j):
        r = PR + 8 * j
        for h in range(2):
            a(f"ds_read_b64_tr_b16 v[{r+4*h}:{r+4*h+1}], v{TV+h} offset:{8192*j}")
            a(f"ds_read_b64_tr_b16 v[{r+4*h+2}:{r+4*h+3}], v{TV+h} offset:{8192*j+4096}")
    def mms(j, left=0):
        r = PR + 8 * j
        for h in range(2):
            d = (ACC, AC1)[h]
            a(f"s_waitcnt lgkmcnt({left+2-2*h})")
            a(f"v_mfma_f32_16x16x32_bf16 v[{d}:{d+3}], v[{KR+4*j}:{KR+4*j+3}], v[{r+4*h}:{r+4*h+3}], v[{d}:{d+3}]")
    areads()
    a.label("L_vl", flush=False)
    poll(cLN, f"s{sTHR}", cW)
    stampm()
    for j in range(4): trs(j)
    a(f"v_mov_b32 v{cW}, s{sTHR}")
    for u in range(4): denm(u)
    a(f"""
    v_add_u32 v{cWA}, 256, v{cWA}
    v_xor_b32 v{TV}, s{sXR}, v{TV}
    v_xor_b32 v{TV+1}, s{sXR}, v{TV+1}
    s_addk_i32 s{sTHR}, 1024
    s_xor_b32 s{sXR}, s{sXR}, 0x10000
    s_cmpk_lt_u32 s{sTHR}, {64*256}
    """)
    for j in range(4): mms(j, 12 - 4 * j)
    a(f"ds_write_b32 v{cPR}, v{cW} offset:256")
    areads()
    a("s_cbranch_scc1 L_vl")
    a("s_waitcnt lgkmcnt(0)")
    for u in range(4): denm(u)
    stampc(58)
    a("s_barrier")
    stampc(59)
    ng = [0]
    def gload(B):
        a(f"s_mov_b32 exec_hi, 0xffff")
        a(f"global_load_dwordx4 v[{B}:{B+3}], v{GA}, s[{sWS}:{sWS+1}] sc1")
        a(f"s_mov_b64 exec, -1")
    def wload():
        l = "L_nb%d" % ng[0]; ng[0] += 1
        a(f"s_cbranch_scc0 {l}")
        gload(GB)
        a.label(l, flush=False)
    a(f"ds_read_b32 v{cW}, v{cLN}")
    trs(0)
    a(f"""
    v_mov_b32 v{DENR}, v{DEN}
    v_add_f32 v{T}, {hex(f2u(1e-6))}, v{DEN}
    s_waitcnt lgkmcnt(4)
    v_readfirstlane_b32 s{sX}, v{cW}
    s_and_b32 s{sT2}, s{sX}, 0xc0
    s_cmpk_eq_u32 s{sT2}, 0xc0
    """)
    if bp == 0: wload()
    mms(0)
    a("s_barrier")
    trs(1)
    if bp == 1: wload()
    mms(1)
    a("s_barrier")
    if bp == 2: wload()
    trs(2)
    mms(2)
    if bp == 3: wload()
    stampc(61)
    if amp == "e": a("s_memrealtime s[76:77]")
    a("s_barrier")
    trs(3)
    a("s_cbranch_scc1 L_win")
    mms(3)
    a(f"s_mov_b64 exec, 0xffff")
    a(f"v_mov_b32 v{ACC+1}, v{AC1}")
    a(f"global_store_dwordx4 v{cWS}, v[{DENR}:{DENR+3}], s[{sWS}:{sWS+1}] sc1")
    if diag: a("s_mov_b64 exec, -1")
    a("s_branch L_fin" if diag else "s_branch L_amp" if amp else "s_endpgm")
    a.label("L_retry", flush=False)
    a(f"""
    s_mov_b32 exec_hi, 0xffff
    s_sub_u32 s{sBUD}, s{sBUD}, 16
    s_cbranch_scc1 L_end
    global_load_dwordx4 v[{GB}:{GB+3}], v{GA}, s[{sWS}:{sWS+1}] sc1
    s_mov_b64 exec, -1
    s_branch L_chkb
    """)
    a.label("L_win", flush=False)
    mms(3)
    a.label("L_chkb", flush=False)
    a(f"""
    s_waitcnt vmcnt(0)
    v_cmp_ne_u32 vcc, v{EP}, v{GB+1}
    s_cbranch_vccnz L_retry
    """)
    stampc(62)
    a(f"""
    v_add_f32_dpp v{GB}, v{GB}, v{GB} row_bcast:15 row_mask:0xa bank_mask:0xf
    v_permlane16_swap_b32 v{GB+2}, v{GB+3}
    s_nop 0
    v_add_f32_dpp v{GB}, v{GB}, v{GB} row_bcast:31 row_mask:0xc bank_mask:0xf
    v_add_f32 v{GB+2}, v{GB+2}, v{GB+3}
    v_add_f32 v{GB}, v{GB}, v{T}
    v_cndmask_b32_e64 v{ACC}, v{ACC}, v{AC1}, s[{sM3}:{sM3+1}]
    v_add_f32 v{GB+3}, v{GB+2}, v{ACC}
    v_permlane32_swap_b32 v{GB+1}, v{GB+2}
    v_rcp_f32 v{GB}, v{GB}
    s_mov_b32 exec_lo, 0
    v_add_f32 v{GB+3}, v{GB+3}, v{GB+1}
    v_mul_f32 v{GB+3}, v{GB+3}, v{GB}
    v_cvt_pk_bf16_f32 v{GB+3}, v{GB+3}, v{GB+3}
    global_store_short v{cOUT}, v{GB+3}, s[{sOUT}:{sOUT+1}]
    """)
    if diag:
        a("s_mov_b64 exec, -1")
        stampc(5)
        a.label("L_fin")
        a(f"s_memrealtime s[{sRAW}:{sRAW+1}]")
        a(f"s_getreg_b32 s76, hwreg(HW_REG_XCC_ID)")
        a("s_waitcnt lgkmcnt(0)")
        a(f"v_writelane_b32 v{DG}, s{sRAW}, 7")
        a(f"v_writelane_b32 v{DG}, s76, 63")
        a(f"""
        s_mul_i32 s{sT}, s2, 5
        s_lshr_b32 s{sT2}, s{sW}, 6
        s_add_u32 s{sT}, s{sT}, s{sT2}
        s_lshl_b32 s{sT}, s{sT}, 8
        s_add_u32 s{sT}, s{sT}, 0x100000
        v_lshl_add_u32 v{T}, v{LANE}, 2, s{sT}
        global_store_dword v{T}, v{DG}, s[{sWS}:{sWS+1}]
        """)
    if amp:
        a.label("L_amp", flush=False)
        a(f"""
        s_cmp_eq_u32 s2, 100
        s_cbranch_scc0 L_end
        s_waitcnt lgkmcnt(0)
        s_sub_u32 s76, s76, s74
        s_mul_i32 s76, s76, 10
        s_add_u32 s76, s76, 3000
        s_min_u32 s76, s76, 40000
        """)
        a.label("L_amp1", flush=False)
        a(f"""
        s_memrealtime s[72:73]
        s_waitcnt lgkmcnt(0)
        s_sub_u32 s72, s72, s74
        s_cmp_lt_u32 s72, s76
        s_cbranch_scc1 L_amp1
        """)
    a.label("L_end", flush=False)
    a("s_endpgm")
    a.label("L_qpost")
    a(f"v_mov_b32 v{T+2}, {hex(f2u(1e-6) - (3 << 23))}")
    a(f"s_mov_b32 s{sT}, {hex(f2u(0.015625))}")
    for i in range(8):
        x = PH + i
        a(f"""
        v_lshlrev_b32 v{T}, 16, v{x}
        v_and_b32 v{T+1}, s{sMASK}, v{x}
        v_fma_f32 v{T}, v{T}, s{sT}, v{T+2}
        v_fma_f32 v{T+1}, v{T+1}, s{sT}, v{T+2}
        v_cvt_pk_bf16_f32 v{PQ+i}, v{T}, v{T+1}
        """)
    a(f"v_mfma_f32_16x16x32_bf16 v[{C}:{C+3}], v[{ONES}:{ONES+3}], v[{PQ}:{PQ+3}], 0")
    a(f"s_add_u32 s{sEP}, s{sEP}, 0x9e3779b9")
    a(f"v_mfma_f32_16x16x32_bf16 v[{C}:{C+3}], v[{ONES}:{ONES+3}], v[{PQ+4}:{PQ+7}], v[{C}:{C+3}]")
    a(f"""
    s_lshl_b32 s{sTHR}, s{sW}, 2               ; (c+1) << 8
    v_mov_b32 v{EP}, s{sEP}
    s_cmp_eq_u32 s{sEP}, s{sCT+1}
    s_cselect_b32 s{sT}, 4, s{sC}
    s_cmp_lg_u32 s{sT}, 0
    s_cbranch_scc1 L_c2
    s_mov_b64 exec, 1
    v_mov_b32 v{CT}, 0
    v_mov_b32 v{CT+1}, s{sEP}
    v_mov_b32 v{CT+2}, s{sCT}
    v_mov_b32 v{CT+3}, s{sCT+1}
    global_atomic_cmpswap_x2 v{cAT}, v[{CT}:{CT+3}], s[{sWS}:{sWS+1}] sc1
    s_mov_b64 exec, -1
    """)
    a.label("L_c2", flush=False)
    a("s_nop 1")
    for i in range(4): a(f"v_mul_f32 v{C+i}, {hex(f2u(1e-6) + (3 << 23))}, v{C+i}")
    stampc(3)
    if amp == "q": a("s_memrealtime s[76:77]")
    a.flush()
    a("s_branch L_loop")
    a.raw("L_codeend:")
    a.raw(f""".section .rodata,"a"
.p2align 6
.amdhsa_kernel {NAME}_kernel
  .amdhsa_next_free_vgpr 256
  .amdhsa_next_free_sgpr 80
  .amdhsa_accum_offset 256
  .amdhsa_group_segment_fixed_size 0
  .amdhsa_kernarg_size 56
  .amdhsa_user_sgpr_count 2
  .amdhsa_user_sgpr_kernarg_segment_ptr 1
  .amdhsa_system_sgpr_workgroup_id_x 1
.end_amdhsa_kernel""")
    return a

if __name__ == "__main__":
    out = sys.argv[1]
    kw = dict(x.split("=") for x in sys.argv[2:])
    for key in ("nt",):
        if key in kw: kw[key] = "" if kw[key] == "0" else " " + kw[key].replace("+", " ")
    a = gen(**kw)
    open(out, "w").write(a.text())
    print("wrote", out, "nops inserted:", a.nops)
```

```python
import sys, struct
from asmlib import Asm, interleave

NAME = "standalone__linear_kernel_rfa__decode"
def f2u(x): return struct.unpack("<I", struct.pack("<f", x))[0]

def gen(nt=" nt", diag="0", al="12", N="16", el="3", K0="4", SL="11", am="g0", pk="0", bp="0", pr="3", cpr="0", gr="1", amp="", pfk="1", fp="26"):
    pfk = int(pfk); fp = int(fp)
    gr = int(gr)
    diag = int(diag); N = int(N); el = int(el); K0 = int(K0); SL = int(SL); pk = int(pk); bp = int(bp); cpr = int(cpr)
    a = Asm()
    OMB = 131072; LND = 147712; PRG = LND + 256; RED = 151552; WB = RED + 4096 + 256
    LDS = WB + 2048
    EPOCH = 0x80000; STEP = 32768
    SK, SV, SO, SQ = 4, 8, 12, 16
    sOUT, sWS = 20, 24
    sW, sHEAD, sPART, sT, sT2, sX, sBUD = 26, 27, 28, 29, 30, 31, 32
    sL, sKO, sM, sC0, sFL = 33, 34, 36, 49, 37
    VK = [176, 177, 178, 179]; VV = [5, 6, 17, 18]; vLN = 8; vPA = 9; vT = 10; vP = 11; vTA = 12; vEL = 15; v64 = 16
    sC, sXR, sTHR, sMASK, sSCALE, sL2E, sEP = 33, 34, 35, 36, 38, 40, 42
    sMS = 44; sM3 = 46; sDG = 48
    sCT = 62
    RK = [8, 9, 10, 11]; TV = 12; cWW = 14; cWA = 15; cPA = 16
    NH = 20; LANE = 21; cLN = 1; cPR = 2; cW = 4; EP = 151; DENR = 150; cRD = 5; cWS = 6; cOUT = 22; cAT = 161
    ONES = 24; C = 28; PQ = 32; WPK = 40; WD = 44; SQD = 52; SQA = 60
    KR = 64; PR = 96; PH = 128; T = 144; ACC = 152; AC1 = 156; DUM = 160; DG = 164; DEN = 168
    CT = 180; GA = 186; OM = 192; GB = 172
    sRAW = 72
    def stampc(i):
        if diag:
            a(f"s_memrealtime s[{sRAW}:{sRAW+1}]")
            a("s_waitcnt lgkmcnt(0)")
            a(f"v_writelane_b32 v{DG}, s{sRAW}, {i}")
    def stampm():
        if diag:
            a(f"{'s_memtime' if diag == 2 else 's_memrealtime'} s[{sRAW}:{sRAW+1}]")
            a("s_waitcnt lgkmcnt(0)")
            a(f"v_writelane_b32 v{DG}, s{sRAW}, m0")
            a("s_add_u32 m0, m0, 1")
    npoll = [0]
    def poll(adr, thr, reg):
        l = "L_poll%d" % npoll[0]; npoll[0] += 1
        a.label(l, flush=False)
        a(f"""
        ds_read_b32 v{reg}, v{adr}
        s_sub_u32 s{sBUD}, s{sBUD}, 1
        s_cbranch_scc1 L_end
        s_waitcnt lgkmcnt(0)
        v_cmp_gt_u32 vcc, {thr}, v{reg}
        s_cbranch_vccnz {l}
        """)

    hdr = open("cdna_kernels/%s.s.ref" % NAME).read().split("; Override launch")[0]
    a.raw(hdr.rstrip())
    a.raw("; @launch grid=(256,1,1) block=(320,1,1) lds=%d" % LDS)
    a.raw('.amdgcn_target "amdgcn-amd-amdhsa--gfx950"\n.text\n.globl %s_kernel\n.p2align %s\n.p2align 8\n.type %s_kernel,@function' % (NAME, al, NAME))
    a.label(NAME + "_kernel")
    if diag or amp: a("s_memrealtime s[74:75]")
    a(f"""
    s_load_dwordx2 s[{SK}:{SK+1}], s[0:1], 8
    s_load_dwordx2 s[{SO}:{SO+1}], s[0:1], 24
    s_load_dwordx2 s[{SQ}:{SQ+1}], s[0:1], 0
    """)
    a("s_getpc_b64 s[60:61]")
    a.label("L_pc", flush=False)
    a(f"""
    v_subrev_u32 v7, 64, v0
    v_lshlrev_b32 v7, 7, v7
    v_cmp_gt_u32 vcc, L_codeend-L_pc-3, v7
    v_mov_b32 v{DUM+3}, s61
    s_cbranch_vccz L_nopf
    s_mov_b64 exec, vcc
    v_add_co_u32 v{DUM+2}, vcc, s60, v7
    v_addc_co_u32 v{DUM+3}, vcc, 0, v{DUM+3}, vcc
    global_load_dword v{DUM}, v[{DUM+2}:{DUM+3}], off
    s_mov_b64 exec, -1
    """)
    a.label("L_nopf", flush=False)
    a(f"""
    v_readfirstlane_b32 s{sW}, v0
    v_bfe_u32 v22, v0, 4, 2                    ; q = lane>>4
    v_and_b32 v23, 15, v0                      ; n = lane&15
    s_cmp_ge_u32 s2, 256
    s_cbranch_scc1 L_end
    v_xor_b32 v7, v22, v23
    v_lshlrev_b32 v7, 4, v7
    v_lshl_add_u32 v{VK[0]}, v22, 8, v7
    v_xor_b32 v{VK[1]}, 0xc40, v{VK[0]}
    v_xor_b32 v{VK[2]}, 0x1880, v{VK[0]}
    v_xor_b32 v{VK[3]}, 0x24c0, v{VK[0]}
    s_bfe_u32 s{sPART}, s2, 0x20001
    s_xor_b32 s{sT}, s2, s{sPART}
    s_and_b32 s{sT}, s{sT}, 1
    s_lshr_b32 s{sHEAD}, s2, 3
    s_lshl1_add_u32 s{sHEAD}, s{sHEAD}, s{sT}
    s_cmp_lg_u32 s{sW}, 0
    s_cbranch_scc1 L_cons
    """)
    a(f"""
    s_setprio {pr}
    s_brev_b32 s{SK+2}, 32
    s_mov_b32 s{SK+3}, 0x20000
    s_lshl_b32 s{sKO}, s{sHEAD}, 10
    s_add_u32 s{sKO}, s{sKO}, s{sPART}
    s_lshl_b32 s{sKO}, s{sKO}, 10
    s_mov_b32 m0, 0
    v_and_b32 v19, {16 << int(am[1])}, v0
    v_lshlrev_b32 v19, {15 - int(am[1])}, v19
    """)
    for i in range(4): a(f"v_xor_b32 v{VK[i]}, v19, v{VK[i]}")
    if diag:
        a("s_waitcnt lgkmcnt(0)")
        a(f"v_mov_b32 v{DG}, 0")
        a(f"v_writelane_b32 v{DG}, s74, 0")
        stampc(1)
    a("s_waitcnt lgkmcnt(0)")
    a.label("L_k0", flush=False)
    for i in range(4): a(f"buffer_load_dwordx4 v{VK[i]}, s[{SK}:{SK+3}], s{sKO} offen offset:{1024*i}{nt} lds")
    a(f"""
    s_addk_i32 m0, 4096
    s_addk_i32 s{sKO}, 16384
    s_cmpk_lt_u32 m0, {3*8192}
    s_cbranch_scc1 L_k0
    s_branch L_setup
    """)
    a.label("L_cons")
    a(f"""
    v_and_b32 v{LANE}, 63, v0
    s_lshl_b32 s{sT}, s{sHEAD}, 8
    v_lshl_add_u32 v{KR}, v{LANE}, 2, s{sT}
    s_lshl_b32 s{sT2}, s{sW}, 6
    s_add_u32 m0, s{sT2}, {OMB - 4096}
    s_lshl4_add_u32 s{sT2}, s{sW}, {hex(2**32 - 1024)}
    s_movk_i32 s{SO+2}, 16384
    s_mov_b32 s{SO+3}, 0x20000
    s_waitcnt lgkmcnt(0)
    """)
    for i in range(4): a(f"buffer_load_dwordx4 v{VK[i]}, s[{SO}:{SO+3}], s{sT2} offen offset:{1024*i} lds")
    a(f"""
    global_load_dword v{KR}, v{KR}, s[{SQ}:{SQ+1}]
    s_load_dwordx2 s[{sWS}:{sWS+1}], s[0:1], 48
    s_load_dwordx2 s[{sOUT}:{sOUT+1}], s[0:1], 32
    {f"s_setprio {cpr}" if cpr else ""}
    s_lshr_b32 s{sC}, s{sT2}, 10
    s_mov_b32 s{sBUD}, 0x100000
    v_lshlrev_b32 v{cLN}, 2, v{LANE}
    v_add_u32 v{cLN}, {LND}, v{cLN}
    s_lshl_b32 s{sT2}, s{sC}, 8
    v_add_u32 v{cPR}, s{sT2}, v{cLN}
    v_mov_b32 v{ACC}, 0
    ds_write_b32 v{cPR}, v{ACC} offset:256
    s_lshl_b32 s{sT2}, s{sC}, 13
    v_lshl_add_u32 v7, v23, 8, v7              ; n*256 + ((q^n)*16)
    v_add_u32 v{RK[0]}, s{sT2}, v7
    v_xor_b32 v{RK[1]}, 64, v{RK[0]}
    v_xor_b32 v{RK[2]}, 0x80, v{RK[0]}
    v_xor_b32 v{RK[3]}, 0xc0, v{RK[0]}
    v_add_u32 v{T+4}, {OMB}, v7
    v_xor_b32 v{T+5}, 64, v{T+4}
    v_xor_b32 v{T+6}, 0x80, v{T+4}
    v_xor_b32 v{T+7}, 0xc0, v{T+4}
    v_lshrrev_b32 v7, 2, v{LANE}
    v_and_b32 v{TV}, 7, v7
    v_lshlrev_b32 v{TV}, 5, v{TV}
    v_lshl_add_u32 v{TV}, v7, 8, v{TV}
    v_and_b32 v7, 3, v{LANE}
    v_lshl_add_u32 v{TV}, v7, 3, v{TV}
    v_lshl_add_u32 v{cPA}, v7, 8, v{cLN}
    s_add_u32 s{sT2}, s{sT}, {EPOCH}
    v_mov_b32 v{cAT}, s{sT2}
    s_add_u32 s{sX}, s{sT2}, 128
    s_waitcnt lgkmcnt(0)
    s_load_dword s{sEP}, s[{sWS}:{sWS+1}], s{sX}
    s_load_dwordx2 s[{sCT}:{sCT+1}], s[{sWS}:{sWS+1}], s{sT2}
    """)
    if diag:
        a(f"v_mov_b32 v{DG}, 0")
        a(f"v_writelane_b32 v{DG}, s74, 0")
        a("s_mov_b32 m0, 8")
    a(f"""
    v_lshlrev_b32 v{PH+3}, 4, v22
    s_lshl_b32 s{sT2}, s{sC}, 8
    v_lshl_add_u32 v{cRD}, v23, 4, s{sT2}       ; 256c + 16n
    v_add_u32 v7, 1, v22
    v_xor_b32 v7, s{sPART}, v7
    s_lshl2_add_u32 s{sT2}, s{sC}, -4
    s_lshl4_add_u32 s{sT}, s{sT2}, s{sT}
    v_lshl_add_u32 v{cOUT}, v{LANE}, 1, s{sT}
    s_lshl_b32 s{sT}, s{sHEAD}, {SL+2}
    v_lshl_add_u32 v{GA}, v7, {SL}, s{sT}
    v_add_u32 v{GA}, v{GA}, v{cRD}
    s_lshl_b32 s{sT}, s{sC}, 6
    v_xor_b32 v{TV}, s{sT}, v{TV}
    v_xor_b32 v{TV+1}, 32, v{TV}
    v_add_u32 v{cWA}, {WB - 256}, v{PH+3}
    v_add_u32 v{cWW}, s{sT}, v{cWA}
    s_lshl_b32 s{sT}, s{sC}, 10
    s_add_u32 s{sT}, s{sT}, {RED}
    v_add_u32 v{PH+3}, s{sT}, v{PH+3}
    v_lshl_add_u32 v{PH+2}, v{LANE}, 2, s{sT}
    s_lshl2_add_u32 s{sT}, s{sHEAD}, s{sPART}
    s_lshl_b32 s{sT}, s{sT}, {SL}
    v_add_u32 v{cWS}, s{sT}, v{cRD}
    s_mov_b32 s{sMASK}, 0xffff0000
    s_mov_b32 s{sSCALE}, {hex(f2u(128.0 ** -0.25))}
    s_mov_b32 s{sL2E}, 0x3fb8aa3b
    v_mov_b32 v{NH}, -0.5
    s_mov_b32 s{sMS}, 0x00010001
    s_mov_b32 s{sMS+1}, s{sMS}
    s_mov_b32 s{sXR}, 0x8000
    """)
    if gr:
        a(f"s_mov_b32 s{sDG}, 0x00100001\n s_mov_b32 s{sDG+1}, 0x10000100")
        for r in range(1, 4): a(f"s_lshl_b64 s[{sDG+2*r}:{sDG+2*r+1}], s[{sDG}:{sDG+1}], {r}")
    if pk: a(f"s_mov_b32 s{sSCALE+1}, s{sSCALE}\n s_mov_b32 s{sL2E+1}, s{sL2E}")
    a(f"v_mov_b32 v{ONES}, 0x3f803f80")
    for i in range(1, 4): a(f"v_mov_b32 v{ONES+i}, v{ONES}")
    stampc(1)
    a(f"""
    {f"s_lshl_b32 s{sTHR}, s{sW}, 2" if pfk else f"s_mov_b32 s{sTHR}, 0"}
    s_waitcnt vmcnt(0)
    v_lshlrev_b32 v{T}, 16, v{KR}
    v_and_b32 v{T+1}, s{sMASK}, v{KR}
    v_mul_f32 v{T}, s{sSCALE}, v{T}
    v_mul_f32 v{T+1}, s{sSCALE}, v{T+1}
    v_cvt_pk_bf16_f32 v{T}, v{T}, v{T+1}
    s_barrier
    ds_write_b32 v{PH+2}, v{T}
    s_waitcnt lgkmcnt(0)
    """)
    for jj in range(4): a(f"ds_read_b128 v[{KR+4*jj}:{KR+4*jj+3}], v{PH+3} offset:{64*jj}")
    for j in range(4):
        for t in range(4):
            r = OM + 16 * t + 4 * j
            a(f"ds_read_b128 v[{r}:{r+3}], v{T+4+j} offset:{4096*t}")
    stampc(2)
    for j in range(4):
        a(f"s_waitcnt lgkmcnt({12-4*j})")
        k = KR + 4 * j
        a(f"v_mfma_f32_16x16x32_bf16 v[{SQD}:{SQD+3}], v[{k}:{k+3}], v[{k}:{k+3}], " + (f"v[{SQD}:{SQD+3}]" if j else "0"))
        for t in range(4):
            d = PR + 4 * t; om = OM + 16 * t + 4 * j
            a(f"v_mfma_f32_16x16x32_bf16 v[{d}:{d+3}], v[{om}:{om+3}], v[{k}:{k+3}], " + (f"v[{d}:{d+3}]" if j else "0"))
    a(f"v_mul_f32 v{SQD}, -0.5, v{SQD}")
    a.flush()
    a("s_branch L_phi0")
    a.label("L_setup")
    a(f"""
    s_load_dwordx2 s[{SV}:{SV+1}], s[0:1], 16
    s_load_dwordx2 s[{sWS}:{sWS+1}], s[0:1], 48
    s_mov_b32 s{sBUD}, 0x100000
    s_movk_i32 s{sL}, 256
    s_movk_i32 s{sM}, {3*8192}
    v_lshlrev_b32 v7, 1, v22
    v_xor_b32 v7, v7, v23
    v_lshl_add_u32 v7, v7, 4, v19
    v_lshl_add_u32 v{VV[0]}, v22, 8, v7
    v_xor_b32 v{VV[1]}, 0xc80, v{VV[0]}
    v_xor_b32 v{VV[2]}, 0x1800, v{VV[0]}
    v_xor_b32 v{VV[3]}, 0x2480, v{VV[0]}
    v_lshlrev_b32 v{vLN}, 2, v0
    v_add_u32 v{vLN}, {LND}, v{vLN}
    v_and_b32 v7, 3, v0
    v_lshl_add_u32 v{vPA}, v7, 8, v{vLN}
    s_lshl_b32 s{sT}, s{sHEAD}, 8
    s_mov_b32 s{sFL}, {EPOCH}
    s_add_u32 s{sT}, s{sT}, s{sFL}
    v_mov_b32 v{vTA}, s{sT}
    v_mov_b32 v{v64}, 64
    s_movk_i32 s{sC0}, 0xc0
    s_add_u32 s50, s{sT}, 128
    v_mov_b32 v{vEL}, 0
    """)
    if diag: a("s_mov_b32 s52, 8")
    a.label("L_k")
    a(f"""
    s_mov_b32 m0, s{sM}
    s_add_u32 s{sT}, s{sKO}, 16384
    s_waitcnt vmcnt({N})
    """)
    for i in range(4): a(f"buffer_load_dwordx4 v{VK[i]}, s[{SK}:{SK+3}], s{sKO} offen offset:{1024*i}{nt} lds")
    a(f"s_addk_i32 m0, 4096")
    a(f"s_addk_i32 s{sM}, 8192")
    for i in range(4): a(f"buffer_load_dwordx4 v{VK[i]}, s[{SK}:{SK+3}], s{sT} offen offset:{1024*i}{nt} lds")
    if N > 16: a("s_waitcnt vmcnt(24)")
    a(f"""
    v_mov_b32 v{vT}, s{sL}
    s_add_u32 s{sKO}, s{sT}, 16384
    s_bitset0_b32 s{sM}, 17
    v_and_or_b32 v{vT}, v{vEL}, s{sC0}, v{vT}
    s_addk_i32 s{sL}, 256
    s_sub_u32 s{sT2}, s{sL}, {13*256}
    ds_write_b32 v{vLN}, v{vT}
    s_cbranch_scc0 L_poll0
    s_cmpk_lg_u32 s{sL}, {(K0-1)*256}
    s_cbranch_scc1 L_k
    s_waitcnt lgkmcnt(0)
    s_barrier
    s_branch L_k
    """)
    assert npoll[0] == 0
    a.flush()
    l = "L_poll0"; npoll[0] = 1
    a.label(l, flush=False)
    a(f"""
    ds_read_b32 v{vP}, v{vPA} offset:256
    s_sub_u32 s{sBUD}, s{sBUD}, 1
    s_cbranch_scc1 L_end
    s_bitcmp1_b32 s{sKO}, 19
    s_waitcnt lgkmcnt(0)
    v_cmp_gt_u32 vcc, s{sT2}, v{vP}
    s_cbranch_vccnz {l}
    """)
    if diag:
        a(f"""
        s_cselect_b32 s53, 1, 0
        s_memrealtime s[{sRAW}:{sRAW+1}]
        s_mov_b32 m0, s52
        s_add_u32 s52, s52, 1
        s_waitcnt lgkmcnt(0)
        v_writelane_b32 v{DG}, s{sRAW}, m0
        s_cmp_eq_u32 s53, 1
        """)
    a(f"""
    s_cbranch_scc1 L_flip
    s_cmpk_lg_u32 s{sL}, {(64-el-2)*256}
    s_cbranch_scc1 L_k
    s_mov_b64 exec, 1
    global_atomic_add v{vEL}, v{vTA}, v{v64}, s[{sWS}:{sWS+1}] sc0 sc1
    s_mov_b64 exec, -1
    s_branch L_k
    """)
    a.label("L_flip")
    a(f"s_bitset0_b32 s{sKO}, 19")
    for r in VK: a(f"v_xor_b32 v{r}, s{sFL}, v{r}")
    a(f"""
    s_bitcmp1_b32 s{sL}, 12
    s_cbranch_scc0 L_k
    s_mov_b64 s[{SK}:{SK+1}], s[{SV}:{SV+1}]
    """)
    for i in range(4): a(f"v_mov_b32 v{VK[i]}, v{VV[i]}")
    a(f"""
    s_bitcmp1_b32 s{sL}, 13
    s_cbranch_scc0 L_k
    """)
    stampc(4)
    def lfin():
        if diag:
            stampc(5)
            a(f"s_sub_u32 s{sT}, 0x100000, s{sBUD}")
            a(f"v_writelane_b32 v{DG}, s{sT}, 6")
            a(f"s_or_b32 s{sX}, s{sX}, 32")
            a(f"v_writelane_b32 v{DG}, s{sX}, 2")
            a(f"v_mov_b32 v{LANE}, v0")
            a.flush()
            a("s_branch L_fin")
        else:
            a("s_endpgm")
    a(f"""
    v_readfirstlane_b32 s{sX}, v{vEL}
    s_mov_b32 s51, 0x9e3779b9
    s_cmp_eq_u32 s{sX}, s{sC0}
    s_barrier
    s_cbranch_scc0 L_lnw
    s_atomic_add s51, s[{sWS}:{sWS+1}], s50
    """)
    a.label("L_lnw", flush=False)
    for p in range(2, -1, -1):
        a(f"s_waitcnt vmcnt({8*p})")
        a("s_barrier")
    lfin()
    def putw():
        for i in range(4): a(f"v_cvt_pk_bf16_f32 v{WPK+i}, v{WD+2*i}, v{WD+2*i+1}")
        a(f"""
        s_mov_b64 exec, s[{sMS}:{sMS+1}]
        ds_write_b128 v{cWW}, v[{WPK}:{WPK+3}]
        s_mov_b64 exec, -1
        """)
    def kreads():
        for tl in range(2):
            for j in range(4): a(f"ds_read_b128 v[{KR+16*tl+4*j}:{KR+16*tl+4*j+3}], v{RK[j]} offset:{4096*tl}")
    if pfk:
        a.label("L_rp")
        a(f"""
        ds_read_b32 v{cW}, v{cLN}
        s_sub_u32 s{sBUD}, s{sBUD}, 1
        s_cbranch_scc0 L_pk
        s_endpgm
        """)
    a.label("L_loop")
    if pfk: stampm()
    else:
        poll(cLN, f"s{sTHR}", cW)
        stampm()
        kreads()
        a(f"""
        s_add_u32 s{sT}, s{sTHR}, 768
        s_min_u32 s{sT}, s{sT}, 8192
        """)
        putw()
        a(f"v_mov_b32 v{cW}, s{sT}")
        for j in range(4): a(f"v_xor_b32 v{RK[j]}, s{sXR}, v{RK[j]}")
        a(f"""
        v_add_u32 v{cWW}, 256, v{cWW}
        s_xor_b32 s{sXR}, s{sXR}, 0x10000
        s_waitcnt lgkmcnt(1)
        ds_write_b32 v{cPR}, v{cW} offset:256
        """)
    def scale(tl, j):
        o = []
        for r in range(4):
            x = KR + 16 * tl + 4 * j + r
            t0 = T + 2 * (r & 1); t1 = t0 + 1
            o += [f"v_lshlrev_b32 v{t0}, 16, v{x}",
                  f"v_and_b32 v{t1}, s{sMASK}, v{x}"]
            if pk & 1: o += [f"v_pk_mul_f32 v[{t0}:{t1}], v[{t0}:{t1}], s[{sSCALE}:{sSCALE+1}]"]
            else: o += [f"v_mul_f32 v{t0}, s{sSCALE}, v{t0}", f"v_mul_f32 v{t1}, s{sSCALE}, v{t1}"]
            o += [f"v_cvt_pk_bf16_f32 v{x}, v{t0}, v{t1}"]
        for r in range(0 if gr else 4):
            x = KR + 16 * tl + 4 * j + r
            acc = SQA + 2 * tl + (r & 1)
            if j == 0 and r < 2: o.append(f"v_dot2_f32_bf16 v{acc}, v{x}, v{x}, 0")
            else: o.append(f"v_dot2_f32_bf16 v{acc}, v{x}, v{x}, v{acc}")
        return o
    def projm(tl, j):
        o = []
        if gr:
            d = SQD + 4 * tl; k = KR + 16 * tl + 4 * j
            o.append(f"v_mfma_f32_16x16x32_bf16 v[{d}:{d+3}], v[{k}:{k+3}], v[{k}:{k+3}], " + (f"v[{d}:{d+3}]" if j else "0"))
        for t in range(4):
            d = PR + 16 * tl + 4 * t
            om = OM + 16 * t + 4 * j
            k = KR + 16 * tl + 4 * j
            c = "0" if j == 0 else f"v[{d}:{d+3}]"
            o.append(f"v_mfma_f32_16x16x32_bf16 v[{d}:{d+3}], v[{om}:{om+3}], v[{k}:{k+3}], {c}")
        return o
    def sqsum(tl):
        acc = SQA + 2 * tl; d = SQD + 4 * tl
        if gr: return [f"v_cndmask_b32_e64 v{acc}, {f'v{acc}' if r else 0}, v{d+r}, s[{sDG+2*r}:{sDG+2*r+1}]" for r in range(4)]
        return [f"v_add_f32 v{acc}, v{acc}, v{acc+1}"]
    def sqm(tl):
        acc = SQA + 2 * tl; d = SQD + 4 * tl
        return [f"v_mfma_f32_16x16x4_f32 v[{d}:{d+3}], v{NH}, v{acc}, 0"]
    def phi(tl):
        d = SQD + 4 * tl
        o = [f"v_cvt_pk_bf16_f32 v{d}, 0, v{d}"]
        for t in range(4):
            p = [PR + 16 * tl + 4 * t + r for r in range(4)]
            for x in p: o.append(f"v_cvt_pk_bf16_f32 v{x}, 0, v{x}")
            if pk & 2:
                for x in p[::2]: o.append(f"v_pk_add_f32 v[{x}:{x+1}], v[{x}:{x+1}], v[{d}:{d+1}] op_sel_hi:[1,0]")
            else:
                for x in p: o.append(f"v_add_f32 v{x}, v{d}, v{x}")
            for x in p: o.append(f"v_cvt_pk_bf16_f32 v{x}, 0, v{x}")
            if pk & 2:
                for x in p[::2]: o.append(f"v_pk_mul_f32 v[{x}:{x+1}], v[{x}:{x+1}], s[{sL2E}:{sL2E+1}]")
            else:
                for x in p: o.append(f"v_mul_f32 v{x}, s{sL2E}, v{x}")
            for x in p: o.append(f"v_exp_f32 v{x}, v{x}")
            h = PH + 8 * tl + 2 * t
            o.append(f"v_cvt_pk_bf16_f32 v{h}, v{p[0]}, v{p[1]}")
            o.append(f"v_cvt_pk_bf16_f32 v{h+1}, v{p[2]}, v{p[3]}")
        return o
    def wm(tl):
        d = WD + 4 * tl; h = PH + 8 * tl
        return [f"v_mfma_f32_16x16x32_bf16 v[{d}:{d+3}], v[{h}:{h+3}], v[{PQ}:{PQ+3}], v[{C}:{C+3}]",
                f"v_mfma_f32_16x16x32_bf16 v[{d}:{d+3}], v[{h+4}:{h+7}], v[{PQ+4}:{PQ+7}], v[{d}:{d+3}]"]
    steps = [(tl, j) for tl in range(2) for j in range(4)]
    body = scale(0, 0)
    for i in range(1, 8):
        tl, j = steps[i]
        side = projm(*steps[i - 1])
        main = scale(tl, j)
        if gr:
            if steps[i - 1] == (0, 3): main = main + sqsum(0)
            if steps[i - 1] == (1, 0): side = side + sqm(0)
            body += interleave(main, side, 3 if pk & 1 or len(side) > 5 else 4, lead=2)
            continue
        if steps[i - 1] == (0, 3):
            main = main[:4] + sqsum(0) + main[4:]
            side = side + sqm(0)
        body += interleave(main, side, 4 if pk & 1 else 5, lead=2)
    ph0 = phi(0)
    ph0 = ph0[:14] + sqsum(1) + ph0[14:] if gr else ph0[:4] + sqsum(1) + ph0[4:]
    for n, x in enumerate(body):
        if pfk and n == 20:
            putw()
            a(f"v_add_u32 v{cWW}, 256, v{cWW}")
        a(x)
    a.label("L_phi0", flush=False)
    ph0 = interleave(ph0, projm(1, 3) + sqm(1), 4, lead=2 if gr else 1)
    if pfk:
        a(f"ds_read_b32 v{cW}, v{cLN}")
        a(f"s_cmpk_gt_u32 s{sTHR}, 8192")
        for x in ph0[:fp]: a(x)
        a("s_cbranch_scc1 L_nf")
        a.label("L_pk", flush=False)
        a(f"""
        s_waitcnt lgkmcnt(0)
        v_cmp_gt_u32 vcc, s{sTHR}, v{cW}
        s_cbranch_vccnz L_rp
        """)
        kreads()
        for j in range(4): a(f"v_xor_b32 v{RK[j]}, s{sXR}, v{RK[j]}")
        a(f"s_xor_b32 s{sXR}, s{sXR}, 0x10000")
        a.hist = a.hist[:-16]
        a.label("L_nf", flush=False)
        a(f"""
        s_add_u32 s{sT}, s{sTHR}, 768
        s_min_u32 s{sT}, s{sT}, 8192
        s_addk_i32 s{sTHR}, 1024
        """)
        for x in ph0[fp:]: a(x)
        a(f"""
        s_cmpk_le_u32 s{sTHR}, 2048
        s_waitcnt vmcnt(0) lgkmcnt(0)
        v_mov_b32 v{cW}, s{sT}
        ds_write_b32 v{cPR}, v{cW} offset:256
        """)
    else:
        for x in ph0: a(x)
        a(f"s_cmp_eq_u32 s{sTHR}, 0")
    a.flush()
    a("s_cbranch_scc1 L_qpost")
    for x in interleave(phi(1), wm(0), 6, lead=3): a(x)
    if pfk:
        a(wm(1)[0])
        a(f"s_cmpk_le_u32 s{sTHR}, 9216")
        a(wm(1)[1])
    else:
        a(f"s_addk_i32 s{sTHR}, 1024")
        a(wm(1)[0])
        a(f"s_cmpk_le_u32 s{sTHR}, 8192")
        a(wm(1)[1])
        a("s_waitcnt vmcnt(0)")
    a("s_cbranch_scc1 L_loop")
    for i in range(1, 4): a(f"v_mov_b32 v{ACC+i}, 0")
    for i in range(4): a(f"v_mov_b32 v{AC1+i}, 0")
    for i in range(4): a(f"v_mov_b32 v{DEN+i}, 0")
    a(f"s_movk_i32 s{sTHR}, {8192+128}")
    a(f"v_mov_b32 v{cW}, s{sTHR}")
    putw()
    a(f"ds_write_b32 v{cPR}, v{cW} offset:256")
    a(f"v_add_u32 v{cPA}, 256, v{cPA}")
    a(f"""
    v_mov_b32 v{GB}, 0
    v_mov_b32 v{GB+1}, v{EP}
    v_mov_b32 v{GB+2}, 0
    v_mov_b32 v{GB+3}, 0
    s_mov_b32 s{sM3}, 0
    s_mov_b32 s{sM3+1}, s{sMASK}
    """)
    stampm()
    poll(cPA, f"s{sTHR}", cW)
    if amp == "d": a("s_memrealtime s[76:77]")
    stampm()
    a(f"s_movk_i32 s{sTHR}, {36*256}")
    def areads():
        for u in range(4): a(f"ds_read_b128 v[{KR+4*u}:{KR+4*u+3}], v{cWA} offset:{256+64*u}")
    def denm(u): a(f"v_mfma_f32_16x16x32_bf16 v[{DEN}:{DEN+3}], v[{KR+4*u}:{KR+4*u+3}], v[{ONES}:{ONES+3}], v[{DEN}:{DEN+3}]")
    def trs(j):
        r = PR + 8 * j
        for h in range(2):
            a(f"ds_read_b64_tr_b16 v[{r+4*h}:{r+4*h+1}], v{TV+h} offset:{8192*j}")
            a(f"ds_read_b64_tr_b16 v[{r+4*h+2}:{r+4*h+3}], v{TV+h} offset:{8192*j+4096}")
    def mms(j, left=0):
        r = PR + 8 * j
        for h in range(2):
            d = (ACC, AC1)[h]
            a(f"s_waitcnt lgkmcnt({left+2-2*h})")
            a(f"v_mfma_f32_16x16x32_bf16 v[{d}:{d+3}], v[{KR+4*j}:{KR+4*j+3}], v[{r+4*h}:{r+4*h+3}], v[{d}:{d+3}]")
    areads()
    a.label("L_vl", flush=False)
    poll(cLN, f"s{sTHR}", cW)
    stampm()
    for j in range(4): trs(j)
    a(f"v_mov_b32 v{cW}, s{sTHR}")
    for u in range(4): denm(u)
    a(f"""
    v_add_u32 v{cWA}, 256, v{cWA}
    v_xor_b32 v{TV}, s{sXR}, v{TV}
    v_xor_b32 v{TV+1}, s{sXR}, v{TV+1}
    s_addk_i32 s{sTHR}, 1024
    s_xor_b32 s{sXR}, s{sXR}, 0x10000
    s_cmpk_lt_u32 s{sTHR}, {64*256}
    """)
    for j in range(4): mms(j, 12 - 4 * j)
    a(f"ds_write_b32 v{cPR}, v{cW} offset:256")
    areads()
    a("s_cbranch_scc1 L_vl")
    a("s_waitcnt lgkmcnt(0)")
    for u in range(4): denm(u)
    stampc(58)
    a("s_barrier")
    stampc(59)
    ng = [0]
    def gload(B):
        a(f"s_mov_b32 exec_hi, 0xffff")
        a(f"global_load_dwordx4 v[{B}:{B+3}], v{GA}, s[{sWS}:{sWS+1}] sc1")
        a(f"s_mov_b64 exec, -1")
    def wload():
        l = "L_nb%d" % ng[0]; ng[0] += 1
        a(f"s_cbranch_scc0 {l}")
        gload(GB)
        a.label(l, flush=False)
    a(f"ds_read_b32 v{cW}, v{cLN}")
    trs(0)
    a(f"""
    v_mov_b32 v{DENR}, v{DEN}
    v_add_f32 v{T}, {hex(f2u(1e-6))}, v{DEN}
    s_waitcnt lgkmcnt(4)
    v_readfirstlane_b32 s{sX}, v{cW}
    s_and_b32 s{sT2}, s{sX}, 0xc0
    s_cmpk_eq_u32 s{sT2}, 0xc0
    """)
    if bp == 0: wload()
    mms(0)
    a("s_barrier")
    trs(1)
    if bp == 1: wload()
    mms(1)
    a("s_barrier")
    if bp == 2: wload()
    trs(2)
    mms(2)
    if bp == 3: wload()
    stampc(61)
    if amp == "e": a("s_memrealtime s[76:77]")
    a("s_barrier")
    trs(3)
    a("s_cbranch_scc1 L_win")
    mms(3)
    a(f"s_mov_b64 exec, 0xffff")
    a(f"v_mov_b32 v{ACC+1}, v{AC1}")
    a(f"global_store_dwordx4 v{cWS}, v[{DENR}:{DENR+3}], s[{sWS}:{sWS+1}] sc1")
    if diag: a("s_mov_b64 exec, -1")
    a("s_branch L_fin" if diag else "s_branch L_amp" if amp else "s_endpgm")
    a.label("L_retry", flush=False)
    a(f"""
    s_mov_b32 exec_hi, 0xffff
    s_sub_u32 s{sBUD}, s{sBUD}, 16
    s_cbranch_scc1 L_end
    global_load_dwordx4 v[{GB}:{GB+3}], v{GA}, s[{sWS}:{sWS+1}] sc1
    s_mov_b64 exec, -1
    s_branch L_chkb
    """)
    a.label("L_win", flush=False)
    mms(3)
    a.label("L_chkb", flush=False)
    a(f"""
    s_waitcnt vmcnt(0)
    v_cmp_ne_u32 vcc, v{EP}, v{GB+1}
    s_cbranch_vccnz L_retry
    """)
    stampc(62)
    a(f"""
    v_add_f32_dpp v{GB}, v{GB}, v{GB} row_bcast:15 row_mask:0xa bank_mask:0xf
    v_permlane16_swap_b32 v{GB+2}, v{GB+3}
    s_nop 0
    v_add_f32_dpp v{GB}, v{GB}, v{GB} row_bcast:31 row_mask:0xc bank_mask:0xf
    v_add_f32 v{GB+2}, v{GB+2}, v{GB+3}
    v_add_f32 v{GB}, v{GB}, v{T}
    v_cndmask_b32_e64 v{ACC}, v{ACC}, v{AC1}, s[{sM3}:{sM3+1}]
    v_add_f32 v{GB+3}, v{GB+2}, v{ACC}
    v_permlane32_swap_b32 v{GB+1}, v{GB+2}
    v_rcp_f32 v{GB}, v{GB}
    s_mov_b32 exec_lo, 0
    v_add_f32 v{GB+3}, v{GB+3}, v{GB+1}
    v_mul_f32 v{GB+3}, v{GB+3}, v{GB}
    v_cvt_pk_bf16_f32 v{GB+3}, v{GB+3}, v{GB+3}
    global_store_short v{cOUT}, v{GB+3}, s[{sOUT}:{sOUT+1}]
    """)
    if diag:
        a("s_mov_b64 exec, -1")
        stampc(5)
        a.label("L_fin")
        a(f"s_memrealtime s[{sRAW}:{sRAW+1}]")
        a(f"s_getreg_b32 s76, hwreg(HW_REG_XCC_ID)")
        a("s_waitcnt lgkmcnt(0)")
        a(f"v_writelane_b32 v{DG}, s{sRAW}, 7")
        a(f"v_writelane_b32 v{DG}, s76, 63")
        a(f"""
        s_mul_i32 s{sT}, s2, 5
        s_lshr_b32 s{sT2}, s{sW}, 6
        s_add_u32 s{sT}, s{sT}, s{sT2}
        s_lshl_b32 s{sT}, s{sT}, 8
        s_add_u32 s{sT}, s{sT}, 0x100000
        v_lshl_add_u32 v{T}, v{LANE}, 2, s{sT}
        global_store_dword v{T}, v{DG}, s[{sWS}:{sWS+1}]
        """)
    if amp:
        a.label("L_amp", flush=False)
        a(f"""
        s_cmp_eq_u32 s2, 100
        s_cbranch_scc0 L_end
        s_waitcnt lgkmcnt(0)
        s_sub_u32 s76, s76, s74
        s_mul_i32 s76, s76, 10
        s_add_u32 s76, s76, 3000
        s_min_u32 s76, s76, 40000
        """)
        a.label("L_amp1", flush=False)
        a(f"""
        s_memrealtime s[72:73]
        s_waitcnt lgkmcnt(0)
        s_sub_u32 s72, s72, s74
        s_cmp_lt_u32 s72, s76
        s_cbranch_scc1 L_amp1
        """)
    a.label("L_end", flush=False)
    a("s_endpgm")
    a.label("L_qpost")
    a(f"v_mov_b32 v{T+2}, {hex(f2u(1e-6) - (3 << 23))}")
    a(f"s_mov_b32 s{sT}, {hex(f2u(0.015625))}")
    for i in range(8):
        x = PH + i
        a(f"""
        v_lshlrev_b32 v{T}, 16, v{x}
        v_and_b32 v{T+1}, s{sMASK}, v{x}
        v_fma_f32 v{T}, v{T}, s{sT}, v{T+2}
        v_fma_f32 v{T+1}, v{T+1}, s{sT}, v{T+2}
        v_cvt_pk_bf16_f32 v{PQ+i}, v{T}, v{T+1}
        """)
    a(f"v_mfma_f32_16x16x32_bf16 v[{C}:{C+3}], v[{ONES}:{ONES+3}], v[{PQ}:{PQ+3}], 0")
    a(f"s_add_u32 s{sEP}, s{sEP}, 0x9e3779b9")
    a(f"v_mfma_f32_16x16x32_bf16 v[{C}:{C+3}], v[{ONES}:{ONES+3}], v[{PQ+4}:{PQ+7}], v[{C}:{C+3}]")
    a(f"""
    {"" if pfk else f"s_lshl_b32 s{sTHR}, s{sW}, 2"}
    v_mov_b32 v{EP}, s{sEP}
    s_cmp_eq_u32 s{sEP}, s{sCT+1}
    s_cselect_b32 s{sT}, 4, s{sC}
    s_cmp_lg_u32 s{sT}, 0
    s_cbranch_scc1 L_c2
    s_mov_b64 exec, 1
    v_mov_b32 v{CT}, 0
    v_mov_b32 v{CT+1}, s{sEP}
    v_mov_b32 v{CT+2}, s{sCT}
    v_mov_b32 v{CT+3}, s{sCT+1}
    global_atomic_cmpswap_x2 v{cAT}, v[{CT}:{CT+3}], s[{sWS}:{sWS+1}] sc1
    s_mov_b64 exec, -1
    """)
    a.label("L_c2", flush=False)
    a("s_nop 1")
    for i in range(4): a(f"v_mul_f32 v{C+i}, {hex(f2u(1e-6) + (3 << 23))}, v{C+i}")
    stampc(3)
    if amp == "q": a("s_memrealtime s[76:77]")
    a.flush()
    a("s_branch L_loop")
    a.raw("L_codeend:")
    a.raw(f""".section .rodata,"a"
.p2align 6
.amdhsa_kernel {NAME}_kernel
  .amdhsa_next_free_vgpr 256
  .amdhsa_next_free_sgpr 80
  .amdhsa_accum_offset 256
  .amdhsa_group_segment_fixed_size 0
  .amdhsa_kernarg_size 56
  .amdhsa_user_sgpr_count 2
  .amdhsa_user_sgpr_kernarg_segment_ptr 1
  .amdhsa_system_sgpr_workgroup_id_x 1
.end_amdhsa_kernel""")
    return a

if __name__ == "__main__":
    out = sys.argv[1]
    kw = dict(x.split("=") for x in sys.argv[2:])
    for key in ("nt",):
        if key in kw: kw[key] = "" if kw[key] == "0" else " " + kw[key].replace("+", " ")
    a = gen(**kw)
    open(out, "w").write(a.text())
    print("wrote", out, "nops inserted:", a.nops)
```

```python
import re

TRANS = ("v_exp_f32", "v_log_f32", "v_rcp_f32", "v_rsq_f32", "v_sqrt_f32", "v_sin_f32", "v_cos_f32")

def regs_of(op):
    op = op.strip()
    op = op.lstrip("-")
    m = re.fullmatch(r"abs\((.*)\)", op)
    if m: op = m.group(1)
    m = re.fullmatch(r"([vas])(\d+)", op)
    if m: return [(m.group(1), int(m.group(2)))]
    m = re.fullmatch(r"([vas])\[(\d+):(\d+)\]", op)
    if m: return [(m.group(1), i) for i in range(int(m.group(2)), int(m.group(3)) + 1)]
    if op in ("vcc", "vcc_lo", "vcc_hi"): return [("s", "vcc")]
    if op in ("exec", "exec_lo", "exec_hi"): return [("s", "exec")]
    if op == "m0": return [("s", "m0")]
    return []

class Ins:
    def __init__(self, text):
        self.text = text
        t = text.split(";")[0].strip()
        parts = t.split(None, 1)
        self.op = parts[0]
        rest = parts[1] if len(parts) > 1 else ""
        ops = [o.strip() for o in rest.split(",")] if rest else []
        clean = []
        depth = 0; cur = ""
        for ch in rest:
            if ch == "[": depth += 1
            if ch == "]": depth -= 1
            if ch == "," and depth == 0:
                clean.append(cur.strip()); cur = ""
            else: cur += ch
        if cur.strip(): clean.append(cur.strip())
        if clean:
            last = clean[-1].split()
            clean[-1] = last[0]
            self.mods = last[1:]
        else:
            self.mods = []
        self.ops = clean
        op = self.op
        self.kind = "other"
        self.rd = []; self.wr = []; self.srcc = []; self.ab = []
        if op.startswith("v_mfma"):
            self.kind = "mfma"
            self.wr = regs_of(clean[0])
            self.ab = regs_of(clean[1]) + regs_of(clean[2])
            self.srcc = regs_of(clean[3])
            self.rd = self.ab + self.srcc
            if op.endswith("_f32") and op in ("v_mfma_f32_16x16x4_f32",):
                self.cls = "sgemm"; self.passes = 8
            elif op == "v_mfma_f32_32x32x2_f32":
                self.cls = "sgemm"; self.passes = 16
            elif "16x16x32" in op or "16x16x16" in op:
                self.cls = "xdl"; self.passes = 4
            elif "32x32x16" in op or "32x32x8" in op:
                self.cls = "xdl"; self.passes = 8
            else: raise ValueError(op)
        elif op.startswith("v_"):
            self.kind = "valu"
            base = op.replace("_e32", "").replace("_e64", "")
            if base in TRANS: self.kind = "trans"
            if base.startswith("v_dot"): self.kind = "dot"
            self.base = base
            if base.startswith("v_cmp"):
                self.wr = regs_of(clean[0]); self.rd = sum((regs_of(o) for o in clean[1:]), [])
            elif base.startswith("v_permlane") :
                self.wr = regs_of(clean[0]) + regs_of(clean[1]); self.rd = list(self.wr)
            elif base in ("v_add_co_u32", "v_addc_co_u32", "v_sub_co_u32", "v_div_scale_f32"):
                self.wr = regs_of(clean[0]) + regs_of(clean[1]); self.rd = sum((regs_of(o) for o in clean[2:]), [])
            else:
                self.wr = regs_of(clean[0]); self.rd = sum((regs_of(o) for o in clean[1:]), [])
                if base in ("v_fmac_f32", "v_dot2c_f32_bf16", "v_writelane_b32"): self.rd += self.wr
                if base == "v_cndmask_b32" and len(clean) == 3: self.rd += [("s", "vcc")]
        elif op.startswith("ds_read") or op.startswith("ds_bpermute") or op.startswith("ds_swizzle"):
            self.kind = "ds"
            self.wr = regs_of(clean[0]); self.rd = sum((regs_of(o) for o in clean[1:]), [])
        elif op.startswith("ds_"):
            self.kind = "ds"
            self.rd = sum((regs_of(o) for o in clean), [])
        elif op.startswith("buffer_") or op.startswith("global_"):
            self.kind = "vmem"
            allr = [regs_of(o) for o in clean]
            lds = "lds" in self.mods or "_lds_" in op
            if lds:
                self.rd = sum(allr, []) + [("s", "m0")]
            elif "load" in op:
                self.wr = allr[0]; self.rd = sum(allr[1:], [])
            elif "atomic" in op and "sc0" in self.mods:
                self.wr = allr[0]; self.rd = sum(allr, []) if op.startswith("buffer_") else sum(allr[1:], [])
            else:
                self.rd = sum(allr, [])
                self.wide_store = ("x4" in op or "x3" in op)
            self.lds = lds
        elif op.startswith("s_"):
            self.kind = "salu"
            if op in ("s_nop", "s_waitcnt", "s_barrier", "s_branch", "s_endpgm", "s_setprio", "s_sleep") or op.startswith("s_cbranch"):
                pass
            elif op.startswith("s_cmp"):
                self.rd = sum((regs_of(o) for o in clean), [])
            else:
                self.wr = regs_of(clean[0]); self.rd = sum((regs_of(o) for o in clean[1:]), [])
                if "saveexec" in op: self.wr += [("s", "exec")]
    def states(self):
        if self.op == "s_nop": return int(self.ops[0], 0) + 1
        return 1

XDL_VALU = {2: 5, 4: 8, 8: 12, 16: 20}
XDL_SRCC_OVL = {2: 4, 4: 6, 8: 10, 16: 18}
SG_VALU = {2: 4, 4: 6, 8: 10, 16: 18}
SG_SRCC_OVL = {2: 2, 4: 4, 8: 8, 16: 16}
XDL_WAR = {2: 1, 4: 3, 8: 7, 16: 15}

def isvalu(i): return i.kind in ("valu", "trans", "dot")

def need(p, c):
    n = 0
    pw = set(p.wr); cr = set(c.rd); cw = set(c.wr)
    vec = lambda s: {r for r in s if r[0] in "va" and r[0] != "s"}
    sc = lambda s: {r for r in s if r[0] == "s"}
    if p.kind == "mfma":
        D = vec(pw)
        if c.kind == "mfma":
            if D & set(c.ab):
                n = max(n, (XDL_VALU if p.cls == "xdl" else SG_VALU)[p.passes])
            if D & set(c.srcc):
                exact = (p.wr == c.srcc and p.cls == c.cls and p.passes == c.passes)
                if not exact:
                    if p.cls == "xdl": n = max(n, XDL_SRCC_OVL[p.passes])
                    elif c.cls == "sgemm": n = max(n, SG_SRCC_OVL[p.passes])
            elif D & cw:
                n = max(n, XDL_SRCC_OVL[p.passes])
        elif isvalu(c) or c.kind in ("ds", "vmem"):
            if D & (cr | cw):
                n = max(n, (XDL_VALU if p.cls == "xdl" else SG_VALU)[p.passes])
        if p.cls == "xdl" and (isvalu(c) or c.kind in ("ds", "vmem")) and set(p.srcc) & cw:
            n = max(n, XDL_WAR[p.passes])
    if isvalu(p):
        if c.kind == "mfma" and vec(pw) & cr:
            n = max(n, 3 if p.kind == "dot" else 2)
        if c.kind == "mfma" and ("s", "exec") in pw: n = max(n, 4)
        if p.kind == "trans" and (isvalu(c)) and c.kind != "trans" and vec(pw) & cr: n = max(n, 1)
        if p.kind == "trans" and c.kind == "trans" and vec(pw) & cr: n = max(n, 1)
        if p.kind == "dot":
            if c.kind == "dot" and c.base == p.base:
                srcab = set(regs_of(c.ops[1]) + regs_of(c.ops[2]))
                if vec(pw) & srcab: n = max(n, 3)
            elif vec(pw) & (cr | cw): n = max(n, 3)
        if isvalu(c):
            if c.base.startswith("v_permlane") and vec(pw) & cr: n = max(n, 2)
            if c.base in ("v_readfirstlane_b32", "v_readlane_b32") and vec(pw) & cr: n = max(n, 1)
            if sc(pw) & cr: n = max(n, 2)
            if c.base in ("v_readlane_b32", "v_writelane_b32") and sc(pw) & cr: n = max(n, 4)
            if c.base == "v_div_fmas_f32" and ("s", "vcc") in pw: n = max(n, 4)
            if any("row_" in m or "quad_perm" in m or "wave_" in m for m in c.mods) and vec(pw) & cr: n = max(n, 2)
            if "sdwa" in p.op and vec(pw) & (cr | cw): n = max(n, 1)
        if c.kind == "vmem" and sc(pw) & cr: n = max(n, 5)
        if c.kind == "salu" and sc(pw) & cr: n = max(n, 1)
    if p.kind == "salu":
        if ("s", "m0") in pw and c.kind == "vmem" and getattr(c, "lds", False): n = max(n, 1)
    if p.kind == "vmem" and getattr(p, "wide_store", False):
        if vec(set(p.rd)) & cw: n = max(n, 2)
    return n

class Asm:
    def __init__(self):
        self.lines = []
        self.hist = []
        self.nops = 0
    def raw(self, text):
        self.lines.append(text)
    def label(self, name, flush=True):
        if flush: self.flush()
        self.lines.append(name + ":")
    def flush(self):
        req = 0; dist = 0
        for p in reversed(self.hist):
            w = 0
            if p.kind == "mfma": w = (XDL_VALU if p.cls == "xdl" else SG_VALU)[p.passes]
            elif isvalu(p):
                w = 3 if p.kind == "dot" else 2
                if any(r[0] == "s" for r in p.wr): w = 5
            elif p.kind == "salu" and ("s", "m0") in p.wr: w = 1
            elif p.kind == "vmem" and getattr(p, "wide_store", False): w = 2
            req = max(req, w - dist)
            dist += p.states()
            if dist > 24: break
        self._nop(req)
        self.hist = []
    def _nop(self, n):
        while n > 0:
            k = min(n, 16)
            i = Ins("s_nop %d" % (k - 1))
            self.lines.append("    " + i.text); self.hist.append(i); self.nops += k
            n -= k
    def __call__(self, text):
        for t in text.strip().split("\n"):
            t = t.strip()
            if not t or t.startswith(";"):
                if t: self.lines.append("    " + t)
                continue
            c = Ins(t)
            req = 0; dist = 0
            for p in reversed(self.hist):
                req = max(req, need(p, c) - dist)
                dist += p.states()
                if dist > 24: break
            self._nop(req)
            self.lines.append("    " + t); self.hist.append(c)
    def text(self):
        return "\n".join(self.lines) + "\n"

def interleave(main, side, ratio, lead=0):
    out = []; si = 0
    for k, m in enumerate(main):
        if k >= lead and (k - lead) % ratio == 0 and si < len(side):
            out.append(side[si]); si += 1
        out.append(m)
    out += side[si:]
    return out

def align8(text, lo=None, hi=None, verbose=True):
    import subprocess, tempfile, os
    lines = text.split("\n")
    end = next(i for i, l in enumerate(lines) if l.startswith(".section .rodata"))
    idx = [i for i in range(end) if lines[i].startswith("    ") and not lines[i].strip().startswith(";") and lines[i].strip()]
    d = tempfile.mkdtemp()
    open(d + "/a.s", "w").write("\n".join(lines[:end]) + "\n")
    subprocess.run(["clang", "-x", "assembler", "-target", "amdgcn-amd-amdhsa", "-mcpu=gfx950", "-c", d + "/a.s", "-o", d + "/a.o"], check=True)
    o = subprocess.run(["llvm-objdump", "-d", d + "/a.o"], capture_output=True, text=True).stdout
    sz = [len(m.group(1).split()) * 4 for m in re.finditer(r"// [0-9A-F]+: ((?:[0-9A-F]{8} ?)+)", o)]
    assert len(sz) == len(idx), (len(sz), len(idx))
    a0 = next(i for i, l in enumerate(lines) if l == lo + ":") if lo else 0
    a1 = next(i for i, l in enumerate(lines) if l == hi + ":") if hi else end
    def promotable(i):
        op = lines[i].split()[0]
        return op.startswith("v_") and not op.startswith(("v_readfirstlane", "v_permlane", "v_nop")) and a0 <= i < a1
    pos = 0; run = []; bad = 0; fixed = 0
    for k, i in enumerate(idx):
        if sz[k] == 4:
            run.append((i, pos)); pos += 4; continue
        if pos % 8:
            c = [j for j, p in run if p % 8 == 0 and promotable(j)]
            if c:
                j = c[-1]; op = lines[j].split()[0]
                lines[j] = lines[j].replace(op, op + "_e64", 1); pos += 4; fixed += 1
            elif a0 <= i < a1: bad += 1
        pos += sz[k]; run = []
    if verbose: print("align8: promoted", fixed, "left", bad, "size", pos)
    return "\n".join(lines)
```

```python
import sys, struct
from asmlib import Asm, interleave, align8

NAME = "standalone__linear_kernel_rfa__decode"
def f2u(x): return struct.unpack("<I", struct.pack("<f", x))[0]

def gen(nt=" nt", diag="0", al="12", N="16", el="3", K0="4", SL="11", am="g0", pk="0", bp="0", pr="3", cpr="0", gr="1", amp="", pfk="1", fp="26", so="1", po="0", ev="2"):
    ev = int(ev)
    so = int(so); po = int(po)
    pfk = int(pfk); fp = int(fp)
    gr = int(gr)
    diag = int(diag); N = int(N); el = int(el); K0 = int(K0); SL = int(SL); pk = int(pk); bp = int(bp); cpr = int(cpr)
    a = Asm()
    OMB = 131072; LND = 147712; PRG = LND + 256; RED = 151552; WB = RED + 4096 + 256
    LDS = WB + 2048
    EPOCH = 0x80000; STEP = 32768
    SK, SV, SO, SQ = 4, 8, 12, 16
    sOUT, sWS = 20, 24
    sW, sHEAD, sPART, sT, sT2, sX, sBUD = 26, 27, 28, 29, 30, 31, 32
    sL, sKO, sM, sC0, sFL = 33, 34, 36, 49, 37
    VK = [176, 177, 178, 179]; VV = [5, 6, 17, 18]; vLN = 8; vPA = 9; vT = 10; vP = 11; vTA = 12; vEL = 15; v64 = 16
    sC, sXR, sTHR, sMASK, sSCALE, sL2E, sEP = 33, 34, 35, 36, 38, 40, 42
    sMS = 44; sM3 = 46; sDG = 48; sP = 56; sVT = 57; sVL = 58
    sCT = 62
    RK = [8, 9, 10, 11]; TV = 12; cWW = 14; cWA = 15; cPA = 16
    NH = 20; LANE = 21; cLN = 1; cPR = 2; cW = 4; EP = 151; DENR = 150; cRD = 5; cWS = 6; cOUT = 22; cAT = 161
    ONES = 24; C = 28; PQ = 32; WPK = 40; WD = 44; SQD = 52; SQA = 60
    KR = 64; PR = 96; PH = 128; T = 144; ACC = 152; AC1 = 156; DUM = 160; DG = 164; DEN = 168
    CT = 180; GA = 186; OM = 192; GB = 172
    sRAW = 72
    def stampc(i):
        if diag:
            a(f"s_memrealtime s[{sRAW}:{sRAW+1}]")
            a("s_waitcnt lgkmcnt(0)")
            a(f"v_writelane_b32 v{DG}, s{sRAW}, {i}")
    def stampm():
        if diag:
            a(f"{'s_memtime' if diag == 2 else 's_memrealtime'} s[{sRAW}:{sRAW+1}]")
            a("s_waitcnt lgkmcnt(0)")
            a(f"v_writelane_b32 v{DG}, s{sRAW}, m0")
            a("s_add_u32 m0, m0, 1")
    npoll = [0]
    def poll(adr, thr, reg):
        l = "L_poll%d" % npoll[0]; npoll[0] += 1
        a.label(l, flush=False)
        a(f"""
        ds_read_b32 v{reg}, v{adr}
        s_sub_u32 s{sBUD}, s{sBUD}, 1
        s_cbranch_scc1 L_end
        s_waitcnt lgkmcnt(0)
        v_cmp_gt_u32 vcc, {thr}, v{reg}
        s_cbranch_vccnz {l}
        """)

    hdr = open("cdna_kernels/%s.s.ref" % NAME).read().split("; Override launch")[0]
    a.raw(hdr.rstrip())
    a.raw("; @launch grid=(256,1,1) block=(320,1,1) lds=%d" % LDS)
    a.raw('.amdgcn_target "amdgcn-amd-amdhsa--gfx950"\n.text\n.globl %s_kernel\n.p2align %s\n.p2align 8\n.type %s_kernel,@function' % (NAME, al, NAME))
    a.label(NAME + "_kernel")
    if diag or amp: a("s_memrealtime s[74:75]")
    a(f"""
    s_load_dwordx2 s[{SK}:{SK+1}], s[0:1], 8
    s_load_dwordx2 s[{SO}:{SO+1}], s[0:1], 24
    s_load_dwordx2 s[{SQ}:{SQ+1}], s[0:1], 0
    """)
    a("s_getpc_b64 s[60:61]")
    a.label("L_pc", flush=False)
    a(f"""
    v_subrev_u32 v7, 64, v0
    v_lshlrev_b32 v7, 7, v7
    v_cmp_gt_u32 vcc, L_codeend-L_pc-3, v7
    v_mov_b32 v{DUM+3}, s61
    s_cbranch_vccz L_nopf
    s_mov_b64 exec, vcc
    v_add_co_u32 v{DUM+2}, vcc, s60, v7
    v_addc_co_u32 v{DUM+3}, vcc, 0, v{DUM+3}, vcc
    global_load_dword v{DUM}, v[{DUM+2}:{DUM+3}], off
    s_mov_b64 exec, -1
    """)
    a.label("L_nopf", flush=False)
    a(f"""
    v_readfirstlane_b32 s{sW}, v0
    v_bfe_u32 v22, v0, 4, 2                    ; q = lane>>4
    v_and_b32 v23, 15, v0                      ; n = lane&15
    s_cmp_ge_u32 s2, 256
    s_cbranch_scc1 L_end
    v_xor_b32 v7, v22, v23
    v_lshlrev_b32 v7, 4, v7
    v_lshl_add_u32 v{VK[0]}, v22, 8, v7
    v_xor_b32 v{VK[1]}, 0xc40, v{VK[0]}
    v_xor_b32 v{VK[2]}, 0x1880, v{VK[0]}
    v_xor_b32 v{VK[3]}, 0x24c0, v{VK[0]}
    s_bfe_u32 s{sPART}, s2, 0x20001
    s_xor_b32 s{sT}, s2, s{sPART}
    s_and_b32 s{sT}, s{sT}, 1
    s_lshr_b32 s{sHEAD}, s2, 3
    s_lshl1_add_u32 s{sHEAD}, s{sHEAD}, s{sT}
    s_cmp_lg_u32 s{sW}, 0
    s_cbranch_scc1 L_cons
    """)
    a(f"""
    s_setprio {pr}
    s_brev_b32 s{SK+2}, 32
    s_mov_b32 s{SK+3}, 0x20000
    s_lshl_b32 s{sKO}, s{sHEAD}, 10
    s_add_u32 s{sKO}, s{sKO}, s{sPART}
    s_lshl_b32 s{sKO}, s{sKO}, 10
    s_mov_b32 m0, 0
    v_and_b32 v19, {16 << int(am[1])}, v0
    v_lshlrev_b32 v19, {15 - int(am[1])}, v19
    """)
    for i in range(4): a(f"v_xor_b32 v{VK[i]}, v19, v{VK[i]}")
    if diag:
        a("s_waitcnt lgkmcnt(0)")
        a(f"v_mov_b32 v{DG}, 0")
        a(f"v_writelane_b32 v{DG}, s74, 0")
        stampc(1)
    a("s_waitcnt lgkmcnt(0)")
    a.label("L_k0", flush=False)
    for i in range(4): a(f"buffer_load_dwordx4 v{VK[i]}, s[{SK}:{SK+3}], s{sKO} offen offset:{1024*i}{nt} lds")
    a(f"""
    s_addk_i32 m0, 4096
    s_addk_i32 s{sKO}, 16384
    s_cmpk_lt_u32 m0, {3*8192}
    s_cbranch_scc1 L_k0
    s_branch L_setup
    """)
    a.label("L_cons")
    a(f"""
    v_and_b32 v{LANE}, 63, v0
    s_lshl_b32 s{sT}, s{sHEAD}, 8
    v_lshl_add_u32 v{KR}, v{LANE}, 2, s{sT}
    s_lshl_b32 s{sT2}, s{sW}, 6
    s_add_u32 m0, s{sT2}, {OMB - 4096}
    s_lshl4_add_u32 s{sT2}, s{sW}, {hex(2**32 - 1024)}
    s_movk_i32 s{SO+2}, 16384
    s_mov_b32 s{SO+3}, 0x20000
    s_waitcnt lgkmcnt(0)
    """)
    for i in range(4): a(f"buffer_load_dwordx4 v{VK[i]}, s[{SO}:{SO+3}], s{sT2} offen offset:{1024*i} lds")
    a(f"""
    global_load_dword v{KR}, v{KR}, s[{SQ}:{SQ+1}]
    s_load_dwordx2 s[{sWS}:{sWS+1}], s[0:1], 48
    s_load_dwordx2 s[{sOUT}:{sOUT+1}], s[0:1], 32
    {f"s_setprio {cpr}" if cpr else ""}
    s_lshr_b32 s{sC}, s{sT2}, 10
    s_mov_b32 s{sBUD}, 0x100000
    v_lshlrev_b32 v{cLN}, 2, v{LANE}
    v_add_u32 v{cLN}, {LND}, v{cLN}
    s_lshl_b32 s{sT2}, s{sC}, 8
    v_add_u32 v{cPR}, s{sT2}, v{cLN}
    v_mov_b32 v{ACC}, 0
    ds_write_b32 v{cPR}, v{ACC} offset:256
    s_lshl_b32 s{sT2}, s{sC}, 13
    v_lshl_add_u32 v7, v23, 8, v7              ; n*256 + ((q^n)*16)
    v_add_u32 v{RK[0]}, s{sT2}, v7
    v_xor_b32 v{RK[1]}, 64, v{RK[0]}
    v_xor_b32 v{RK[2]}, 0x80, v{RK[0]}
    v_xor_b32 v{RK[3]}, 0xc0, v{RK[0]}
    v_add_u32 v{T+4}, {OMB}, v7
    v_xor_b32 v{T+5}, 64, v{T+4}
    v_xor_b32 v{T+6}, 0x80, v{T+4}
    v_xor_b32 v{T+7}, 0xc0, v{T+4}
    v_lshrrev_b32 v7, 2, v{LANE}
    v_and_b32 v{TV}, 7, v7
    v_lshlrev_b32 v{TV}, 5, v{TV}
    v_lshl_add_u32 v{TV}, v7, 8, v{TV}
    v_and_b32 v7, 3, v{LANE}
    v_lshl_add_u32 v{TV}, v7, 3, v{TV}
    s_add_u32 s{sT2}, s{sT}, {EPOCH}
    v_mov_b32 v{cAT}, s{sT2}
    s_add_u32 s{sX}, s{sT2}, 128
    s_waitcnt lgkmcnt(0)
    s_load_dword s{sEP}, s[{sWS}:{sWS+1}], s{sX}
    s_load_dwordx2 s[{sCT}:{sCT+1}], s[{sWS}:{sWS+1}], s{sT2}
    """)
    if diag:
        a(f"v_mov_b32 v{DG}, 0")
        a(f"v_writelane_b32 v{DG}, s74, 0")
        a("s_mov_b32 m0, 8")
    a(f"""
    v_lshlrev_b32 v{PH+3}, 4, v22
    s_lshl_b32 s{sT2}, s{sC}, 8
    v_lshl_add_u32 v{cRD}, v23, 4, s{sT2}       ; 256c + 16n
    v_add_u32 v7, 1, v22
    v_xor_b32 v7, s{sPART}, v7
    s_lshl2_add_u32 s{sT2}, s{sC}, -4
    s_lshl4_add_u32 s{sT}, s{sT2}, s{sT}
    v_lshl_add_u32 v{cOUT}, v{LANE}, 1, s{sT}
    s_lshl_b32 s{sT}, s{sHEAD}, {SL+2}
    v_lshl_add_u32 v{GA}, v7, {SL}, s{sT}
    v_add_u32 v{GA}, v{GA}, v{cRD}
    s_lshl_b32 s{sT}, s{sC}, 6
    v_xor_b32 v{TV}, s{sT}, v{TV}
    v_xor_b32 v{TV+1}, 32, v{TV}
    v_add_u32 v{cWA}, {WB - 256}, v{PH+3}
    v_add_u32 v{cWW}, s{sT}, v{cWA}
    s_lshl_b32 s{sT}, s{sC}, 10
    s_add_u32 s{sT}, s{sT}, {RED}
    v_add_u32 v{PH+3}, s{sT}, v{PH+3}
    v_lshl_add_u32 v{PH+2}, v{LANE}, 2, s{sT}
    s_lshl2_add_u32 s{sT}, s{sHEAD}, s{sPART}
    s_lshl_b32 s{sT}, s{sT}, {SL}
    v_add_u32 v{cWS}, s{sT}, v{cRD}
    s_mov_b32 s{sMASK}, 0xffff0000
    s_mov_b32 s{sSCALE}, {hex(f2u(128.0 ** -0.25))}
    s_mov_b32 s{sL2E}, 0x3fb8aa3b
    v_mov_b32 v{NH}, -0.5
    s_mov_b32 s{sMS}, 0x00010001
    s_mov_b32 s{sMS+1}, s{sMS}
    s_mov_b32 s{sXR}, 0x8000
    """)
    if gr:
        a(f"s_mov_b32 s{sDG}, 0x00100001\n s_mov_b32 s{sDG+1}, 0x10000100")
        for r in range(1, 4): a(f"s_lshl_b64 s[{sDG+2*r}:{sDG+2*r+1}], s[{sDG}:{sDG+1}], {r}")
    if pk: a(f"s_mov_b32 s{sSCALE+1}, s{sSCALE}\n s_mov_b32 s{sL2E+1}, s{sL2E}")
    a(f"v_mov_b32 v{ONES}, 0x3f803f80")
    for i in range(1, 4): a(f"v_mov_b32 v{ONES+i}, v{ONES}")
    for i in range(1, 4): a(f"v_mov_b32 v{ACC+i}, 0")
    for i in range(4): a(f"v_mov_b32 v{AC1+i}, 0")
    for i in range(4): a(f"v_mov_b32 v{DEN+i}, 0")
    a(f"s_movk_i32 s{sVT}, {36*256}\n s_movk_i32 s{sVL}, {(36+4*ev if ev else 64)*256}")
    stampc(1)
    a(f"""
    {f"s_lshl_b32 s{sTHR}, s{sW}, 2" if pfk else f"s_mov_b32 s{sTHR}, 0"}
    s_waitcnt vmcnt(0)
    v_lshlrev_b32 v{T}, 16, v{KR}
    v_and_b32 v{T+1}, s{sMASK}, v{KR}
    v_mul_f32 v{T}, s{sSCALE}, v{T}
    v_mul_f32 v{T+1}, s{sSCALE}, v{T+1}
    v_cvt_pk_bf16_f32 v{T}, v{T}, v{T+1}
    s_barrier
    ds_write_b32 v{PH+2}, v{T}
    s_waitcnt lgkmcnt(0)
    """)
    for jj in range(4): a(f"ds_read_b128 v[{KR+4*jj}:{KR+4*jj+3}], v{PH+3} offset:{64*jj}")
    for j in range(4):
        for t in range(4):
            r = OM + 16 * t + 4 * j
            a(f"ds_read_b128 v[{r}:{r+3}], v{T+4+j} offset:{4096*t}")
    stampc(2)
    for j in range(4):
        a(f"s_waitcnt lgkmcnt({12-4*j})")
        k = KR + 4 * j
        a(f"v_mfma_f32_16x16x32_bf16 v[{SQD}:{SQD+3}], v[{k}:{k+3}], v[{k}:{k+3}], " + (f"v[{SQD}:{SQD+3}]" if j else "0"))
        for t in range(4):
            d = PR + 4 * t; om = OM + 16 * t + 4 * j
            a(f"v_mfma_f32_16x16x32_bf16 v[{d}:{d+3}], v[{om}:{om+3}], v[{k}:{k+3}], " + (f"v[{d}:{d+3}]" if j else "0"))
    a(f"v_mul_f32 v{SQD}, -0.5, v{SQD}")
    a.flush()
    a("s_branch L_phi0")
    a.label("L_setup")
    a(f"""
    s_load_dwordx2 s[{SV}:{SV+1}], s[0:1], 16
    s_load_dwordx2 s[{sWS}:{sWS+1}], s[0:1], 48
    s_mov_b32 s{sBUD}, 0x100000
    s_movk_i32 s{sL}, 256
    s_movk_i32 s{sM}, {3*8192}
    v_lshlrev_b32 v7, 1, v22
    v_xor_b32 v7, v7, v23
    v_lshl_add_u32 v7, v7, 4, v19
    v_lshl_add_u32 v{VV[0]}, v22, 8, v7
    v_xor_b32 v{VV[1]}, 0xc80, v{VV[0]}
    v_xor_b32 v{VV[2]}, 0x1800, v{VV[0]}
    v_xor_b32 v{VV[3]}, 0x2480, v{VV[0]}
    v_lshlrev_b32 v{vLN}, 2, v0
    v_add_u32 v{vLN}, {LND}, v{vLN}
    v_and_b32 v7, 3, v0
    v_lshl_add_u32 v{vPA}, v7, 8, v{vLN}
    s_lshl_b32 s{sT}, s{sHEAD}, 8
    s_mov_b32 s{sFL}, {EPOCH}
    s_add_u32 s{sT}, s{sT}, s{sFL}
    v_mov_b32 v{vTA}, s{sT}
    v_mov_b32 v{v64}, 64
    s_movk_i32 s{sC0}, 0xc0
    s_add_u32 s50, s{sT}, 128
    v_mov_b32 v{vEL}, 0
    """)
    if diag: a("s_mov_b32 s52, 8")
    a.label("L_k")
    a(f"""
    s_mov_b32 m0, s{sM}
    s_add_u32 s{sT}, s{sKO}, 16384
    s_waitcnt vmcnt({N})
    """)
    for i in range(4): a(f"buffer_load_dwordx4 v{VK[i]}, s[{SK}:{SK+3}], s{sKO} offen offset:{1024*i}{nt} lds")
    a(f"s_addk_i32 m0, 4096")
    a(f"s_addk_i32 s{sM}, 8192")
    for i in range(4): a(f"buffer_load_dwordx4 v{VK[i]}, s[{SK}:{SK+3}], s{sT} offen offset:{1024*i}{nt} lds")
    if N > 16: a("s_waitcnt vmcnt(24)")
    a(f"""
    v_mov_b32 v{vT}, s{sL}
    s_add_u32 s{sKO}, s{sT}, 16384
    s_bitset0_b32 s{sM}, 17
    v_and_or_b32 v{vT}, v{vEL}, s{sC0}, v{vT}
    s_addk_i32 s{sL}, 256
    s_sub_u32 s{sT2}, s{sL}, {13*256}
    ds_write_b32 v{vLN}, v{vT}
    s_cbranch_scc0 L_poll0
    s_cmpk_lg_u32 s{sL}, {(K0-1)*256}
    s_cbranch_scc1 L_k
    s_waitcnt lgkmcnt(0)
    s_barrier
    s_branch L_k
    """)
    assert npoll[0] == 0
    a.flush()
    l = "L_poll0"; npoll[0] = 1
    a.label(l, flush=False)
    a(f"""
    ds_read_b32 v{vP}, v{vPA} offset:256
    s_sub_u32 s{sBUD}, s{sBUD}, 1
    s_cbranch_scc1 L_end
    s_bitcmp1_b32 s{sKO}, 19
    s_waitcnt lgkmcnt(0)
    v_cmp_gt_u32 vcc, s{sT2}, v{vP}
    s_cbranch_vccnz {l}
    """)
    if diag:
        a(f"""
        s_cselect_b32 s53, 1, 0
        s_memrealtime s[{sRAW}:{sRAW+1}]
        s_mov_b32 m0, s52
        s_add_u32 s52, s52, 1
        s_waitcnt lgkmcnt(0)
        v_writelane_b32 v{DG}, s{sRAW}, m0
        s_cmp_eq_u32 s53, 1
        """)
    a(f"""
    s_cbranch_scc1 L_flip
    s_cmpk_lg_u32 s{sL}, {(64-el-2)*256}
    s_cbranch_scc1 L_k
    s_mov_b64 exec, 1
    global_atomic_add v{vEL}, v{vTA}, v{v64}, s[{sWS}:{sWS+1}] sc0 sc1
    s_mov_b64 exec, -1
    s_branch L_k
    """)
    a.label("L_flip")
    a(f"s_bitset0_b32 s{sKO}, 19")
    for r in VK: a(f"v_xor_b32 v{r}, s{sFL}, v{r}")
    a(f"""
    s_bitcmp1_b32 s{sL}, 12
    s_cbranch_scc0 L_k
    s_mov_b64 s[{SK}:{SK+1}], s[{SV}:{SV+1}]
    """)
    for i in range(4): a(f"v_mov_b32 v{VK[i]}, v{VV[i]}")
    a(f"""
    s_bitcmp1_b32 s{sL}, 13
    s_cbranch_scc0 L_k
    """)
    stampc(4)
    def lfin():
        if diag:
            stampc(5)
            a(f"s_sub_u32 s{sT}, 0x100000, s{sBUD}")
            a(f"v_writelane_b32 v{DG}, s{sT}, 6")
            a(f"s_or_b32 s{sX}, s{sX}, 32")
            a(f"v_writelane_b32 v{DG}, s{sX}, 2")
            a(f"v_mov_b32 v{LANE}, v0")
            a.flush()
            a("s_branch L_fin")
        else:
            a("s_endpgm")
    a(f"""
    v_readfirstlane_b32 s{sX}, v{vEL}
    s_mov_b32 s51, 0x9e3779b9
    s_cmp_eq_u32 s{sX}, s{sC0}
    s_barrier
    s_cbranch_scc0 L_lnw
    s_atomic_add s51, s[{sWS}:{sWS+1}], s50
    """)
    a.label("L_lnw", flush=False)
    for p in range(2, -1, -1):
        a(f"s_waitcnt vmcnt({8*p})")
        a("s_barrier")
    lfin()
    def putw(mid=""):
        for i in range(4): a(f"v_cvt_pk_bf16_f32 v{WPK+i}, v{WD+2*i}, v{WD+2*i+1}")
        if mid: a(mid)
        a(f"""
        s_mov_b64 exec, s[{sMS}:{sMS+1}]
        ds_write_b128 v{cWW}, v[{WPK}:{WPK+3}]
        s_mov_b64 exec, -1
        """)
    def kreads():
        for tl in range(2):
            for j in range(4): a(f"ds_read_b128 v[{KR+16*tl+4*j}:{KR+16*tl+4*j+3}], v{RK[j]} offset:{4096*tl}")
    if pfk:
        a.label("L_rp")
        a(f"""
        ds_read_b32 v{cW}, v{cLN}
        s_sub_u32 s{sBUD}, s{sBUD}, 1
        s_cbranch_scc0 L_pk
        s_endpgm
        """)
    a.label("L_loop")
    if pfk: stampm()
    else:
        poll(cLN, f"s{sTHR}", cW)
        stampm()
        kreads()
        a(f"""
        s_add_u32 s{sT}, s{sTHR}, 768
        s_min_u32 s{sT}, s{sT}, 8192
        """)
        putw()
        a(f"v_mov_b32 v{cW}, s{sT}")
        for j in range(4): a(f"v_xor_b32 v{RK[j]}, s{sXR}, v{RK[j]}")
        a(f"""
        v_add_u32 v{cWW}, 256, v{cWW}
        s_xor_b32 s{sXR}, s{sXR}, 0x10000
        s_waitcnt lgkmcnt(1)
        ds_write_b32 v{cPR}, v{cW} offset:256
        """)
    def scale(tl, j):
        o = []
        for r0 in range(0, 4, so):
            st = [[], [], []]
            for r in range(r0, r0 + so):
                x = KR + 16 * tl + 4 * j + r
                t0 = T + 2 * (r & 1); t1 = t0 + 1
                st[0] += [f"v_lshlrev_b32 v{t0}, 16, v{x}", f"v_and_b32 v{t1}, s{sMASK}, v{x}"]
                if pk & 1: st[1] += [f"v_pk_mul_f32 v[{t0}:{t1}], v[{t0}:{t1}], s[{sSCALE}:{sSCALE+1}]"]
                else: st[1] += [f"v_mul_f32 v{t0}, s{sSCALE}, v{t0}", f"v_mul_f32 v{t1}, s{sSCALE}, v{t1}"]
                st[2] += [f"v_cvt_pk_bf16_f32 v{x}, v{t0}, v{t1}"]
            o += st[0] + st[1] + st[2]
        for r in range(0 if gr else 4):
            x = KR + 16 * tl + 4 * j + r
            acc = SQA + 2 * tl + (r & 1)
            if j == 0 and r < 2: o.append(f"v_dot2_f32_bf16 v{acc}, v{x}, v{x}, 0")
            else: o.append(f"v_dot2_f32_bf16 v{acc}, v{x}, v{x}, v{acc}")
        return o
    def projm(tl, j):
        o = []
        if gr:
            d = SQD + 4 * tl; k = KR + 16 * tl + 4 * j
            o.append(f"v_mfma_f32_16x16x32_bf16 v[{d}:{d+3}], v[{k}:{k+3}], v[{k}:{k+3}], " + (f"v[{d}:{d+3}]" if j else "0"))
        for t in range(4):
            d = PR + 16 * tl + 4 * t
            om = OM + 16 * t + 4 * j
            k = KR + 16 * tl + 4 * j
            c = "0" if j == 0 else f"v[{d}:{d+3}]"
            o.append(f"v_mfma_f32_16x16x32_bf16 v[{d}:{d+3}], v[{om}:{om+3}], v[{k}:{k+3}], {c}")
        return o
    def sqsum(tl):
        acc = SQA + 2 * tl; d = SQD + 4 * tl
        if gr: return [f"v_cndmask_b32_e64 v{acc}, {f'v{acc}' if r else 0}, v{d+r}, s[{sDG+2*r}:{sDG+2*r+1}]" for r in range(4)]
        return [f"v_add_f32 v{acc}, v{acc}, v{acc+1}"]
    def sqm(tl):
        acc = SQA + 2 * tl; d = SQD + 4 * tl
        return [f"v_mfma_f32_16x16x4_f32 v[{d}:{d+3}], v{NH}, v{acc}, 0"]
    def phi(tl):
        d = SQD + 4 * tl
        o = [f"v_cvt_pk_bf16_f32 v{d}, 0, v{d}"]
        for t in range(4):
            p = [PR + 16 * tl + 4 * t + r for r in range(4)]
            for x in p: o.append(f"v_cvt_pk_bf16_f32 v{x}, 0, v{x}")
            if pk & 2:
                for x in p[::2]: o.append(f"v_pk_add_f32 v[{x}:{x+1}], v[{x}:{x+1}], v[{d}:{d+1}] op_sel_hi:[1,0]")
            else:
                for x in p: o.append(f"v_add_f32 v{x}, v{d}, v{x}")
            for x in p: o.append(f"v_cvt_pk_bf16_f32 v{x}, 0, v{x}")
            if pk & 2:
                for x in p[::2]: o.append(f"v_pk_mul_f32 v[{x}:{x+1}], v[{x}:{x+1}], s[{sL2E}:{sL2E+1}]")
            else:
                for x in p: o.append(f"v_mul_f32 v{x}, s{sL2E}, v{x}")
            for x in p: o.append(f"v_exp_f32 v{x}, v{x}")
            h = PH + 8 * tl + 2 * t
            o.append(f"v_cvt_pk_bf16_f32 v{h}, v{p[0]}, v{p[1]}")
            o.append(f"v_cvt_pk_bf16_f32 v{h+1}, v{p[2]}, v{p[3]}")
        if po:
            n = (len(o) - 1) // 4
            for t in range(3):
                e = 1 + n * (t + 1)
                o[e-2:e+4] = o[e:e+4] + o[e-2:e]
        return o
    def wm(tl):
        d = WD + 4 * tl; h = PH + 8 * tl
        return [f"v_mfma_f32_16x16x32_bf16 v[{d}:{d+3}], v[{h}:{h+3}], v[{PQ}:{PQ+3}], v[{C}:{C+3}]",
                f"v_mfma_f32_16x16x32_bf16 v[{d}:{d+3}], v[{h+4}:{h+7}], v[{PQ+4}:{PQ+7}], v[{d}:{d+3}]"]
    steps = [(tl, j) for tl in range(2) for j in range(4)]
    body = scale(0, 0); n0 = len(body)
    for i in range(1, 8):
        tl, j = steps[i]
        side = projm(*steps[i - 1])
        main = scale(tl, j)
        if gr:
            if steps[i - 1] == (0, 3): main = main + sqsum(0)
            if steps[i - 1] == (1, 0): side = side + sqm(0)
            body += interleave(main, side, 3 if pk & 1 or len(side) > 5 else 4, lead=2)
            continue
        if steps[i - 1] == (0, 3):
            main = main[:4] + sqsum(0) + main[4:]
            side = side + sqm(0)
        body += interleave(main, side, 4 if pk & 1 else 5, lead=2)
    ph0 = phi(0)
    ph0 = ph0[:14] + sqsum(1) + ph0[14:] if gr else ph0[:4] + sqsum(1) + ph0[4:]
    for n, x in enumerate(body):
        if pfk and n == n0: putw(x)
        else: a(x)
        if pfk and n == n0 + 1: a(f"v_add_u32 v{cWW}, 256, v{cWW}")
    a.label("L_phi0", flush=False)
    ph0 = interleave(ph0, projm(1, 3) + sqm(1), 4, lead=2 if gr else 1)
    if pfk:
        a(f"ds_read_b32 v{cW}, v{cLN}")
        f4 = next(i for i, x in enumerate(ph0) if x.startswith(("v_add", "v_exp")))
        for x in ph0[:f4] + [f"s_cmpk_gt_u32 s{sTHR}, 8192"] + ph0[f4:fp]: a(x)
        a("s_cbranch_scc1 L_nf")
        a.label("L_pk", flush=False)
        a(f"""
        s_waitcnt lgkmcnt(0)
        v_cmp_gt_u32 vcc, s{sTHR}, v{cW}
        s_cbranch_vccnz L_rp
        """)
        kreads()
        for j in range(4): a(f"v_xor_b32 v{RK[j]}, s{sXR}, v{RK[j]}")
        a(f"""
        s_xor_b32 s{sXR}, s{sXR}, 0x10000
        s_add_u32 s{sP}, s{sTHR}, 768
        s_min_u32 s{sP}, s{sP}, 8192
        """)
        a.hist = a.hist[:-18]
        a.label("L_nf", flush=False)
        a(f"s_addk_i32 s{sTHR}, 1024")
        for x in ph0[fp:]: a(x)
        a(f"""
        s_cmpk_le_u32 s{sTHR}, 2048
        s_waitcnt vmcnt(0) lgkmcnt(0)
        v_mov_b32 v{cW}, s{sP}
        ds_write_b32 v{cPR}, v{cW} offset:256
        """)
    else:
        for x in ph0: a(x)
        a(f"s_cmp_eq_u32 s{sTHR}, 0")
    a.flush()
    a("s_cbranch_scc1 L_qpost")
    ph1 = interleave(phi(1), wm(0), 6, lead=3)
    if pfk: ph1 = ph1 + [wm(1)[0], f"s_cmp_le_u32 s{sTHR}, {8192 if ev else 9216}"]
    for x in ph1: a(x)
    if pfk:
        a(wm(1)[1])
    else:
        a(f"s_addk_i32 s{sTHR}, 1024")
        a(wm(1)[0])
        a(f"s_cmpk_le_u32 s{sTHR}, 8192")
        a(wm(1)[1])
        a("s_waitcnt vmcnt(0)")
    a("s_cbranch_scc1 L_loop")
    putw()
    stampm()
    if amp == "d": a("s_memrealtime s[76:77]")
    AR = PH
    def areads():
        for u in range(4): a(f"ds_read_b128 v[{AR+4*u}:{AR+4*u+3}], v{cWA} offset:{256+64*u}")
    def denm(u): a(f"v_mfma_f32_16x16x32_bf16 v[{DEN}:{DEN+3}], v[{AR+4*u}:{AR+4*u+3}], v[{ONES}:{ONES+3}], v[{DEN}:{DEN+3}]")
    def trs(j):
        r = PR + 8 * j
        for h in range(2):
            a(f"ds_read_b64_tr_b16 v[{r+4*h}:{r+4*h+1}], v{TV+h} offset:{8192*j}")
            a(f"ds_read_b64_tr_b16 v[{r+4*h+2}:{r+4*h+3}], v{TV+h} offset:{8192*j+4096}")
    def mms(j, left=0):
        r = PR + 8 * j
        for h in range(2):
            d = (ACC, AC1)[h]
            a(f"s_waitcnt lgkmcnt({left+2-2*h})")
            a(f"v_mfma_f32_16x16x32_bf16 v[{d}:{d+3}], v[{AR+4*j}:{AR+4*j+3}], v[{r+4*h}:{r+4*h+3}], v[{d}:{d+3}]")
    a.label("L_vl", flush=False)
    poll(cLN, f"s{sVT}", cW)
    stampm()
    areads()
    for j in range(3): trs(j)
    a(f"""
    v_mov_b32 v{cW}, s{sVT}
    s_mov_b32 s{sP}, s{sVT}
    v_add_u32 v{cWA}, 256, v{cWA}
    s_addk_i32 s{sVT}, 1024
    s_waitcnt lgkmcnt(12)
    """)
    trs(3)
    for u in range(4): denm(u)
    a(f"""
    v_xor_b32 v{TV}, s{sXR}, v{TV}
    v_xor_b32 v{TV+1}, s{sXR}, v{TV+1}
    s_xor_b32 s{sXR}, s{sXR}, 0x10000
    s_cmp_lt_u32 s{sVT}, s{sVL}
    """)
    for j in range(4): mms(j, 12 - 4 * j)
    a(f"ds_write_b32 v{cPR}, v{cW} offset:256")
    a("s_cbranch_scc1 L_vl")
    if ev:
        a(f"""
        s_movk_i32 s{sVL}, {64*256}
        s_cmpk_le_u32 s{sTHR}, 9216
        s_cbranch_scc1 L_loop
        """)
    areads()
    a(f"""
    v_mov_b32 v{GB}, 0
    v_mov_b32 v{GB+1}, v{EP}
    v_mov_b32 v{GB+2}, 0
    v_mov_b32 v{GB+3}, 0
    s_mov_b32 s{sM3}, 0
    s_mov_b32 s{sM3+1}, s{sMASK}
    s_waitcnt lgkmcnt(0)
    """)
    for u in range(4): denm(u)
    stampc(58)
    a("s_barrier")
    stampc(59)
    ng = [0]
    def gload(B):
        a(f"s_mov_b32 exec_hi, 0xffff")
        a(f"global_load_dwordx4 v[{B}:{B+3}], v{GA}, s[{sWS}:{sWS+1}] sc1")
        a(f"s_mov_b64 exec, -1")
    def wload():
        l = "L_nb%d" % ng[0]; ng[0] += 1
        a(f"s_cbranch_scc0 {l}")
        gload(GB)
        a.label(l, flush=False)
    a(f"ds_read_b32 v{cW}, v{cLN}")
    trs(0)
    a(f"""
    v_mov_b32 v{DENR}, v{DEN}
    v_add_f32 v{T}, {hex(f2u(1e-6))}, v{DEN}
    s_waitcnt lgkmcnt(4)
    v_readfirstlane_b32 s{sX}, v{cW}
    s_and_b32 s{sT2}, s{sX}, 0xc0
    s_cmpk_eq_u32 s{sT2}, 0xc0
    """)
    if bp == 0: wload()
    mms(0)
    a("s_barrier")
    trs(1)
    if bp == 1: wload()
    mms(1)
    a("s_barrier")
    if bp == 2: wload()
    trs(2)
    mms(2)
    if bp == 3: wload()
    stampc(61)
    if amp == "e": a("s_memrealtime s[76:77]")
    a("s_barrier")
    trs(3)
    a("s_cbranch_scc1 L_win")
    mms(3)
    a(f"s_mov_b64 exec, 0xffff")
    a(f"v_mov_b32 v{ACC+1}, v{AC1}")
    a(f"global_store_dwordx4 v{cWS}, v[{DENR}:{DENR+3}], s[{sWS}:{sWS+1}] sc1")
    if diag: a("s_mov_b64 exec, -1")
    a("s_branch L_fin" if diag else "s_branch L_amp" if amp else "s_endpgm")
    a.label("L_retry", flush=False)
    a(f"""
    s_mov_b32 exec_hi, 0xffff
    s_sub_u32 s{sBUD}, s{sBUD}, 16
    s_cbranch_scc1 L_end
    global_load_dwordx4 v[{GB}:{GB+3}], v{GA}, s[{sWS}:{sWS+1}] sc1
    s_mov_b64 exec, -1
    s_branch L_chkb
    """)
    a.label("L_win", flush=False)
    mms(3)
    a.label("L_chkb", flush=False)
    a(f"""
    s_waitcnt vmcnt(0)
    v_cmp_ne_u32 vcc, v{EP}, v{GB+1}
    s_cbranch_vccnz L_retry
    """)
    stampc(62)
    a(f"""
    v_add_f32_dpp v{GB}, v{GB}, v{GB} row_bcast:15 row_mask:0xa bank_mask:0xf
    v_permlane16_swap_b32 v{GB+2}, v{GB+3}
    s_nop 0
    v_add_f32_dpp v{GB}, v{GB}, v{GB} row_bcast:31 row_mask:0xc bank_mask:0xf
    v_add_f32 v{GB+2}, v{GB+2}, v{GB+3}
    v_add_f32 v{GB}, v{GB}, v{T}
    v_cndmask_b32_e64 v{ACC}, v{ACC}, v{AC1}, s[{sM3}:{sM3+1}]
    v_add_f32 v{GB+3}, v{GB+2}, v{ACC}
    v_permlane32_swap_b32 v{GB+1}, v{GB+2}
    v_rcp_f32 v{GB}, v{GB}
    s_mov_b32 exec_lo, 0
    v_add_f32 v{GB+3}, v{GB+3}, v{GB+1}
    v_mul_f32 v{GB+3}, v{GB+3}, v{GB}
    v_cvt_pk_bf16_f32 v{GB+3}, v{GB+3}, v{GB+3}
    global_store_short v{cOUT}, v{GB+3}, s[{sOUT}:{sOUT+1}]
    """)
    if diag:
        a("s_mov_b64 exec, -1")
        stampc(5)
        a.label("L_fin")
        a(f"s_memrealtime s[{sRAW}:{sRAW+1}]")
        a(f"s_getreg_b32 s76, hwreg(HW_REG_XCC_ID)")
        a("s_waitcnt lgkmcnt(0)")
        a(f"v_writelane_b32 v{DG}, s{sRAW}, 7")
        a(f"v_writelane_b32 v{DG}, s76, 63")
        a(f"""
        s_mul_i32 s{sT}, s2, 5
        s_lshr_b32 s{sT2}, s{sW}, 6
        s_add_u32 s{sT}, s{sT}, s{sT2}
        s_lshl_b32 s{sT}, s{sT}, 8
        s_add_u32 s{sT}, s{sT}, 0x100000
        v_lshl_add_u32 v{T}, v{LANE}, 2, s{sT}
        global_store_dword v{T}, v{DG}, s[{sWS}:{sWS+1}]
        """)
    if amp:
        a.label("L_amp", flush=False)
        a(f"""
        s_cmp_eq_u32 s2, 100
        s_cbranch_scc0 L_end
        s_waitcnt lgkmcnt(0)
        s_sub_u32 s76, s76, s74
        s_mul_i32 s76, s76, 10
        s_add_u32 s76, s76, 3000
        s_min_u32 s76, s76, 40000
        """)
        a.label("L_amp1", flush=False)
        a(f"""
        s_memrealtime s[72:73]
        s_waitcnt lgkmcnt(0)
        s_sub_u32 s72, s72, s74
        s_cmp_lt_u32 s72, s76
        s_cbranch_scc1 L_amp1
        """)
    a.label("L_end", flush=False)
    a("s_endpgm")
    a.label("L_qpost")
    a(f"v_mov_b32 v{T+2}, {hex(f2u(1e-6) - (3 << 23))}")
    a(f"s_mov_b32 s{sT}, {hex(f2u(0.015625))}")
    for i in range(8):
        x = PH + i
        a(f"""
        v_lshlrev_b32 v{T}, 16, v{x}
        v_and_b32 v{T+1}, s{sMASK}, v{x}
        v_fma_f32 v{T}, v{T}, s{sT}, v{T+2}
        v_fma_f32 v{T+1}, v{T+1}, s{sT}, v{T+2}
        v_cvt_pk_bf16_f32 v{PQ+i}, v{T}, v{T+1}
        """)
    a(f"v_mfma_f32_16x16x32_bf16 v[{C}:{C+3}], v[{ONES}:{ONES+3}], v[{PQ}:{PQ+3}], 0")
    a(f"s_add_u32 s{sEP}, s{sEP}, 0x9e3779b9")
    a(f"v_mfma_f32_16x16x32_bf16 v[{C}:{C+3}], v[{ONES}:{ONES+3}], v[{PQ+4}:{PQ+7}], v[{C}:{C+3}]")
    a(f"""
    {"" if pfk else f"s_lshl_b32 s{sTHR}, s{sW}, 2"}
    v_mov_b32 v{EP}, s{sEP}
    s_cmp_eq_u32 s{sEP}, s{sCT+1}
    s_cselect_b32 s{sT}, 4, s{sC}
    s_cmp_lg_u32 s{sT}, 0
    s_cbranch_scc1 L_c2
    s_mov_b64 exec, 1
    v_mov_b32 v{CT}, 0
    v_mov_b32 v{CT+1}, s{sEP}
    v_mov_b32 v{CT+2}, s{sCT}
    v_mov_b32 v{CT+3}, s{sCT+1}
    global_atomic_cmpswap_x2 v{cAT}, v[{CT}:{CT+3}], s[{sWS}:{sWS+1}] sc1
    s_mov_b64 exec, -1
    """)
    a.label("L_c2", flush=False)
    a("s_nop 1")
    for i in range(4): a(f"v_mul_f32 v{C+i}, {hex(f2u(1e-6) + (3 << 23))}, v{C+i}")
    stampc(3)
    if amp == "q": a("s_memrealtime s[76:77]")
    a.flush()
    a("s_branch L_loop")
    a.raw("L_codeend:")
    a.raw(f""".section .rodata,"a"
.p2align 6
.amdhsa_kernel {NAME}_kernel
  .amdhsa_next_free_vgpr 256
  .amdhsa_next_free_sgpr 80
  .amdhsa_accum_offset 256
  .amdhsa_group_segment_fixed_size 0
  .amdhsa_kernarg_size 56
  .amdhsa_user_sgpr_count 2
  .amdhsa_user_sgpr_kernarg_segment_ptr 1
  .amdhsa_system_sgpr_workgroup_id_x 1
.end_amdhsa_kernel""")
    return a

if __name__ == "__main__":
    out = sys.argv[1]
    kw = dict(x.split("=") for x in sys.argv[2:])
    for key in ("nt",):
        if key in kw: kw[key] = "" if kw[key] == "0" else " " + kw[key].replace("+", " ")
    a8 = kw.pop("a8", "1")
    a = gen(**kw)
    t = a.text()
    if a8 == "1": t = align8(t, "L_loop", "L_vl")
    if a8 == "2": t = align8(t)
    open(out, "w").write(t)
    print("wrote", out, "nops inserted:", a.nops)
```

```python
import itertools
names = ["g0", "g1", "i0", "i1", "i2", "k0", "k1", "k2", "k3", "k4"] + ["w%d" % j for j in range(8)] + ["c"]
def parse(m):
    f = [x.split("+") for x in m.split(".")]
    assert len(f) == 18 and all(t in names for fl in f for t in fl)
    return tuple(sum(1 << (8 + b) for b, fl in enumerate(f) if n in fl) for n in names)
def xor(cols, v):
    r = 0
    for j, c in enumerate(cols):
        if v >> j & 1: r ^= c
    return r
def partbits(c):
    for x, y in [(1, 2)] + [(j, j + 1) for j in range(7)] + list(itertools.combinations(range(8), 2)):
        if len({(xor(c[10:18], w) >> 20, w >> x & 1, w >> y & 1) for w in range(256)}) == 256: return x, y
def check(c):
    F = c[0] | c[1] | c[2] | c[3]; S = c[4] | c[5] | c[6] | c[7] | c[8] | c[9]
    assert not F & S and not (F | S) >> 20
    assert len({xor(c[:18], s) for s in range(1 << 18)}) == 1 << 18
def derived(c):
    F = c[0] | c[1] | c[2] | c[3]
    a, b, d = c[4], c[4] ^ c[5], c[4] ^ c[5] ^ c[6]
    tab = sum(x >> 8 << 12 * j for j, x in enumerate([a, b, a, d, a]))
    x, y = partbits(c)
    w = [c[10 + j] | (j == x) << 26 | (j == y) << 27 for j in range(8)]
    P = dict(c=c[18], g0=c[0], g1=c[1], ci2=c[4], tab0=tab & 0xffffffff, tab1=tab >> 32, F=F, i1=c[2], i2=c[3], i3=c[2] ^ c[3])
    for j in range(8): P["w%d" % j] = w[j]
    for j in range(5): P["k%d" % j] = c[5 + j]
    return P
ORDER = ["tab0", "tab1", "c", "g0", "g1", "ci2", "F", "i1", "i2", "i3"] + ["w%d" % j for j in range(8)] + ["k%d" % j for j in range(5)]
def plan(cols):
    terms = [(j, b) for j in range(8) for b in range(32) if cols[j] >> b & 1]
    def good(g):
        m = 0; mul = 0; res = 0
        for j, b in g: m |= 1 << j; mul |= 1 << (b - j); res |= 1 << b
        sub = [sum(1 << b for jj, b in g if jj == j) for j in range(8)]
        for am in (0xff, m):
            for rm in (0xffffffff, res):
                if all(((w & am) * mul & rm & 0xffffffff) == xor(sub, w) for w in range(256)): return am, mul, rm
    best = [None]
    def rec(i, gs):
        if best[0] is not None and len(gs) >= len(best[0]) + (i == len(terms)): return
        if i == len(terms):
            r = [good(g) for g in gs]
            cost = lambda r: sum((am != 0xff) + (rm != 0xffffffff) + 2 for am, mul, rm in r)
            if best[0] is None or (len(r), cost(r)) < (len(best[0]), cost(best[0])): best[0] = r
            return
        for g in gs:
            g.append(terms[i])
            if good(g): rec(i + 1, gs)
            g.pop()
        rec(i + 1, gs + [[terms[i]]])
    rec(0, [])
    return best[0]
```

```python
import sys, struct
from asmlib import Asm, interleave, align8
import amap

NAME = "standalone__linear_kernel_rfa__decode"
def f2u(x): return struct.unpack("<I", struct.pack("<f", x))[0]

def gen(nt=" nt", diag="0", al="12", N="16", el="3", K0="4", SL="11", pk="0", bp="3", pr="3", cpr="0", gr="1", amp="", pfk="1", fp="26", so="1", po="0", ev="2", pm="0", pp="0", sf="sc1", lf="sc1", pw="3", ab="12", af="",
        m="w4.g0.k0.i0.g1.i2.k1.i1.k2+w3.k1+k4.k3+w2.w3.w2.w5.w7.w0.w6.w1+w2"):
    ev = int(ev); pm = int(pm); pp = int(pp); sf = sf.replace('+', ' '); lf = lf.replace('+', ' '); pw = int(pw); ab = int(ab); af = af.replace('+', ' ')
    cols = amap.parse(m); amap.check(cols); PV = amap.derived(cols)
    P = (lambda n: "s%d" % (76 + amap.ORDER.index(n))) if pm else (lambda n: hex(PV[n]))
    WF = {(amap.xor(cols[10:18], w) ^ cols[18]) & PV["F"] for w in range(256)}
    bias = 4096 if pm or any(amap.xor(cols[:4], g + 4 * i) ^ x < 1024 * i for g in range(4) for i in range(4) for x in WF) else 0
    wf = pm or WF != {0}
    so = int(so); po = int(po)
    pfk = int(pfk); fp = int(fp)
    gr = int(gr)
    diag = int(diag); N = int(N); el = int(el); K0 = int(K0); SL = int(SL); pk = int(pk); bp = int(bp); cpr = int(cpr)
    a = Asm()
    OMB = 131072; LND = 147712; PRG = LND + 256; RED = 151552; WB = RED + 4096 + 256
    LDS = WB + 2048
    EPOCH = 0x80000; STEP = 32768
    SK, SV, SO, SQ = 4, 8, 12, 16
    sOUT, sWS = 20, 24
    sW, sHEAD, sPART, sT, sT2, sX, sBUD = 26, 27, 28, 29, 30, 31, 32
    sL, sKO, sM, sC0, sJ, sTAB, sWB = 33, 34, 36, 49, 37, 38, 40
    VK = [176, 177, 178, 179]; VV = [5, 6, 17, 18]; vLN = 8; vPA = 9; vT = 10; vP = 11; vTA = 12; vEL = 15; v64 = 16; vTB = 20
    sC, sXR, sTHR, sMASK, sSCALE, sL2E, sEP = 33, 34, 35, 36, 38, 40, 42
    sMS = 44; sM3 = 46; sDG = 48; sP = 56; sVT = 57; sVL = 58
    sCT = 62
    RK = [8, 9, 10, 11]; TV = 12; cWW = 14; cWA = 15; cPA = 16
    NH = 20; LANE = 21; cLN = 1; cPR = 2; cW = 4; EP = 151; DENR = 150; cRD = 5; cWS = 6; cOUT = 22; cAT = 161
    ONES = 24; C = 28; PQ = 32; WPK = 40; WD = 44; SQD = 52; SQA = 60
    KR = 64; PR = 96; PH = 128; T = 144; ACC = 152; AC1 = 156; DUM = 160; DG = 164; DEN = 168
    CT = 180; GA = 186; OM = 192; GB = 172
    sRAW = 72
    px, py = amap.partbits(cols)
    partc = "" if pm else f"s_bfe_u32 s{sPART}, s2, {hex(0x20000 + px)}" if py == px + 1 else f"s_bfe_u32 s{sPART}, s2, {hex(0x10000 + py)}\n s_bitcmp1_b32 s2, {px}\n s_addc_u32 s{sPART}, s{sPART}, s{sPART}"
    def stampc(i):
        if diag:
            a(f"s_memrealtime s[{sRAW}:{sRAW+1}]")
            a("s_waitcnt lgkmcnt(0)")
            a(f"v_writelane_b32 v{DG}, s{sRAW}, {i}")
    def stampm():
        if diag:
            a(f"{'s_memtime' if diag == 2 else 's_memrealtime'} s[{sRAW}:{sRAW+1}]")
            a("s_waitcnt lgkmcnt(0)")
            a(f"v_writelane_b32 v{DG}, s{sRAW}, m0")
            a("s_add_u32 m0, m0, 1")
    npoll = [0]
    def poll(adr, thr, reg):
        l = "L_poll%d" % npoll[0]; npoll[0] += 1
        a.label(l, flush=False)
        a(f"""
        ds_read_b32 v{reg}, v{adr}
        s_sub_u32 s{sBUD}, s{sBUD}, 1
        s_cbranch_scc1 L_end
        s_waitcnt lgkmcnt(0)
        v_cmp_gt_u32 vcc, {thr}, v{reg}
        s_cbranch_vccnz {l}
        """)

    hdr = open("cdna_kernels/%s.s.ref" % NAME).read().split("; Override launch")[0]
    a.raw(hdr.rstrip())
    a.raw("; @launch grid=(256,1,1) block=(320,1,1) lds=%d" % LDS)
    a.raw('.amdgcn_target "amdgcn-amd-amdhsa--gfx950"\n.text\n.globl %s_kernel\n.p2align %s\n.p2align 8\n.type %s_kernel,@function' % (NAME, al, NAME))
    a.label(NAME + "_kernel")
    if diag or amp: a("s_memrealtime s[74:75]")
    a(f"""
    s_load_dwordx2 s[{SK}:{SK+1}], s[0:1], 8
    s_load_dwordx2 s[{SO}:{SO+1}], s[0:1], 24
    s_load_dwordx2 s[{SQ}:{SQ+1}], s[0:1], 0
    """)
    if pm: a("s_load_dwordx16 s[76:91], s[0:1], 56\n s_load_dwordx8 s[92:99], s[0:1], 120")
    a("s_getpc_b64 s[60:61]")
    a.label("L_pc", flush=False)
    a(f"""
    v_subrev_u32 v7, 64, v0
    v_lshlrev_b32 v7, 7, v7
    v_cmp_gt_u32 vcc, L_codeend-L_pc-3, v7
    v_mov_b32 v{DUM+3}, s61
    s_cbranch_vccz L_nopf
    s_mov_b64 exec, vcc
    v_add_co_u32 v{DUM+2}, vcc, s60, v7
    v_addc_co_u32 v{DUM+3}, vcc, 0, v{DUM+3}, vcc
    global_load_dword v{DUM}, v[{DUM+2}:{DUM+3}], off
    s_mov_b64 exec, -1
    """)
    a.label("L_nopf", flush=False)
    a(f"""
    v_readfirstlane_b32 s{sW}, v0
    v_bfe_u32 v22, v0, 4, 2                    ; q = lane>>4
    v_and_b32 v23, 15, v0                      ; n = lane&15
    s_cmp_ge_u32 s2, 256
    s_cbranch_scc1 L_end
    v_xor_b32 v7, v22, v23
    v_lshlrev_b32 v7, 4, v7
    """)
    if pm:
        a(f"s_waitcnt lgkmcnt(0)\n s_mov_b32 s{sKO}, {P('c')}")
        for j in range(8): a(f"s_bitcmp1_b32 s2, {j}\n s_cselect_b32 s{sT}, {P('w%d' % j)}, 0\n s_xor_b32 s{sKO}, s{sKO}, s{sT}")
        a(f"s_lshr_b32 s{sPART}, s{sKO}, 26\n s_and_b32 s{sKO}, s{sKO}, 0x3ffffff")
    else:
        for n, (am, mul, rm) in enumerate(amap.plan(cols[10:18])):
            d = sT if n else sKO; src = 2
            if am != 0xff: a(f"s_and_b32 s{d}, s2, {hex(am)}"); src = d
            if mul & (mul - 1): a(f"s_mul_i32 s{d}, s{src}, {hex(mul)}")
            else: a(f"s_lshl_b32 s{d}, s{src}, {mul.bit_length() - 1}")
            if rm != 0xffffffff: a(f"s_and_b32 s{d}, s{d}, {hex(rm)}")
            if n: a(f"s_xor_b32 s{sKO}, s{sKO}, s{sT}")
        if PV["c"]: a(f"s_xor_b32 s{sKO}, s{sKO}, {P('c')}")
    a(f"""
    s_lshr_b32 s{sHEAD}, s{sKO}, 20
    s_cmp_lg_u32 s{sW}, 0
    s_cbranch_scc1 L_cons
    """)
    gm = PV["g0"] | PV["g1"] >> 1; gr_ = PV["g0"] | PV["g1"]
    if not pm and all(q * gm & gr_ == amap.xor(cols[:2], q) for q in range(4)):
        gcode = f"v_mul_u32_u24 v19, {hex(gm)}, v22\n v_and_b32 v19, {hex(gr_)}, v19"
    else:
        gcode = f"""v_bfe_i32 v19, v0, 4, 1
        v_bfe_i32 v{vTB}, v0, 5, 1
        v_and_b32 v19, {P('g0')}, v19
        v_and_b32 v{vTB}, {P('g1')}, v{vTB}
        v_xor_b32 v19, v19, v{vTB}"""
    a(f"""
    s_setprio {pr}
    {f"s_mov_b32 s{SK+2}, {hex(2**26 + bias)}" if bias else f"s_brev_b32 s{SK+2}, 32"}
    s_mov_b32 s{SK+3}, 0x20000
    s_mov_b32 m0, 0
    {gcode}
    s_mov_b32 s{sTAB}, {P('tab0')}
    s_mov_b32 s{sTAB+1}, {P('tab1')}
    """)
    if wf: a(f"s_and_b32 s{sT}, s{sKO}, {P('F')}\n v_xor_b32 v19, s{sT}, v19\n s_xor_b32 s{sKO}, s{sKO}, s{sT}")
    def rows(R, sw):
        a(f"v_or_b32 v{R[0]}, v19, v7")
        busy = PV["g0"] | PV["g1"]
        for x in WF: busy |= x
        if not bias and all(not (PV["i%d" % i] | PV["i%d" % i] - 1024 * i) & busy for i in range(1, 4)):
            for i in range(1, 4): a(f"v_xor_b32 v{R[i]}, {hex(PV['i%d' % i] - 1024 * i | sw(i))}, v{R[0]}")
            return
        for i in range(1, 4):
            if pm: a(f"v_xor_b32 v{R[i]}, {P('i%d' % i)}, v{R[0]}\n v_xor_b32 v{R[i]}, {sw(i)}, v{R[i]}")
            else: a(f"v_xor_b32 v{R[i]}, {hex(PV['i%d' % i] | sw(i))}, v{R[0]}")
        for i in range(4):
            if bias - 1024 * i: a(f"v_add_u32 v{R[i]}, {hex((bias - 1024 * i) & 0xffffffff)}, v{R[i]}")
    rows(VK, lambda i: 64 * i)
    a(f"s_mov_b32 s{sWB}, s{sKO}")
    if diag:
        a("s_waitcnt lgkmcnt(0)")
        a(f"v_mov_b32 v{DG}, 0")
        a(f"v_writelane_b32 v{DG}, s74, 0")
        stampc(1)
    a("s_waitcnt lgkmcnt(0)")
    if bias: a(f"s_sub_u32 s{SK}, s{SK}, {bias}\n s_subb_u32 s{SK+1}, s{SK+1}, 0")
    a.label("L_k0", flush=False)
    for i in range(4): a(f"buffer_load_dwordx4 v{VK[i]}, s[{SK}:{SK+3}], s{sKO} offen offset:{1024*i}{nt} lds")
    a(f"""
    s_and_b32 s{sT}, s{sTAB}, 0xfff
    s_addk_i32 m0, 4096
    s_lshl_b32 s{sT}, s{sT}, 8
    s_lshr_b64 s[{sTAB}:{sTAB+1}], s[{sTAB}:{sTAB+1}], 12
    s_xor_b32 s{sKO}, s{sKO}, s{sT}
    s_cmpk_lt_u32 m0, {3*8192}
    s_cbranch_scc1 L_k0
    s_branch L_setup
    """)
    a.label("L_cons")
    a(f"""
    v_lshl_add_u32 v{VK[0]}, v22, 8, v7
    v_xor_b32 v{VK[1]}, 64, v{VK[0]}
    v_xor_b32 v{VK[2]}, 0x80, v{VK[0]}
    v_xor_b32 v{VK[3]}, 64, v{VK[2]}
    v_and_b32 v{LANE}, 63, v0
    s_lshl_b32 s{sT}, s{sHEAD}, 8
    v_lshl_add_u32 v{KR}, v{LANE}, 2, s{sT}
    s_lshl_b32 s{sT2}, s{sW}, 6
    s_add_u32 m0, s{sT2}, {OMB - 4096}
    s_addk_i32 s{sT2}, -4096
    s_movk_i32 s{SO+2}, 16384
    s_mov_b32 s{SO+3}, 0x20000
    s_waitcnt lgkmcnt(0)
    """)
    for i in range(4): a(f"buffer_load_dwordx4 v{VK[i]}, s[{SO}:{SO+3}], s{sT2} offen offset:{1024*i} lds")
    a(f"""
    global_load_dword v{KR}, v{KR}, s[{SQ}:{SQ+1}]
    s_load_dwordx2 s[{sWS}:{sWS+1}], s[0:1], 48
    s_load_dwordx2 s[{sOUT}:{sOUT+1}], s[0:1], 32
    {f"s_setprio {cpr}" if cpr else ""}
    s_lshr_b32 s{sC}, s{sT2}, 12
    {partc}
    s_mov_b32 s{sBUD}, 0x100000
    v_lshlrev_b32 v{cLN}, 2, v{LANE}
    v_add_u32 v{cLN}, {LND}, v{cLN}
    s_lshl_b32 s{sT2}, s{sC}, 8
    v_add_u32 v{cPR}, s{sT2}, v{cLN}
    v_mov_b32 v{ACC}, 0
    ds_write_b32 v{cPR}, v{ACC} offset:256
    s_lshl_b32 s{sT2}, s{sC}, 13
    v_lshl_add_u32 v7, v23, 8, v7              ; n*256 + ((q^n)*16)
    v_add_u32 v{RK[0]}, s{sT2}, v7
    v_xor_b32 v{RK[1]}, 64, v{RK[0]}
    v_xor_b32 v{RK[2]}, 0x80, v{RK[0]}
    v_xor_b32 v{RK[3]}, 0xc0, v{RK[0]}
    v_add_u32 v{T+4}, {OMB}, v7
    v_xor_b32 v{T+5}, 64, v{T+4}
    v_xor_b32 v{T+6}, 0x80, v{T+4}
    v_xor_b32 v{T+7}, 0xc0, v{T+4}
    v_lshrrev_b32 v7, 2, v{LANE}
    v_and_b32 v{TV}, 7, v7
    v_lshlrev_b32 v{TV}, 5, v{TV}
    v_lshl_add_u32 v{TV}, v7, 8, v{TV}
    v_and_b32 v7, 3, v{LANE}
    v_lshl_add_u32 v{TV}, v7, 3, v{TV}
    s_add_u32 s{sT2}, s{sT}, {EPOCH}
    v_mov_b32 v{cAT}, s{sT2}
    s_add_u32 s{sX}, s{sT2}, 128
    s_waitcnt lgkmcnt(0)
    s_load_dword s{sEP}, s[{sWS}:{sWS+1}], s{sX}
    s_load_dwordx2 s[{sCT}:{sCT+1}], s[{sWS}:{sWS+1}], s{sT2}
    """)
    if diag:
        a(f"v_mov_b32 v{DG}, 0")
        a(f"v_writelane_b32 v{DG}, s74, 0")
        a("s_mov_b32 m0, 8")
    a(f"""
    v_lshlrev_b32 v{PH+3}, 4, v22
    s_lshl_b32 s{sT2}, s{sC}, 8
    v_lshl_add_u32 v{cRD}, v23, 4, s{sT2}       ; 256c + 16n
    v_add_u32 v7, 1, v22
    v_xor_b32 v7, s{sPART}, v7
    s_lshl2_add_u32 s{sT2}, s{sC}, -4
    s_lshl4_add_u32 s{sT}, s{sT2}, s{sT}
    v_lshl_add_u32 v{cOUT}, v{LANE}, 1, s{sT}
    s_lshl_b32 s{sT}, s{sHEAD}, {SL+2}
    v_lshl_add_u32 v{GA}, v7, {SL}, s{sT}
    v_add_u32 v{GA}, v{GA}, v{cRD}
    {f"v_or_b32 v{GA}, 0x400, v{GA}" if ab > 1 else ""}
    s_lshl_b32 s{sT}, s{sC}, 6
    v_xor_b32 v{TV}, s{sT}, v{TV}
    v_xor_b32 v{TV+1}, 32, v{TV}
    v_add_u32 v{cWA}, {WB - 256}, v{PH+3}
    v_add_u32 v{cWW}, s{sT}, v{cWA}
    s_lshl_b32 s{sT}, s{sC}, 10
    s_add_u32 s{sT}, s{sT}, {RED}
    v_add_u32 v{PH+3}, s{sT}, v{PH+3}
    v_lshl_add_u32 v{PH+2}, v{LANE}, 2, s{sT}
    s_lshl2_add_u32 s{sT}, s{sHEAD}, s{sPART}
    s_lshl_b32 s{sT}, s{sT}, {SL}
    v_add_u32 v{cWS}, s{sT}, v{cRD}
    s_mov_b32 s{sMASK}, 0xffff0000
    s_mov_b32 s{sSCALE}, {hex(f2u(128.0 ** -0.25))}
    s_mov_b32 s{sL2E}, 0x3fb8aa3b
    v_mov_b32 v{NH}, -0.5
    s_mov_b32 s{sMS}, 0x00010001
    s_mov_b32 s{sMS+1}, s{sMS}
    s_mov_b32 s{sXR}, 0x8000
    """)
    if gr:
        a(f"s_mov_b32 s{sDG}, 0x00100001\n s_mov_b32 s{sDG+1}, 0x10000100")
        for r in range(1, 4): a(f"s_lshl_b64 s[{sDG+2*r}:{sDG+2*r+1}], s[{sDG}:{sDG+1}], {r}")
    if pk: a(f"s_mov_b32 s{sSCALE+1}, s{sSCALE}\n s_mov_b32 s{sL2E+1}, s{sL2E}")
    a(f"v_mov_b32 v{ONES}, 0x3f803f80")
    for i in range(1, 4): a(f"v_mov_b32 v{ONES+i}, v{ONES}")
    for i in range(1, 4): a(f"v_mov_b32 v{ACC+i}, 0")
    for i in range(4): a(f"v_mov_b32 v{AC1+i}, 0")
    for i in range(4): a(f"v_mov_b32 v{DEN+i}, 0")
    a(f"s_movk_i32 s{sVT}, {36*256}\n s_movk_i32 s{sVL}, {(36+4*ev if ev else 64)*256}")
    stampc(1)
    a(f"""
    {f"s_lshl_b32 s{sTHR}, s{sW}, 2" if pfk else f"s_mov_b32 s{sTHR}, 0"}
    s_waitcnt vmcnt(0)
    v_lshlrev_b32 v{T}, 16, v{KR}
    v_and_b32 v{T+1}, s{sMASK}, v{KR}
    v_mul_f32 v{T}, s{sSCALE}, v{T}
    v_mul_f32 v{T+1}, s{sSCALE}, v{T+1}
    v_cvt_pk_bf16_f32 v{T}, v{T}, v{T+1}
    s_barrier
    ds_write_b32 v{PH+2}, v{T}
    s_waitcnt lgkmcnt(0)
    """)
    for jj in range(4): a(f"ds_read_b128 v[{KR+4*jj}:{KR+4*jj+3}], v{PH+3} offset:{64*jj}")
    for j in range(4):
        for t in range(4):
            r = OM + 16 * t + 4 * j
            a(f"ds_read_b128 v[{r}:{r+3}], v{T+4+j} offset:{4096*t}")
    stampc(2)
    for j in range(4):
        a(f"s_waitcnt lgkmcnt({12-4*j})")
        k = KR + 4 * j
        a(f"v_mfma_f32_16x16x32_bf16 v[{SQD}:{SQD+3}], v[{k}:{k+3}], v[{k}:{k+3}], " + (f"v[{SQD}:{SQD+3}]" if j else "0"))
        for t in range(4):
            d = PR + 4 * t; om = OM + 16 * t + 4 * j
            a(f"v_mfma_f32_16x16x32_bf16 v[{d}:{d+3}], v[{om}:{om+3}], v[{k}:{k+3}], " + (f"v[{d}:{d+3}]" if j else "0"))
    a(f"v_mul_f32 v{SQD}, -0.5, v{SQD}")
    a.flush()
    a("s_branch L_phi0")
    a.label("L_setup")
    a(f"""
    s_load_dwordx2 s[{SV}:{SV+1}], s[0:1], 16
    s_load_dwordx2 s[{sWS}:{sWS+1}], s[0:1], 48
    s_mov_b32 s{sBUD}, 0x100000
    s_movk_i32 s{sL}, 256
    s_movk_i32 s{sM}, {3*8192}
    v_lshlrev_b32 v7, 1, v22
    v_xor_b32 v7, v7, v23
    v_lshlrev_b32 v7, 4, v7
    v_mov_b32 v{vTB}, s{sWB}
    """)
    for j in range(5): a(f"v_bfe_i32 v{vT}, v0, {j}, 1\n v_and_b32 v{vT}, {P('k%d' % j)}, v{vT}\n v_xor_b32 v{vTB}, v{vTB}, v{vT}")
    rows(VV, lambda i: 128 * (i & 1))
    a(f"""
    v_readlane_b32 s{sKO}, v{vTB}, 3
    s_mov_b32 s{sJ}, 3
    v_lshlrev_b32 v{vLN}, 2, v0
    v_add_u32 v{vLN}, {LND}, v{vLN}
    v_and_b32 v7, 3, v0
    v_lshl_add_u32 v{vPA}, v7, 8, v{vLN}
    s_lshl_b32 s{sT}, s{sHEAD}, 8
    s_add_u32 s{sT}, s{sT}, {EPOCH}
    v_mov_b32 v{vTA}, s{sT}
    v_mov_b32 v{v64}, 64
    s_movk_i32 s{sC0}, 0xc0
    s_add_u32 s50, s{sT}, 128
    v_mov_b32 v{vEL}, 0
    """)
    if diag: a("s_mov_b32 s52, 8")
    a.label("L_k")
    a(f"""
    s_mov_b32 m0, s{sM}
    s_xor_b32 s{sT}, s{sKO}, {P('ci2')}
    s_add_u32 s{sJ}, s{sJ}, 1
    s_waitcnt vmcnt({N})
    """)
    for i in range(4): a(f"buffer_load_dwordx4 v{VK[i]}, s[{SK}:{SK+3}], s{sKO} offen offset:{1024*i}{nt} lds")
    a(f"s_addk_i32 m0, 4096")
    a(f"s_addk_i32 s{sM}, 8192")
    for i in range(4): a(f"buffer_load_dwordx4 v{VK[i]}, s[{SK}:{SK+3}], s{sT} offen offset:{1024*i}{nt} lds")
    if N > 16: a("s_waitcnt vmcnt(24)")
    a(f"""
    v_mov_b32 v{vT}, s{sL}
    v_readlane_b32 s{sKO}, v{vTB}, s{sJ}
    s_bitset0_b32 s{sM}, 17
    v_and_or_b32 v{vT}, v{vEL}, s{sC0}, v{vT}
    s_addk_i32 s{sL}, 256
    s_sub_u32 s{sT2}, s{sL}, {13*256}
    ds_write_b32 v{vLN}, v{vT}
    s_cbranch_scc0 L_poll0
    s_cmpk_lg_u32 s{sL}, {(K0-1)*256}
    s_cbranch_scc1 L_k
    s_waitcnt lgkmcnt(0)
    s_barrier
    s_branch L_k
    """)
    assert npoll[0] == 0
    a.flush()
    l = "L_poll0"; npoll[0] = 1
    a.label(l, flush=False)
    a(f"""
    ds_read_b32 v{vP}, v{vPA} offset:256
    s_sub_u32 s{sBUD}, s{sBUD}, 1
    s_cbranch_scc1 L_end
    s_bitcmp1_b32 s{sJ}, 5
    s_waitcnt lgkmcnt(0)
    v_cmp_gt_u32 vcc, s{sT2}, v{vP}
    s_cbranch_vccnz {l}
    """)
    if diag:
        a(f"""
        s_cselect_b32 s53, 1, 0
        s_memrealtime s[{sRAW}:{sRAW+1}]
        s_mov_b32 m0, s52
        s_add_u32 s52, s52, 1
        s_waitcnt lgkmcnt(0)
        v_writelane_b32 v{DG}, s{sRAW}, m0
        s_cmp_eq_u32 s53, 1
        """)
    a(f"""
    s_cbranch_scc1 L_flip
    s_cmpk_lg_u32 s{sL}, {(64-el-2)*256}
    s_cbranch_scc1 L_k
    s_mov_b64 exec, 1
    global_atomic_add v{vEL}, v{vTA}, v{v64}, s[{sWS}:{sWS+1}] sc0 sc1
    s_mov_b64 exec, -1
    s_branch L_k
    """)
    a.label("L_flip")
    a(f"s_mov_b32 s{sJ}, 0")
    if bias: a(f"s_sub_u32 s{SK}, s{SV}, {bias}\n s_subb_u32 s{SK+1}, s{SV+1}, 0")
    else: a(f"s_mov_b64 s[{SK}:{SK+1}], s[{SV}:{SV+1}]")
    for i in range(4): a(f"v_mov_b32 v{VK[i]}, v{VV[i]}")
    a(f"""
    s_bitcmp1_b32 s{sL}, 13
    s_cbranch_scc0 L_k
    """)
    stampc(4)
    def lfin():
        if diag:
            stampc(5)
            a(f"s_sub_u32 s{sT}, 0x100000, s{sBUD}")
            a(f"v_writelane_b32 v{DG}, s{sT}, 6")
            a(f"s_or_b32 s{sX}, s{sX}, 32")
            a(f"v_writelane_b32 v{DG}, s{sX}, 2")
            a(f"v_mov_b32 v{LANE}, v0")
            a.flush()
            a("s_branch L_fin")
        else:
            a("s_endpgm")
    a(f"""
    v_readfirstlane_b32 s{sX}, v{vEL}
    s_mov_b32 s51, 0x9e3779b9
    s_cmp_eq_u32 s{sX}, s{sC0}
    s_barrier
    s_cbranch_scc0 L_lnw
    s_atomic_add s51, s[{sWS}:{sWS+1}], s50
    """)
    a.label("L_lnw", flush=False)
    for p in range(2, -1, -1):
        a(f"s_waitcnt vmcnt({8*p})")
        a("s_barrier")
    lfin()
    def putw(mid=""):
        for i in range(4): a(f"v_cvt_pk_bf16_f32 v{WPK+i}, v{WD+2*i}, v{WD+2*i+1}")
        if mid: a(mid)
        a(f"""
        s_mov_b64 exec, s[{sMS}:{sMS+1}]
        ds_write_b128 v{cWW}, v[{WPK}:{WPK+3}]
        s_mov_b64 exec, -1
        """)
    def kreads():
        for tl in range(2):
            for j in range(4): a(f"ds_read_b128 v[{KR+16*tl+4*j}:{KR+16*tl+4*j+3}], v{RK[j]} offset:{4096*tl}")
    if pfk:
        a.label("L_rp")
        a(f"""
        ds_read_b32 v{cW}, v{cLN}
        s_sub_u32 s{sBUD}, s{sBUD}, 1
        s_cbranch_scc0 L_pk
        s_endpgm
        """)
    a.label("L_loop")
    if pfk: stampm()
    else:
        poll(cLN, f"s{sTHR}", cW)
        stampm()
        kreads()
        a(f"""
        s_add_u32 s{sT}, s{sTHR}, 768
        s_min_u32 s{sT}, s{sT}, 8192
        """)
        putw()
        a(f"v_mov_b32 v{cW}, s{sT}")
        for j in range(4): a(f"v_xor_b32 v{RK[j]}, s{sXR}, v{RK[j]}")
        a(f"""
        v_add_u32 v{cWW}, 256, v{cWW}
        s_xor_b32 s{sXR}, s{sXR}, 0x10000
        s_waitcnt lgkmcnt(1)
        ds_write_b32 v{cPR}, v{cW} offset:256
        """)
    def scale(tl, j):
        o = []
        for r0 in range(0, 4, so):
            st = [[], [], []]
            for r in range(r0, r0 + so):
                x = KR + 16 * tl + 4 * j + r
                t0 = T + 2 * (r & 1); t1 = t0 + 1
                st[0] += [f"v_lshlrev_b32 v{t0}, 16, v{x}", f"v_and_b32 v{t1}, s{sMASK}, v{x}"]
                if pk & 1: st[1] += [f"v_pk_mul_f32 v[{t0}:{t1}], v[{t0}:{t1}], s[{sSCALE}:{sSCALE+1}]"]
                else: st[1] += [f"v_mul_f32 v{t0}, s{sSCALE}, v{t0}", f"v_mul_f32 v{t1}, s{sSCALE}, v{t1}"]
                st[2] += [f"v_cvt_pk_bf16_f32 v{x}, v{t0}, v{t1}"]
            o += st[0] + st[1] + st[2]
        for r in range(0 if gr else 4):
            x = KR + 16 * tl + 4 * j + r
            acc = SQA + 2 * tl + (r & 1)
            if j == 0 and r < 2: o.append(f"v_dot2_f32_bf16 v{acc}, v{x}, v{x}, 0")
            else: o.append(f"v_dot2_f32_bf16 v{acc}, v{x}, v{x}, v{acc}")
        return o
    def projm(tl, j):
        o = []
        if gr:
            d = SQD + 4 * tl; k = KR + 16 * tl + 4 * j
            o.append(f"v_mfma_f32_16x16x32_bf16 v[{d}:{d+3}], v[{k}:{k+3}], v[{k}:{k+3}], " + (f"v[{d}:{d+3}]" if j else "0"))
        for t in range(4):
            d = PR + 16 * tl + 4 * t
            om = OM + 16 * t + 4 * j
            k = KR + 16 * tl + 4 * j
            c = "0" if j == 0 else f"v[{d}:{d+3}]"
            o.append(f"v_mfma_f32_16x16x32_bf16 v[{d}:{d+3}], v[{om}:{om+3}], v[{k}:{k+3}], {c}")
        return o
    def sqsum(tl):
        acc = SQA + 2 * tl; d = SQD + 4 * tl
        if gr: return [f"v_cndmask_b32_e64 v{acc}, {f'v{acc}' if r else 0}, v{d+r}, s[{sDG+2*r}:{sDG+2*r+1}]" for r in range(4)]
        return [f"v_add_f32 v{acc}, v{acc}, v{acc+1}"]
    def sqm(tl):
        acc = SQA + 2 * tl; d = SQD + 4 * tl
        return [f"v_mfma_f32_16x16x4_f32 v[{d}:{d+3}], v{NH}, v{acc}, 0"]
    def phi(tl):
        d = SQD + 4 * tl
        o = [f"v_cvt_pk_bf16_f32 v{d}, 0, v{d}"]
        for t in range(4):
            p = [PR + 16 * tl + 4 * t + r for r in range(4)]
            for x in p: o.append(f"v_cvt_pk_bf16_f32 v{x}, 0, v{x}")
            if pk & 2:
                for x in p[::2]: o.append(f"v_pk_add_f32 v[{x}:{x+1}], v[{x}:{x+1}], v[{d}:{d+1}] op_sel_hi:[1,0]")
            else:
                for x in p: o.append(f"v_add_f32 v{x}, v{d}, v{x}")
            for x in p: o.append(f"v_cvt_pk_bf16_f32 v{x}, 0, v{x}")
            if pk & 2:
                for x in p[::2]: o.append(f"v_pk_mul_f32 v[{x}:{x+1}], v[{x}:{x+1}], s[{sL2E}:{sL2E+1}]")
            else:
                for x in p: o.append(f"v_mul_f32 v{x}, s{sL2E}, v{x}")
            for x in p: o.append(f"v_exp_f32 v{x}, v{x}")
            h = PH + 8 * tl + 2 * t
            o.append(f"v_cvt_pk_bf16_f32 v{h}, v{p[0]}, v{p[1]}")
            o.append(f"v_cvt_pk_bf16_f32 v{h+1}, v{p[2]}, v{p[3]}")
        if po:
            n = (len(o) - 1) // 4
            for t in range(3):
                e = 1 + n * (t + 1)
                o[e-2:e+4] = o[e:e+4] + o[e-2:e]
        return o
    def wm(tl):
        d = WD + 4 * tl; h = PH + 8 * tl
        return [f"v_mfma_f32_16x16x32_bf16 v[{d}:{d+3}], v[{h}:{h+3}], v[{PQ}:{PQ+3}], v[{C}:{C+3}]",
                f"v_mfma_f32_16x16x32_bf16 v[{d}:{d+3}], v[{h+4}:{h+7}], v[{PQ+4}:{PQ+7}], v[{d}:{d+3}]"]
    steps = [(tl, j) for tl in range(2) for j in range(4)]
    body = scale(0, 0); n0 = len(body)
    for i in range(1, 8):
        tl, j = steps[i]
        side = projm(*steps[i - 1])
        main = scale(tl, j)
        if gr:
            if steps[i - 1] == (0, 3): main = main + sqsum(0)
            if steps[i - 1] == (1, 0): side = side + sqm(0)
            body += interleave(main, side, 3 if pk & 1 or len(side) > 5 else 4, lead=2)
            continue
        if steps[i - 1] == (0, 3):
            main = main[:4] + sqsum(0) + main[4:]
            side = side + sqm(0)
        body += interleave(main, side, 4 if pk & 1 else 5, lead=2)
    ph0 = phi(0)
    ph0 = ph0[:14] + sqsum(1) + ph0[14:] if gr else ph0[:4] + sqsum(1) + ph0[4:]
    for n, x in enumerate(body):
        if pfk and n == n0: putw(x)
        else: a(x)
        if pfk and n == n0 + 1: a(f"v_add_u32 v{cWW}, 256, v{cWW}")
    a.label("L_phi0", flush=False)
    ph0 = interleave(ph0, projm(1, 3) + sqm(1), 4, lead=2 if gr else 1)
    if pfk:
        a(f"ds_read_b32 v{cW}, v{cLN}")
        f4 = next(i for i, x in enumerate(ph0) if x.startswith(("v_add", "v_exp")))
        for x in ph0[:f4] + [f"s_cmpk_gt_u32 s{sTHR}, 8192"] + ph0[f4:fp]: a(x)
        a("s_cbranch_scc1 L_nf")
        a.label("L_pk", flush=False)
        a(f"""
        s_waitcnt lgkmcnt(0)
        v_cmp_gt_u32 vcc, s{sTHR}, v{cW}
        s_cbranch_vccnz L_rp
        """)
        kreads()
        for j in range(4): a(f"v_xor_b32 v{RK[j]}, s{sXR}, v{RK[j]}")
        a(f"""
        s_xor_b32 s{sXR}, s{sXR}, 0x10000
        s_add_u32 s{sP}, s{sTHR}, 768
        s_min_u32 s{sP}, s{sP}, 8192
        """)
        a.hist = a.hist[:-18]
        a.label("L_nf", flush=False)
        a(f"s_addk_i32 s{sTHR}, 1024")
        for x in ph0[fp:]: a(x)
        a(f"""
        s_cmpk_le_u32 s{sTHR}, 2048
        s_waitcnt vmcnt(0) lgkmcnt(0)
        v_mov_b32 v{cW}, s{sP}
        ds_write_b32 v{cPR}, v{cW} offset:256
        """)
    else:
        for x in ph0: a(x)
        a(f"s_cmp_eq_u32 s{sTHR}, 0")
    a.flush()
    a("s_cbranch_scc1 L_qpost")
    ph1 = interleave(phi(1), wm(0), 6, lead=3)
    if pfk: ph1 = ph1 + [wm(1)[0], f"s_cmp_le_u32 s{sTHR}, {8192 if ev else 9216}"]
    for x in ph1: a(x)
    if pfk:
        a(wm(1)[1])
    else:
        a(f"s_addk_i32 s{sTHR}, 1024")
        a(wm(1)[0])
        a(f"s_cmpk_le_u32 s{sTHR}, 8192")
        a(wm(1)[1])
        a("s_waitcnt vmcnt(0)")
    a("s_cbranch_scc1 L_loop")
    putw()
    if pw == 3: a(f"global_load_dword v{DUM}, v{cWS}, s[{sWS}:{sWS+1}] offset:1024")
    stampm()
    if amp == "d": a("s_memrealtime s[76:77]")
    AR = PH
    def areads():
        for u in range(4): a(f"ds_read_b128 v[{AR+4*u}:{AR+4*u+3}], v{cWA} offset:{256+64*u}")
    def denm(u): a(f"v_mfma_f32_16x16x32_bf16 v[{DEN}:{DEN+3}], v[{AR+4*u}:{AR+4*u+3}], v[{ONES}:{ONES+3}], v[{DEN}:{DEN+3}]")
    def trs(j):
        r = PR + 8 * j
        for h in range(2):
            a(f"ds_read_b64_tr_b16 v[{r+4*h}:{r+4*h+1}], v{TV+h} offset:{8192*j}")
            a(f"ds_read_b64_tr_b16 v[{r+4*h+2}:{r+4*h+3}], v{TV+h} offset:{8192*j+4096}")
    def mms(j, left=0):
        r = PR + 8 * j
        for h in range(2):
            d = (ACC, AC1)[h]
            a(f"s_waitcnt lgkmcnt({left+2-2*h})")
            a(f"v_mfma_f32_16x16x32_bf16 v[{d}:{d+3}], v[{AR+4*j}:{AR+4*j+3}], v[{r+4*h}:{r+4*h+3}], v[{d}:{d+3}]")
    a.label("L_vl", flush=False)
    poll(cLN, f"s{sVT}", cW)
    stampm()
    areads()
    for j in range(3): trs(j)
    a(f"""
    v_mov_b32 v{cW}, s{sVT}
    s_mov_b32 s{sP}, s{sVT}
    v_add_u32 v{cWA}, 256, v{cWA}
    s_addk_i32 s{sVT}, 1024
    s_waitcnt lgkmcnt(12)
    """)
    trs(3)
    for u in range(4): denm(u)
    a(f"""
    v_xor_b32 v{TV}, s{sXR}, v{TV}
    v_xor_b32 v{TV+1}, s{sXR}, v{TV+1}
    s_xor_b32 s{sXR}, s{sXR}, 0x10000
    s_cmp_lt_u32 s{sVT}, s{sVL}
    """)
    for j in range(4): mms(j, 12 - 4 * j)
    a(f"ds_write_b32 v{cPR}, v{cW} offset:256")
    a("s_cbranch_scc1 L_vl")
    if ev:
        a(f"""
        s_movk_i32 s{sVL}, {64*256}
        s_cmpk_le_u32 s{sTHR}, 9216
        s_cbranch_scc1 L_loop
        """)
    areads()
    a(f"""
    v_mov_b32 v{GB}, 0
    v_mov_b32 v{GB+1}, v{EP}
    v_mov_b32 v{GB+2}, 0
    v_mov_b32 v{GB+3}, 0
    s_mov_b32 s{sM3}, 0
    {f"s_mov_b32 s{sVL}, {ab}" if ab > 1 else ""}
    s_mov_b32 s{sM3+1}, s{sMASK}
    s_waitcnt lgkmcnt(0)
    """)
    for u in range(4): denm(u)
    if pw in (1, 2):
        a("s_mov_b64 exec, 0xffff")
        if pw == 1: a(f"global_load_dword v{KR+8}, v{cWS}, s[{sWS}:{sWS+1}] {lf}")
        else: a(f"v_not_b32 v{KR+9}, v{EP}\n global_store_dwordx4 v{cWS}, v[{KR+8}:{KR+11}], s[{sWS}:{sWS+1}] {sf}")
        a("s_mov_b64 exec, -1")
    stampc(58)
    a("s_barrier")
    stampc(59)
    ng = [0]
    def gload(B):
        a(f"s_mov_b32 exec_hi, 0xffff")
        a(f"global_load_dwordx4 v[{B}:{B+3}], v{GA}, s[{sWS}:{sWS+1}] {lf}")
        a(f"s_mov_b64 exec, -1")
    def wload():
        l = "L_nb%d" % ng[0]; ng[0] += 1
        a(f"s_cbranch_scc0 {l}")
        gload(KR if pp else GB)
        a.label(l, flush=False)
    a(f"ds_read_b32 v{cW}, v{cLN}")
    trs(0)
    a(f"""
    v_mov_b32 v{DENR}, v{DEN}
    v_add_f32 v{T}, {hex(f2u(1e-6))}, v{DEN}
    s_waitcnt lgkmcnt(4)
    v_readfirstlane_b32 s{sX}, v{cW}
    s_and_b32 s{sT2}, s{sX}, 0xc0
    s_cmpk_eq_u32 s{sT2}, 0xc0
    """)
    if bp == 0: wload()
    mms(0)
    a("s_barrier")
    trs(1)
    if bp == 1: wload()
    mms(1)
    a("s_barrier")
    if bp == 2: wload()
    trs(2)
    mms(2)
    if bp == 3: wload()
    stampc(61)
    if amp == "e": a("s_memrealtime s[76:77]")
    a("s_barrier")
    trs(3)
    a("s_cbranch_scc1 L_win")
    mms(3)
    a(f"s_mov_b64 exec, 0xffff")
    a(f"v_mov_b32 v{ACC+1}, v{AC1}")
    if ab > 1: a(f"global_store_dwordx4 v{cWS}, v[{DENR}:{DENR+3}], s[{sWS}:{sWS+1}] offset:1024 {af}")
    a(f"global_store_dwordx4 v{cWS}, v[{DENR}:{DENR+3}], s[{sWS}:{sWS+1}] {sf}")
    if ab == 1: a(f"global_store_dwordx4 v{cWS}, v[{DENR}:{DENR+3}], s[{sWS}:{sWS+1}] {af}")
    if diag: a("s_mov_b64 exec, -1")
    a("s_branch L_fin" if diag else "s_branch L_amp" if amp else "s_endpgm")
    if pp:
        def chk(B):
            a(f"""
            s_waitcnt vmcnt(1)
            v_cmp_ne_u32 vcc, v{EP}, v{B+1}
            v_mov_b32 v{GB}, v{B}
            v_mov_b32 v{GB+2}, v{B+2}
            v_mov_b32 v{GB+3}, v{B+3}
            """)
        a.label("L_retry", flush=False)
        if ab > 1: a(f"s_sub_u32 s{sVL}, s{sVL}, 1\n s_cselect_b32 s{sT}, 0x400, 0\n v_xor_b32 v{GA}, s{sT}, v{GA}")
        a(f"""
        {"s_mov_b64 exec, vcc" if pp & 1 else ""}
        s_sub_u32 s{sBUD}, s{sBUD}, 16
        s_cbranch_scc1 L_end
        global_load_dwordx4 v[{KR}:{KR+3}], v{GA}, s[{sWS}:{sWS+1}] {lf}
        """)
        chk(KR + 4)
        a(f"""
        s_cbranch_vccz L_got
        {"s_mov_b64 exec, vcc" if pp & 1 else ""}
        s_branch L_chkb
        """)
        a.label("L_win", flush=False)
        mms(3)
        a("s_mov_b32 exec_hi, 0xffff")
        a.label("L_chkb", flush=False)
        a(f"global_load_dwordx4 v[{KR+4}:{KR+7}], v{GA}, s[{sWS}:{sWS+1}] {lf}")
        chk(KR)
        a("s_cbranch_vccnz L_retry")
        a.label("L_got", flush=False)
        a("s_mov_b64 exec, -1\n s_nop 1")
    else:
        a.label("L_retry", flush=False)
        if ab > 1: a(f"s_sub_u32 s{sVL}, s{sVL}, 1\n s_cselect_b32 s{sT}, 0x400, 0\n v_xor_b32 v{GA}, s{sT}, v{GA}")
        a(f"""
        s_mov_b32 exec_hi, 0xffff
        s_sub_u32 s{sBUD}, s{sBUD}, 16
        s_cbranch_scc1 L_end
        global_load_dwordx4 v[{GB}:{GB+3}], v{GA}, s[{sWS}:{sWS+1}] {lf}
        s_mov_b64 exec, -1
        s_branch L_chkb
        """)
        a.label("L_win", flush=False)
        mms(3)
        if diag == 3: a("s_mov_b32 m0, 30")
        a.label("L_chkb", flush=False)
        if diag == 3:
            a("s_waitcnt vmcnt(0)")
            stampm()
            a(f"s_min_u32 m0, m0, 50")
        a(f"""
        s_waitcnt vmcnt(0)
        v_cmp_ne_u32 vcc, v{EP}, v{GB+1}
        s_cbranch_vccnz L_retry
        """)
    stampc(62)
    a(f"""
    v_add_f32_dpp v{GB}, v{GB}, v{GB} row_bcast:15 row_mask:0xa bank_mask:0xf
    v_permlane16_swap_b32 v{GB+2}, v{GB+3}
    s_nop 0
    v_add_f32_dpp v{GB}, v{GB}, v{GB} row_bcast:31 row_mask:0xc bank_mask:0xf
    v_add_f32 v{GB+2}, v{GB+2}, v{GB+3}
    v_add_f32 v{GB}, v{GB}, v{T}
    v_cndmask_b32_e64 v{ACC}, v{ACC}, v{AC1}, s[{sM3}:{sM3+1}]
    v_add_f32 v{GB+3}, v{GB+2}, v{ACC}
    v_permlane32_swap_b32 v{GB+1}, v{GB+2}
    v_rcp_f32 v{GB}, v{GB}
    s_mov_b32 exec_lo, 0
    v_add_f32 v{GB+3}, v{GB+3}, v{GB+1}
    v_mul_f32 v{GB+3}, v{GB+3}, v{GB}
    v_cvt_pk_bf16_f32 v{GB+3}, v{GB+3}, v{GB+3}
    global_store_short v{cOUT}, v{GB+3}, s[{sOUT}:{sOUT+1}]
    """)
    if diag:
        a("s_mov_b64 exec, -1")
        stampc(5)
        a.label("L_fin")
        a(f"s_memrealtime s[{sRAW}:{sRAW+1}]")
        a(f"s_getreg_b32 s76, hwreg(HW_REG_XCC_ID)")
        a("s_waitcnt lgkmcnt(0)")
        a(f"v_writelane_b32 v{DG}, s{sRAW}, 7")
        a(f"v_writelane_b32 v{DG}, s76, 63")
        a(f"""
        s_mul_i32 s{sT}, s2, 5
        s_lshr_b32 s{sT2}, s{sW}, 6
        s_add_u32 s{sT}, s{sT}, s{sT2}
        s_lshl_b32 s{sT}, s{sT}, 8
        s_add_u32 s{sT}, s{sT}, 0x100000
        v_lshl_add_u32 v{T}, v{LANE}, 2, s{sT}
        global_store_dword v{T}, v{DG}, s[{sWS}:{sWS+1}]
        """)
    if amp:
        a.label("L_amp", flush=False)
        a(f"""
        s_cmp_eq_u32 s2, 100
        s_cbranch_scc0 L_end
        s_waitcnt lgkmcnt(0)
        s_sub_u32 s76, s76, s74
        s_mul_i32 s76, s76, 10
        s_add_u32 s76, s76, 3000
        s_min_u32 s76, s76, 40000
        """)
        a.label("L_amp1", flush=False)
        a(f"""
        s_memrealtime s[72:73]
        s_waitcnt lgkmcnt(0)
        s_sub_u32 s72, s72, s74
        s_cmp_lt_u32 s72, s76
        s_cbranch_scc1 L_amp1
        """)
    a.label("L_end", flush=False)
    a("s_endpgm")
    a.label("L_qpost")
    a(f"v_mov_b32 v{T+2}, {hex(f2u(1e-6) - (3 << 23))}")
    a(f"s_mov_b32 s{sT}, {hex(f2u(0.015625))}")
    for i in range(8):
        x = PH + i
        a(f"""
        v_lshlrev_b32 v{T}, 16, v{x}
        v_and_b32 v{T+1}, s{sMASK}, v{x}
        v_fma_f32 v{T}, v{T}, s{sT}, v{T+2}
        v_fma_f32 v{T+1}, v{T+1}, s{sT}, v{T+2}
        v_cvt_pk_bf16_f32 v{PQ+i}, v{T}, v{T+1}
        """)
    a(f"v_mfma_f32_16x16x32_bf16 v[{C}:{C+3}], v[{ONES}:{ONES+3}], v[{PQ}:{PQ+3}], 0")
    a(f"s_add_u32 s{sEP}, s{sEP}, 0x9e3779b9")
    a(f"v_mfma_f32_16x16x32_bf16 v[{C}:{C+3}], v[{ONES}:{ONES+3}], v[{PQ+4}:{PQ+7}], v[{C}:{C+3}]")
    a(f"""
    {"" if pfk else f"s_lshl_b32 s{sTHR}, s{sW}, 2"}
    v_mov_b32 v{EP}, s{sEP}
    s_cmp_eq_u32 s{sEP}, s{sCT+1}
    s_cselect_b32 s{sT}, 4, s{sC}
    s_cmp_lg_u32 s{sT}, 0
    s_cbranch_scc1 L_c2
    s_mov_b64 exec, 1
    v_mov_b32 v{CT}, 0
    v_mov_b32 v{CT+1}, s{sEP}
    v_mov_b32 v{CT+2}, s{sCT}
    v_mov_b32 v{CT+3}, s{sCT+1}
    global_atomic_cmpswap_x2 v{cAT}, v[{CT}:{CT+3}], s[{sWS}:{sWS+1}] sc1
    s_mov_b64 exec, -1
    """)
    a.label("L_c2", flush=False)
    if pw == 4: a(f"global_load_dword v{DUM}, v{cWS}, s[{sWS}:{sWS+1}] offset:1024")
    a("s_nop 1")
    for i in range(4): a(f"v_mul_f32 v{C+i}, {hex(f2u(1e-6) + (3 << 23))}, v{C+i}")
    stampc(3)
    if amp == "q": a("s_memrealtime s[76:77]")
    a.flush()
    a("s_branch L_loop")
    a.raw("L_codeend:")
    a.raw(f""".section .rodata,"a"
.p2align 6
.amdhsa_kernel {NAME}_kernel
  .amdhsa_next_free_vgpr 256
  .amdhsa_next_free_sgpr {100 if pm else 80}
  .amdhsa_accum_offset 256
  .amdhsa_group_segment_fixed_size 0
  .amdhsa_kernarg_size 56
  .amdhsa_user_sgpr_count 2
  .amdhsa_user_sgpr_kernarg_segment_ptr 1
  .amdhsa_system_sgpr_workgroup_id_x 1
.end_amdhsa_kernel""")
    return a

if __name__ == "__main__":
    out = sys.argv[1]
    kw = dict(x.split("=") for x in sys.argv[2:])
    for key in ("nt",):
        if key in kw: kw[key] = "" if kw[key] == "0" else " " + kw[key].replace("+", " ")
    a8 = kw.pop("a8", "1")
    a = gen(**kw)
    t = a.text()
    if a8 == "1": t = align8(t, "L_loop", "L_vl")
    if a8 == "2": t = align8(t)
    open(out, "w").write(t)
    print("wrote", out, "nops inserted:", a.nops)
```

```python
import sys, struct
from asmlib import Asm, interleave, align8
import amap

NAME = "standalone__linear_kernel_rfa__decode"
def f2u(x): return struct.unpack("<I", struct.pack("<f", x))[0]

def gen(nt=" nt", diag="0", al="12", N="16", el="3", K0="4", SL="11", pk="0", bp="3", pr="3", cpr="0", gr="1", amp="", pfk="1", fp="26", so="1", po="0", ev="2", pm="0", pp="0", sf="sc1", lf="sc1", pw="3", ab="12", af="", xc="1", tv="0", to="0",
        m="w4.g0.k0.i0.g1.i2.k1.i1.k2+w3.k1+k4.k3+w2.w3.w2.w5.w7.w0.w6.w1+w2"):
    ev = int(ev); pm = int(pm); pp = int(pp); sf = sf.replace('+', ' '); lf = lf.replace('+', ' '); pw = int(pw); ab = int(ab); xc = int(xc) and ab > 1; tv = int(tv); to = int(to); af = af.replace('+', ' ')
    cols = amap.parse(m); amap.check(cols); PV = amap.derived(cols)
    P = (lambda n: "s%d" % (76 + amap.ORDER.index(n))) if pm else (lambda n: hex(PV[n]))
    WF = {(amap.xor(cols[10:18], w) ^ cols[18]) & PV["F"] for w in range(256)}
    bias = 4096 if pm or any(amap.xor(cols[:4], g + 4 * i) ^ x < 1024 * i for g in range(4) for i in range(4) for x in WF) else 0
    wf = pm or WF != {0}
    so = int(so); po = int(po)
    pfk = int(pfk); fp = int(fp)
    gr = int(gr)
    diag = int(diag); N = int(N); el = int(el); K0 = int(K0); SL = int(SL); pk = int(pk); bp = int(bp); cpr = int(cpr)
    a = Asm()
    OMB = 131072; LND = 147712; PRG = LND + 256; RED = 151552; WB = RED + 4096 + 256
    LDS = WB + 2048
    EPOCH = 0x80000; STEP = 32768
    SK, SV, SO, SQ = 4, 8, 12, 16
    sOUT, sWS = 20, 24
    sW, sHEAD, sPART, sT, sT2, sX, sBUD = 26, 27, 28, 29, 30, 31, 32
    sL, sKO, sM, sC0, sJ, sTAB, sWB, sSH = 33, 34, 36, 49, 37, 38, 40, 41
    VK = [176, 177, 178, 179]; VV = [5, 6, 17, 18]; vLN = 8; vPA = 9; vT = 10; vP = 11; vTA = 12; vEL = 15; v64 = 16; vTB = 20
    sC, sXR, sTHR, sMASK, sSCALE, sL2E, sEP = 33, 34, 35, 36, 38, 40, 42
    sMS = 44; sM3 = 46; sDG = 48; sP = 56; sVT = 57; sVL = 58
    sCT = 62
    RK = [8, 9, 10, 11]; TV = 12; cWW = 14; cWA = 15; cPA = 16
    NH = 20; LANE = 21; cLN = 1; cPR = 2; cW = 4; EP = 151; DENR = 150; cRD = 5; cWS = 6; cOUT = 22; cAT = 161
    ONES = 24; C = 28; PQ = 32; WPK = 40; WD = 44; SQD = 52; SQA = 60
    KR = 64; PR = 96; PH = 128; T = 144; ACC = 152; AC1 = 156; DUM = 160; DG = 164; DEN = 168
    CT = 180; GA = 186; OM = 192; GB = 172
    sRAW = 72
    px, py = amap.partbits(cols)
    partc = "" if pm else f"s_bfe_u32 s{sPART}, s2, {hex(0x20000 + px)}" if py == px + 1 else f"s_bfe_u32 s{sPART}, s2, {hex(0x10000 + py)}\n s_bitcmp1_b32 s2, {px}\n s_addc_u32 s{sPART}, s{sPART}, s{sPART}"
    def stampc(i):
        if diag:
            a(f"s_memrealtime s[{sRAW}:{sRAW+1}]")
            a("s_waitcnt lgkmcnt(0)")
            a(f"v_writelane_b32 v{DG}, s{sRAW}, {i}")
    def stampm():
        if diag:
            a(f"{'s_memtime' if diag == 2 else 's_memrealtime'} s[{sRAW}:{sRAW+1}]")
            a("s_waitcnt lgkmcnt(0)")
            a(f"v_writelane_b32 v{DG}, s{sRAW}, m0")
            a("s_add_u32 m0, m0, 1")
    npoll = [0]
    def poll(adr, thr, reg):
        l = "L_poll%d" % npoll[0]; npoll[0] += 1
        a.label(l, flush=False)
        a(f"""
        ds_read_b32 v{reg}, v{adr}
        s_sub_u32 s{sBUD}, s{sBUD}, 1
        s_cbranch_scc1 L_end
        s_waitcnt lgkmcnt(0)
        v_cmp_gt_u32 vcc, {thr}, v{reg}
        s_cbranch_vccnz {l}
        """)

    hdr = open("cdna_kernels/%s.s.ref" % NAME).read().split("; Override launch")[0]
    a.raw(hdr.rstrip())
    a.raw("; @launch grid=(256,1,1) block=(320,1,1) lds=%d" % LDS)
    a.raw('.amdgcn_target "amdgcn-amd-amdhsa--gfx950"\n.text\n.globl %s_kernel\n.p2align %s\n.p2align 8\n.type %s_kernel,@function' % (NAME, al, NAME))
    a.label(NAME + "_kernel")
    if diag or amp: a("s_memrealtime s[74:75]")
    a(f"""
    s_load_dwordx2 s[{SK}:{SK+1}], s[0:1], 8
    s_load_dwordx2 s[{SO}:{SO+1}], s[0:1], 24
    s_load_dwordx2 s[{SQ}:{SQ+1}], s[0:1], 0
    """)
    if pm: a("s_load_dwordx16 s[76:91], s[0:1], 56\n s_load_dwordx8 s[92:99], s[0:1], 120")
    a("s_getpc_b64 s[60:61]")
    a.label("L_pc", flush=False)
    a(f"""
    v_subrev_u32 v7, 64, v0
    v_lshlrev_b32 v7, 7, v7
    v_cmp_gt_u32 vcc, L_codeend-L_pc-3, v7
    v_mov_b32 v{DUM+3}, s61
    s_cbranch_vccz L_nopf
    s_mov_b64 exec, vcc
    v_add_co_u32 v{DUM+2}, vcc, s60, v7
    v_addc_co_u32 v{DUM+3}, vcc, 0, v{DUM+3}, vcc
    global_load_dword v{DUM}, v[{DUM+2}:{DUM+3}], off
    s_mov_b64 exec, -1
    """)
    a.label("L_nopf", flush=False)
    a(f"""
    v_readfirstlane_b32 s{sW}, v0
    v_bfe_u32 v22, v0, 4, 2                    ; q = lane>>4
    v_and_b32 v23, 15, v0                      ; n = lane&15
    s_cmp_ge_u32 s2, 256
    s_cbranch_scc1 L_end
    v_xor_b32 v7, v22, v23
    v_lshlrev_b32 v7, 4, v7
    """)
    if pm:
        a(f"s_waitcnt lgkmcnt(0)\n s_mov_b32 s{sKO}, {P('c')}")
        for j in range(8): a(f"s_bitcmp1_b32 s2, {j}\n s_cselect_b32 s{sT}, {P('w%d' % j)}, 0\n s_xor_b32 s{sKO}, s{sKO}, s{sT}")
        a(f"s_lshr_b32 s{sPART}, s{sKO}, 26\n s_and_b32 s{sKO}, s{sKO}, 0x3ffffff")
    else:
        for n, (am, mul, rm) in enumerate(amap.plan(cols[10:18])):
            d = sT if n else sKO; src = 2
            if am != 0xff: a(f"s_and_b32 s{d}, s2, {hex(am)}"); src = d
            if mul & (mul - 1): a(f"s_mul_i32 s{d}, s{src}, {hex(mul)}")
            else: a(f"s_lshl_b32 s{d}, s{src}, {mul.bit_length() - 1}")
            if rm != 0xffffffff: a(f"s_and_b32 s{d}, s{d}, {hex(rm)}")
            if n: a(f"s_xor_b32 s{sKO}, s{sKO}, s{sT}")
        if PV["c"]: a(f"s_xor_b32 s{sKO}, s{sKO}, {P('c')}")
    a(f"""
    s_lshr_b32 s{sHEAD}, s{sKO}, 20
    s_cmp_lg_u32 s{sW}, 0
    s_cbranch_scc1 L_cons
    """)
    gm = PV["g0"] | PV["g1"] >> 1; gr_ = PV["g0"] | PV["g1"]
    if not pm and all(q * gm & gr_ == amap.xor(cols[:2], q) for q in range(4)):
        gcode = f"v_mul_u32_u24 v19, {hex(gm)}, v22\n v_and_b32 v19, {hex(gr_)}, v19"
    else:
        gcode = f"""v_bfe_i32 v19, v0, 4, 1
        v_bfe_i32 v{vTB}, v0, 5, 1
        v_and_b32 v19, {P('g0')}, v19
        v_and_b32 v{vTB}, {P('g1')}, v{vTB}
        v_xor_b32 v19, v19, v{vTB}"""
    a(f"""
    s_setprio {pr}
    {f"s_mov_b32 s{SK+2}, {hex(2**26 + bias)}" if bias else f"s_brev_b32 s{SK+2}, 32"}
    s_mov_b32 s{SK+3}, 0x20000
    s_mov_b32 m0, 0
    {gcode}
    s_mov_b32 s{sTAB}, {P('tab0')}
    s_mov_b32 s{sTAB+1}, {P('tab1')}
    """)
    if wf: a(f"s_and_b32 s{sT}, s{sKO}, {P('F')}\n v_xor_b32 v19, s{sT}, v19\n s_xor_b32 s{sKO}, s{sKO}, s{sT}")
    def rows(R, sw):
        a(f"v_or_b32 v{R[0]}, v19, v7")
        busy = PV["g0"] | PV["g1"]
        for x in WF: busy |= x
        if not bias and all(not (PV["i%d" % i] | PV["i%d" % i] - 1024 * i) & busy for i in range(1, 4)):
            for i in range(1, 4): a(f"v_xor_b32 v{R[i]}, {hex(PV['i%d' % i] - 1024 * i | sw(i))}, v{R[0]}")
            return
        for i in range(1, 4):
            if pm: a(f"v_xor_b32 v{R[i]}, {P('i%d' % i)}, v{R[0]}\n v_xor_b32 v{R[i]}, {sw(i)}, v{R[i]}")
            else: a(f"v_xor_b32 v{R[i]}, {hex(PV['i%d' % i] | sw(i))}, v{R[0]}")
        for i in range(4):
            if bias - 1024 * i: a(f"v_add_u32 v{R[i]}, {hex((bias - 1024 * i) & 0xffffffff)}, v{R[i]}")
    rows(VK, lambda i: 64 * i)
    a(f"s_mov_b32 s{sWB}, s{sKO}")
    if diag:
        a("s_waitcnt lgkmcnt(0)")
        a(f"v_mov_b32 v{DG}, 0")
        a(f"v_writelane_b32 v{DG}, s74, 0")
        stampc(1)
    a("s_waitcnt lgkmcnt(0)")
    if bias: a(f"s_sub_u32 s{SK}, s{SK}, {bias}\n s_subb_u32 s{SK+1}, s{SK+1}, 0")
    a.label("L_k0", flush=False)
    for i in range(4): a(f"buffer_load_dwordx4 v{VK[i]}, s[{SK}:{SK+3}], s{sKO} offen offset:{1024*i}{nt} lds")
    a(f"""
    s_and_b32 s{sT}, s{sTAB}, 0xfff
    s_addk_i32 m0, 4096
    s_lshl_b32 s{sT}, s{sT}, 8
    s_lshr_b64 s[{sTAB}:{sTAB+1}], s[{sTAB}:{sTAB+1}], 12
    s_xor_b32 s{sKO}, s{sKO}, s{sT}
    s_cmpk_lt_u32 m0, {3*8192}
    s_cbranch_scc1 L_k0
    s_branch L_setup
    """)
    a.label("L_cons")
    a(f"""
    v_lshl_add_u32 v{VK[0]}, v22, 8, v7
    v_xor_b32 v{VK[1]}, 64, v{VK[0]}
    v_xor_b32 v{VK[2]}, 0x80, v{VK[0]}
    v_xor_b32 v{VK[3]}, 64, v{VK[2]}
    v_and_b32 v{LANE}, 63, v0
    s_lshl_b32 s{sT}, s{sHEAD}, 8
    v_lshl_add_u32 v{KR}, v{LANE}, 2, s{sT}
    s_lshl_b32 s{sT2}, s{sW}, 6
    s_add_u32 m0, s{sT2}, {OMB - 4096}
    s_addk_i32 s{sT2}, -4096
    s_movk_i32 s{SO+2}, 16384
    s_mov_b32 s{SO+3}, 0x20000
    s_waitcnt lgkmcnt(0)
    """)
    for i in range(4): a(f"buffer_load_dwordx4 v{VK[i]}, s[{SO}:{SO+3}], s{sT2} offen offset:{1024*i} lds")
    a(f"""
    global_load_dword v{KR}, v{KR}, s[{SQ}:{SQ+1}]
    s_load_dwordx2 s[{sWS}:{sWS+1}], s[0:1], 48
    s_load_dwordx2 s[{sOUT}:{sOUT+1}], s[0:1], 32
    {f"s_setprio {cpr}" if cpr else ""}
    s_lshr_b32 s{sC}, s{sT2}, 12
    {partc}
    s_mov_b32 s{sBUD}, 0x100000
    v_lshlrev_b32 v{cLN}, 2, v{LANE}
    v_add_u32 v{cLN}, {LND}, v{cLN}
    s_lshl_b32 s{sT2}, s{sC}, 8
    v_add_u32 v{cPR}, s{sT2}, v{cLN}
    v_mov_b32 v{ACC}, 0
    ds_write_b32 v{cPR}, v{ACC} offset:256
    s_lshl_b32 s{sT2}, s{sC}, 13
    v_lshl_add_u32 v7, v23, 8, v7              ; n*256 + ((q^n)*16)
    v_add_u32 v{RK[0]}, s{sT2}, v7
    v_xor_b32 v{RK[1]}, 64, v{RK[0]}
    v_xor_b32 v{RK[2]}, 0x80, v{RK[0]}
    v_xor_b32 v{RK[3]}, 0xc0, v{RK[0]}
    v_add_u32 v{T+4}, {OMB}, v7
    v_xor_b32 v{T+5}, 64, v{T+4}
    v_xor_b32 v{T+6}, 0x80, v{T+4}
    v_xor_b32 v{T+7}, 0xc0, v{T+4}
    v_lshrrev_b32 v7, 2, v{LANE}
    v_and_b32 v{TV}, 7, v7
    v_lshlrev_b32 v{TV}, 5, v{TV}
    v_lshl_add_u32 v{TV}, v7, 8, v{TV}
    v_and_b32 v7, 3, v{LANE}
    v_lshl_add_u32 v{TV}, v7, 3, v{TV}
    s_add_u32 s{sT2}, s{sT}, {EPOCH}
    v_mov_b32 v{cAT}, s{sT2}
    s_add_u32 s{sX}, s{sT2}, 128
    s_waitcnt lgkmcnt(0)
    s_load_dword s{sEP}, s[{sWS}:{sWS+1}], s{sX}
    s_load_dwordx2 s[{sCT}:{sCT+1}], s[{sWS}:{sWS+1}], s{sT2}
    """)
    if diag:
        a(f"v_mov_b32 v{DG}, 0")
        a(f"v_writelane_b32 v{DG}, s74, 0")
        a("s_mov_b32 m0, 8")
    a(f"""
    v_lshlrev_b32 v{PH+3}, 4, v22
    s_lshl_b32 s{sT2}, s{sC}, 8
    v_lshl_add_u32 v{cRD}, v23, 4, s{sT2}       ; 256c + 16n
    v_add_u32 v7, 1, v22
    v_xor_b32 v7, s{sPART}, v7
    s_lshl2_add_u32 s{sT2}, s{sC}, -4
    s_lshl4_add_u32 s{sT}, s{sT2}, s{sT}
    v_lshl_add_u32 v{cOUT}, v{LANE}, 1, s{sT}
    s_lshl_b32 s{sT}, s{sHEAD}, {SL+2}
    v_lshl_add_u32 v{GA}, v7, {SL}, s{sT}
    v_add_u32 v{GA}, v{GA}, v{cRD}
    {f"v_or_b32 v{GA}, 0x400, v{GA}" if ab > 1 else ""}
    s_lshl_b32 s{sT}, s{sC}, 6
    v_xor_b32 v{TV}, s{sT}, v{TV}
    v_xor_b32 v{TV+1}, 32, v{TV}
    v_add_u32 v{cWA}, {WB - 256}, v{PH+3}
    v_add_u32 v{cWW}, s{sT}, v{cWA}
    s_lshl_b32 s{sT}, s{sC}, 10
    s_add_u32 s{sT}, s{sT}, {RED}
    v_add_u32 v{PH+3}, s{sT}, v{PH+3}
    v_lshl_add_u32 v{PH+2}, v{LANE}, 2, s{sT}
    s_lshl2_add_u32 s{sT}, s{sHEAD}, s{sPART}
    s_lshl_b32 s{sT}, s{sT}, {SL}
    v_add_u32 v{cWS}, s{sT}, v{cRD}
    s_mov_b32 s{sMASK}, 0xffff0000
    s_mov_b32 s{sSCALE}, {hex(f2u(128.0 ** -0.25))}
    s_mov_b32 s{sL2E}, 0x3fb8aa3b
    v_mov_b32 v{NH}, -0.5
    s_mov_b32 s{sMS}, 0x00010001
    s_mov_b32 s{sMS+1}, s{sMS}
    s_mov_b32 s{sXR}, 0x8000
    """)
    if gr:
        a(f"s_mov_b32 s{sDG}, 0x00100001\n s_mov_b32 s{sDG+1}, 0x10000100")
        for r in range(1, 4): a(f"s_lshl_b64 s[{sDG+2*r}:{sDG+2*r+1}], s[{sDG}:{sDG+1}], {r}")
    if pk: a(f"s_mov_b32 s{sSCALE+1}, s{sSCALE}\n s_mov_b32 s{sL2E+1}, s{sL2E}")
    a(f"v_mov_b32 v{ONES}, 0x3f803f80")
    for i in range(1, 4): a(f"v_mov_b32 v{ONES+i}, v{ONES}")
    for i in range(1, 4): a(f"v_mov_b32 v{ACC+i}, 0")
    for i in range(4): a(f"v_mov_b32 v{AC1+i}, 0")
    for i in range(4): a(f"v_mov_b32 v{DEN+i}, 0")
    a(f"s_movk_i32 s{sVT}, {36*256}\n s_movk_i32 s{sVL}, {(36+4*ev if ev else 64)*256}")
    stampc(1)
    a(f"""
    {f"s_lshl_b32 s{sTHR}, s{sW}, 2" if pfk else f"s_mov_b32 s{sTHR}, 0"}
    s_waitcnt vmcnt(0)
    v_lshlrev_b32 v{T}, 16, v{KR}
    v_and_b32 v{T+1}, s{sMASK}, v{KR}
    v_mul_f32 v{T}, s{sSCALE}, v{T}
    v_mul_f32 v{T+1}, s{sSCALE}, v{T+1}
    v_cvt_pk_bf16_f32 v{T}, v{T}, v{T+1}
    s_barrier
    ds_write_b32 v{PH+2}, v{T}
    s_waitcnt lgkmcnt(0)
    """)
    for jj in range(4): a(f"ds_read_b128 v[{KR+4*jj}:{KR+4*jj+3}], v{PH+3} offset:{64*jj}")
    for j in range(4):
        for t in range(4):
            r = OM + 16 * t + 4 * j
            a(f"ds_read_b128 v[{r}:{r+3}], v{T+4+j} offset:{4096*t}")
    stampc(2)
    for j in range(4):
        a(f"s_waitcnt lgkmcnt({12-4*j})")
        k = KR + 4 * j
        a(f"v_mfma_f32_16x16x32_bf16 v[{SQD}:{SQD+3}], v[{k}:{k+3}], v[{k}:{k+3}], " + (f"v[{SQD}:{SQD+3}]" if j else "0"))
        for t in range(4):
            d = PR + 4 * t; om = OM + 16 * t + 4 * j
            a(f"v_mfma_f32_16x16x32_bf16 v[{d}:{d+3}], v[{om}:{om+3}], v[{k}:{k+3}], " + (f"v[{d}:{d+3}]" if j else "0"))
    a(f"v_mul_f32 v{SQD}, -0.5, v{SQD}")
    a.flush()
    a("s_branch L_phi0")
    a.label("L_setup")
    a(f"""
    s_load_dwordx2 s[{SV}:{SV+1}], s[0:1], 16
    s_load_dwordx2 s[{sWS}:{sWS+1}], s[0:1], 48
    s_mov_b32 s{sBUD}, 0x100000
    s_movk_i32 s{sL}, 256
    s_movk_i32 s{sM}, {3*8192}
    v_lshlrev_b32 v7, 1, v22
    v_xor_b32 v7, v7, v23
    v_lshlrev_b32 v7, 4, v7
    v_mov_b32 v{vTB}, s{sWB}
    """)
    for j in range(5): a(f"v_bfe_i32 v{vT}, v0, {j}, 1\n v_and_b32 v{vT}, {P('k%d' % j)}, v{vT}\n v_xor_b32 v{vTB}, v{vTB}, v{vT}")
    rows(VV, lambda i: 128 * (i & 1))
    xcc = f"""s_getreg_b32 s{sSH}, hwreg(HW_REG_XCC_ID, 0, 3)
    s_lshl1_add_u32 s{sSH}, s{sSH}, 16
    s_mov_b32 s{sC0}, 64
    s_bitset1_b32 s{sC0}, s{sSH}
    v_mov_b32 v{v64}, s{sC0}""" if xc else f"v_mov_b32 v{v64}, 64"
    a(f"""
    v_readlane_b32 s{sKO}, v{vTB}, 3
    s_mov_b32 s{sJ}, 3
    v_lshlrev_b32 v{vLN}, 2, v0
    v_add_u32 v{vLN}, {LND}, v{vLN}
    v_and_b32 v7, 3, v0
    v_lshl_add_u32 v{vPA}, v7, 8, v{vLN}
    s_lshl_b32 s{sT}, s{sHEAD}, 8
    s_add_u32 s{sT}, s{sT}, {EPOCH}
    v_mov_b32 v{vTA}, s{sT}
    {xcc}
    s_movk_i32 s{sC0}, 0xc0
    s_add_u32 s50, s{sT}, 128
    v_mov_b32 v{vEL}, 0
    """)
    if diag: a("s_mov_b32 s52, 8")
    a.label("L_k")
    a(f"""
    s_mov_b32 m0, s{sM}
    s_xor_b32 s{sT}, s{sKO}, {P('ci2')}
    s_add_u32 s{sJ}, s{sJ}, 1
    s_waitcnt vmcnt({N})
    """)
    for i in range(4): a(f"buffer_load_dwordx4 v{VK[i]}, s[{SK}:{SK+3}], s{sKO} offen offset:{1024*i}{nt} lds")
    a(f"s_addk_i32 m0, 4096")
    a(f"s_addk_i32 s{sM}, 8192")
    for i in range(4): a(f"buffer_load_dwordx4 v{VK[i]}, s[{SK}:{SK+3}], s{sT} offen offset:{1024*i}{nt} lds")
    if N > 16: a("s_waitcnt vmcnt(24)")
    a(f"""
    {f"v_bfe_u32 v{vT}, v{vEL}, s{sSH}, 2" if xc else f"v_mov_b32 v{vT}, s{sL}"}
    v_readlane_b32 s{sKO}, v{vTB}, s{sJ}
    {f"v_or_b32 v{vT}, s{sL}, v{vT}" if xc else ""}
    s_bitset0_b32 s{sM}, 17
    v_and_or_b32 v{vT}, v{vEL}, s{sC0}, v{vT}
    s_addk_i32 s{sL}, 256
    s_sub_u32 s{sT2}, s{sL}, {13*256}
    ds_write_b32 v{vLN}, v{vT}
    s_cbranch_scc0 L_poll0
    s_cmpk_lg_u32 s{sL}, {(K0-1)*256}
    s_cbranch_scc1 L_k
    s_waitcnt lgkmcnt(0)
    {f"s_load_dword s54, s[{SV}:{SV+1}], s{sWB}" if tv & 1 else ""}
    {f"s_mov_b64 exec, 1" if tv & 2 else ""}
    {f"global_load_dword v{vP+2}, v{vTB}, s[{SV}:{SV+1}] nt" if tv & 2 else ""}
    {f"s_mov_b64 exec, -1" if tv & 2 else ""}
    s_barrier
    s_branch L_k
    """)
    assert npoll[0] == 0
    a.flush()
    l = "L_poll0"; npoll[0] = 1
    a.label(l, flush=False)
    a(f"""
    ds_read_b32 v{vP}, v{vPA} offset:256
    s_sub_u32 s{sBUD}, s{sBUD}, 1
    s_cbranch_scc1 L_end
    s_bitcmp1_b32 s{sJ}, 5
    s_waitcnt lgkmcnt(0)
    v_cmp_gt_u32 vcc, s{sT2}, v{vP}
    s_cbranch_vccnz {l}
    """)
    if diag:
        a(f"""
        s_cselect_b32 s53, 1, 0
        s_memrealtime s[{sRAW}:{sRAW+1}]
        s_mov_b32 m0, s52
        s_add_u32 s52, s52, 1
        s_waitcnt lgkmcnt(0)
        v_writelane_b32 v{DG}, s{sRAW}, m0
        s_cmp_eq_u32 s53, 1
        """)
    a(f"""
    s_cbranch_scc1 L_flip
    s_cmpk_lg_u32 s{sL}, {(64-el-2)*256}
    s_cbranch_scc1 L_k
    s_mov_b64 exec, 1
    global_atomic_add v{vEL}, v{vTA}, v{v64}, s[{sWS}:{sWS+1}] sc0 sc1
    s_mov_b64 exec, -1
    s_branch L_k
    """)
    a.label("L_flip")
    a(f"s_mov_b32 s{sJ}, 0")
    if bias: a(f"s_sub_u32 s{SK}, s{SV}, {bias}\n s_subb_u32 s{SK+1}, s{SV+1}, 0")
    else: a(f"s_mov_b64 s[{SK}:{SK+1}], s[{SV}:{SV+1}]")
    for i in range(4): a(f"v_mov_b32 v{VK[i]}, v{VV[i]}")
    a(f"""
    s_bitcmp1_b32 s{sL}, 13
    s_cbranch_scc0 L_k
    """)
    stampc(4)
    def lfin():
        if diag:
            stampc(5)
            a(f"s_sub_u32 s{sT}, 0x100000, s{sBUD}")
            a(f"v_writelane_b32 v{DG}, s{sT}, 6")
            a(f"s_or_b32 s{sX}, s{sX}, 32")
            a(f"v_writelane_b32 v{DG}, s{sX}, 2")
            a(f"v_mov_b32 v{LANE}, v0")
            a.flush()
            a("s_branch L_fin")
        else:
            a("s_endpgm")
    a(f"""
    v_readfirstlane_b32 s{sX}, v{vEL}
    s_mov_b32 s51, 0x9e3779b9
    {f"s_and_b32 s{sX}, s{sX}, s{sC0}" if xc else ""}
    s_cmp_eq_u32 s{sX}, s{sC0}
    s_barrier
    s_cbranch_scc0 L_lnw
    s_atomic_add s51, s[{sWS}:{sWS+1}], s50
    """)
    a.label("L_lnw", flush=False)
    for p in range(2, -1, -1):
        a(f"s_waitcnt vmcnt({8*p})")
        a("s_barrier")
    lfin()
    def putw(mid=""):
        for i in range(4): a(f"v_cvt_pk_bf16_f32 v{WPK+i}, v{WD+2*i}, v{WD+2*i+1}")
        if mid: a(mid)
        a(f"""
        s_mov_b64 exec, s[{sMS}:{sMS+1}]
        ds_write_b128 v{cWW}, v[{WPK}:{WPK+3}]
        s_mov_b64 exec, -1
        """)
    def kreads():
        for tl in range(2):
            for j in range(4): a(f"ds_read_b128 v[{KR+16*tl+4*j}:{KR+16*tl+4*j+3}], v{RK[j]} offset:{4096*tl}")
    if pfk:
        a.label("L_rp")
        a(f"""
        ds_read_b32 v{cW}, v{cLN}
        s_sub_u32 s{sBUD}, s{sBUD}, 1
        s_cbranch_scc0 L_pk
        s_endpgm
        """)
    a.label("L_loop")
    if pfk: stampm()
    else:
        poll(cLN, f"s{sTHR}", cW)
        stampm()
        kreads()
        a(f"""
        s_add_u32 s{sT}, s{sTHR}, 768
        s_min_u32 s{sT}, s{sT}, 8192
        """)
        putw()
        a(f"v_mov_b32 v{cW}, s{sT}")
        for j in range(4): a(f"v_xor_b32 v{RK[j]}, s{sXR}, v{RK[j]}")
        a(f"""
        v_add_u32 v{cWW}, 256, v{cWW}
        s_xor_b32 s{sXR}, s{sXR}, 0x10000
        s_waitcnt lgkmcnt(1)
        ds_write_b32 v{cPR}, v{cW} offset:256
        """)
    def scale(tl, j):
        o = []
        for r0 in range(0, 4, so):
            st = [[], [], []]
            for r in range(r0, r0 + so):
                x = KR + 16 * tl + 4 * j + r
                t0 = T + 2 * (r & 1); t1 = t0 + 1
                st[0] += [f"v_lshlrev_b32 v{t0}, 16, v{x}", f"v_and_b32 v{t1}, s{sMASK}, v{x}"]
                if pk & 1: st[1] += [f"v_pk_mul_f32 v[{t0}:{t1}], v[{t0}:{t1}], s[{sSCALE}:{sSCALE+1}]"]
                else: st[1] += [f"v_mul_f32 v{t0}, s{sSCALE}, v{t0}", f"v_mul_f32 v{t1}, s{sSCALE}, v{t1}"]
                st[2] += [f"v_cvt_pk_bf16_f32 v{x}, v{t0}, v{t1}"]
            o += st[0] + st[1] + st[2]
        for r in range(0 if gr else 4):
            x = KR + 16 * tl + 4 * j + r
            acc = SQA + 2 * tl + (r & 1)
            if j == 0 and r < 2: o.append(f"v_dot2_f32_bf16 v{acc}, v{x}, v{x}, 0")
            else: o.append(f"v_dot2_f32_bf16 v{acc}, v{x}, v{x}, v{acc}")
        return o
    def projm(tl, j):
        o = []
        if gr:
            d = SQD + 4 * tl; k = KR + 16 * tl + 4 * j
            o.append(f"v_mfma_f32_16x16x32_bf16 v[{d}:{d+3}], v[{k}:{k+3}], v[{k}:{k+3}], " + (f"v[{d}:{d+3}]" if j else "0"))
        for t in range(4):
            d = PR + 16 * tl + 4 * t
            om = OM + 16 * t + 4 * j
            k = KR + 16 * tl + 4 * j
            c = "0" if j == 0 else f"v[{d}:{d+3}]"
            o.append(f"v_mfma_f32_16x16x32_bf16 v[{d}:{d+3}], v[{om}:{om+3}], v[{k}:{k+3}], {c}")
        return o
    def sqsum(tl):
        acc = SQA + 2 * tl; d = SQD + 4 * tl
        if gr: return [f"v_cndmask_b32_e64 v{acc}, {f'v{acc}' if r else 0}, v{d+r}, s[{sDG+2*r}:{sDG+2*r+1}]" for r in range(4)]
        return [f"v_add_f32 v{acc}, v{acc}, v{acc+1}"]
    def sqm(tl):
        acc = SQA + 2 * tl; d = SQD + 4 * tl
        return [f"v_mfma_f32_16x16x4_f32 v[{d}:{d+3}], v{NH}, v{acc}, 0"]
    def phi(tl):
        d = SQD + 4 * tl
        o = [f"v_cvt_pk_bf16_f32 v{d}, 0, v{d}"]
        for t in range(4):
            p = [PR + 16 * tl + 4 * t + r for r in range(4)]
            for x in p: o.append(f"v_cvt_pk_bf16_f32 v{x}, 0, v{x}")
            if pk & 2:
                for x in p[::2]: o.append(f"v_pk_add_f32 v[{x}:{x+1}], v[{x}:{x+1}], v[{d}:{d+1}] op_sel_hi:[1,0]")
            else:
                for x in p: o.append(f"v_add_f32 v{x}, v{d}, v{x}")
            for x in p: o.append(f"v_cvt_pk_bf16_f32 v{x}, 0, v{x}")
            if pk & 2:
                for x in p[::2]: o.append(f"v_pk_mul_f32 v[{x}:{x+1}], v[{x}:{x+1}], s[{sL2E}:{sL2E+1}]")
            else:
                for x in p: o.append(f"v_mul_f32 v{x}, s{sL2E}, v{x}")
            for x in p: o.append(f"v_exp_f32 v{x}, v{x}")
            h = PH + 8 * tl + 2 * t
            o.append(f"v_cvt_pk_bf16_f32 v{h}, v{p[0]}, v{p[1]}")
            o.append(f"v_cvt_pk_bf16_f32 v{h+1}, v{p[2]}, v{p[3]}")
        if po:
            n = (len(o) - 1) // 4
            for t in range(3):
                e = 1 + n * (t + 1)
                o[e-2:e+4] = o[e:e+4] + o[e-2:e]
        return o
    def wm(tl):
        d = WD + 4 * tl; h = PH + 8 * tl
        return [f"v_mfma_f32_16x16x32_bf16 v[{d}:{d+3}], v[{h}:{h+3}], v[{PQ}:{PQ+3}], v[{C}:{C+3}]",
                f"v_mfma_f32_16x16x32_bf16 v[{d}:{d+3}], v[{h+4}:{h+7}], v[{PQ+4}:{PQ+7}], v[{d}:{d+3}]"]
    steps = [(tl, j) for tl in range(2) for j in range(4)]
    body = scale(0, 0); n0 = len(body)
    for i in range(1, 8):
        tl, j = steps[i]
        side = projm(*steps[i - 1])
        main = scale(tl, j)
        if gr:
            if steps[i - 1] == (0, 3): main = main + sqsum(0)
            if steps[i - 1] == (1, 0): side = side + sqm(0)
            body += interleave(main, side, 3 if pk & 1 or len(side) > 5 else 4, lead=2)
            continue
        if steps[i - 1] == (0, 3):
            main = main[:4] + sqsum(0) + main[4:]
            side = side + sqm(0)
        body += interleave(main, side, 4 if pk & 1 else 5, lead=2)
    ph0 = phi(0)
    ph0 = ph0[:14] + sqsum(1) + ph0[14:] if gr else ph0[:4] + sqsum(1) + ph0[4:]
    for n, x in enumerate(body):
        if pfk and n == n0: putw(x)
        else: a(x)
        if pfk and n == n0 + 1: a(f"v_add_u32 v{cWW}, 256, v{cWW}")
    a.label("L_phi0", flush=False)
    ph0 = interleave(ph0, projm(1, 3) + sqm(1), 4, lead=2 if gr else 1)
    if pfk:
        a(f"ds_read_b32 v{cW}, v{cLN}")
        f4 = next(i for i, x in enumerate(ph0) if x.startswith(("v_add", "v_exp")))
        for x in ph0[:f4] + [f"s_cmpk_gt_u32 s{sTHR}, 8192"] + ph0[f4:fp]: a(x)
        a("s_cbranch_scc1 L_nf")
        a.label("L_pk", flush=False)
        a(f"""
        s_waitcnt lgkmcnt(0)
        v_cmp_gt_u32 vcc, s{sTHR}, v{cW}
        s_cbranch_vccnz L_rp
        """)
        kreads()
        for j in range(4): a(f"v_xor_b32 v{RK[j]}, s{sXR}, v{RK[j]}")
        a(f"""
        s_xor_b32 s{sXR}, s{sXR}, 0x10000
        s_add_u32 s{sP}, s{sTHR}, 768
        s_min_u32 s{sP}, s{sP}, 8192
        """)
        a.hist = a.hist[:-18]
        a.label("L_nf", flush=False)
        a(f"s_addk_i32 s{sTHR}, 1024")
        for x in ph0[fp:]: a(x)
        a(f"""
        s_cmpk_le_u32 s{sTHR}, 2048
        s_waitcnt vmcnt(0) lgkmcnt(0)
        v_mov_b32 v{cW}, s{sP}
        ds_write_b32 v{cPR}, v{cW} offset:256
        """)
    else:
        for x in ph0: a(x)
        a(f"s_cmp_eq_u32 s{sTHR}, 0")
    a.flush()
    a("s_cbranch_scc1 L_qpost")
    ph1 = interleave(phi(1), wm(0), 6, lead=3)
    if pfk: ph1 = ph1 + [wm(1)[0], f"s_cmp_le_u32 s{sTHR}, {8192 if ev else 9216}"]
    for x in ph1: a(x)
    if pfk:
        a(wm(1)[1])
    else:
        a(f"s_addk_i32 s{sTHR}, 1024")
        a(wm(1)[0])
        a(f"s_cmpk_le_u32 s{sTHR}, 8192")
        a(wm(1)[1])
        a("s_waitcnt vmcnt(0)")
    a("s_cbranch_scc1 L_loop")
    putw()
    if pw == 3: a(f"global_load_dword v{DUM}, v{cWS}, s[{sWS}:{sWS+1}] offset:1024")
    if to == 1: a(f"s_mov_b32 exec_lo, 0\n global_load_ushort v{DUM+2}, v{cOUT}, s[{sOUT}:{sOUT+1}]\n s_mov_b32 exec_lo, -1")
    stampm()
    if amp == "d": a("s_memrealtime s[76:77]")
    AR = PH
    def areads():
        for u in range(4): a(f"ds_read_b128 v[{AR+4*u}:{AR+4*u+3}], v{cWA} offset:{256+64*u}")
    def denm(u): a(f"v_mfma_f32_16x16x32_bf16 v[{DEN}:{DEN+3}], v[{AR+4*u}:{AR+4*u+3}], v[{ONES}:{ONES+3}], v[{DEN}:{DEN+3}]")
    def trs(j):
        r = PR + 8 * j
        for h in range(2):
            a(f"ds_read_b64_tr_b16 v[{r+4*h}:{r+4*h+1}], v{TV+h} offset:{8192*j}")
            a(f"ds_read_b64_tr_b16 v[{r+4*h+2}:{r+4*h+3}], v{TV+h} offset:{8192*j+4096}")
    def mms(j, left=0):
        r = PR + 8 * j
        for h in range(2):
            d = (ACC, AC1)[h]
            a(f"s_waitcnt lgkmcnt({left+2-2*h})")
            a(f"v_mfma_f32_16x16x32_bf16 v[{d}:{d+3}], v[{AR+4*j}:{AR+4*j+3}], v[{r+4*h}:{r+4*h+3}], v[{d}:{d+3}]")
    a.label("L_vl", flush=False)
    poll(cLN, f"s{sVT}", cW)
    stampm()
    areads()
    for j in range(3): trs(j)
    a(f"""
    v_mov_b32 v{cW}, s{sVT}
    s_mov_b32 s{sP}, s{sVT}
    v_add_u32 v{cWA}, 256, v{cWA}
    s_addk_i32 s{sVT}, 1024
    s_waitcnt lgkmcnt(12)
    """)
    trs(3)
    for u in range(4): denm(u)
    a(f"""
    v_xor_b32 v{TV}, s{sXR}, v{TV}
    v_xor_b32 v{TV+1}, s{sXR}, v{TV+1}
    s_xor_b32 s{sXR}, s{sXR}, 0x10000
    s_cmp_lt_u32 s{sVT}, s{sVL}
    """)
    for j in range(4): mms(j, 12 - 4 * j)
    a(f"ds_write_b32 v{cPR}, v{cW} offset:256")
    a("s_cbranch_scc1 L_vl")
    if ev:
        a(f"""
        s_movk_i32 s{sVL}, {64*256}
        s_cmpk_le_u32 s{sTHR}, 9216
        s_cbranch_scc1 L_loop
        """)
    areads()
    a(f"""
    v_mov_b32 v{GB}, 0
    v_mov_b32 v{GB+1}, v{EP}
    v_mov_b32 v{GB+2}, 0
    v_mov_b32 v{GB+3}, 0
    s_mov_b32 s{sM3}, 0
    {f"s_mov_b32 s{sVL}, {ab}" if ab > 1 and not xc else ""}
    s_mov_b32 s{sM3+1}, s{sMASK}
    s_waitcnt lgkmcnt(0)
    """)
    for u in range(4): denm(u)
    if pw in (1, 2):
        a("s_mov_b64 exec, 0xffff")
        if pw == 1: a(f"global_load_dword v{KR+8}, v{cWS}, s[{sWS}:{sWS+1}] {lf}")
        else: a(f"v_not_b32 v{KR+9}, v{EP}\n global_store_dwordx4 v{cWS}, v[{KR+8}:{KR+11}], s[{sWS}:{sWS+1}] {sf}")
        a("s_mov_b64 exec, -1")
    stampc(58)
    a("s_barrier")
    stampc(59)
    ng = [0]
    def gload(B):
        a(f"s_mov_b32 exec_hi, 0xffff")
        a(f"global_load_dwordx4 v[{B}:{B+3}], v{GA}, s[{sWS}:{sWS+1}] {lf}")
        a(f"s_mov_b64 exec, -1")
    def wload():
        l = "L_nb%d" % ng[0]; ng[0] += 1
        a(f"s_cbranch_scc0 {l}")
        gload(KR if pp else GB)
        a.label(l, flush=False)
    a(f"ds_read_b32 v{cW}, v{cLN}")
    trs(0)
    a(f"""
    v_mov_b32 v{DENR}, v{DEN}
    v_add_f32 v{T}, {hex(f2u(1e-6))}, v{DEN}
    s_waitcnt lgkmcnt(4)
    v_readfirstlane_b32 s{sX}, v{cW}
    {f"s_andn2_b32 s{sT}, 3, s{sX}" if xc else ""}
    {f"s_cselect_b32 s{sT}, 0x400, 0" if xc else ""}
    {f"s_cselect_b32 s{sVL}, -1, {ab}" if xc else ""}
    {f"v_xor_b32 v{GA}, s{sT}, v{GA}" if xc else ""}
    s_and_b32 s{sT2}, s{sX}, 0xc0
    s_cmpk_eq_u32 s{sT2}, 0xc0
    """)
    if bp == 0: wload()
    mms(0)
    a("s_barrier")
    trs(1)
    if bp == 1: wload()
    mms(1)
    a("s_barrier")
    if bp == 2: wload()
    trs(2)
    mms(2)
    if bp == 3: wload()
    stampc(61)
    if amp == "e": a("s_memrealtime s[76:77]")
    a("s_barrier")
    trs(3)
    a("s_cbranch_scc1 L_win")
    mms(3)
    a(f"s_mov_b64 exec, 0xffff")
    a(f"v_mov_b32 v{ACC+1}, v{AC1}")
    if ab > 1: a(f"global_store_dwordx4 v{cWS}, v[{DENR}:{DENR+3}], s[{sWS}:{sWS+1}] offset:1024 {af}")
    a(f"global_store_dwordx4 v{cWS}, v[{DENR}:{DENR+3}], s[{sWS}:{sWS+1}] {sf}")
    if ab == 1: a(f"global_store_dwordx4 v{cWS}, v[{DENR}:{DENR+3}], s[{sWS}:{sWS+1}] {af}")
    if diag: a("s_mov_b64 exec, -1")
    a("s_branch L_fin" if diag else "s_branch L_amp" if amp else "s_endpgm")
    if pp:
        def chk(B):
            a(f"""
            s_waitcnt vmcnt(1)
            v_cmp_ne_u32 vcc, v{EP}, v{B+1}
            v_mov_b32 v{GB}, v{B}
            v_mov_b32 v{GB+2}, v{B+2}
            v_mov_b32 v{GB+3}, v{B+3}
            """)
        a.label("L_retry", flush=False)
        if ab > 1: a(f"s_sub_u32 s{sVL}, s{sVL}, 1\n s_cselect_b32 s{sT}, 0x400, 0\n v_xor_b32 v{GA}, s{sT}, v{GA}")
        a(f"""
        {"s_mov_b64 exec, vcc" if pp & 1 else ""}
        s_sub_u32 s{sBUD}, s{sBUD}, 16
        s_cbranch_scc1 L_end
        global_load_dwordx4 v[{KR}:{KR+3}], v{GA}, s[{sWS}:{sWS+1}] {lf}
        """)
        chk(KR + 4)
        a(f"""
        s_cbranch_vccz L_got
        {"s_mov_b64 exec, vcc" if pp & 1 else ""}
        s_branch L_chkb
        """)
        a.label("L_win", flush=False)
        mms(3)
        a("s_mov_b32 exec_hi, 0xffff")
        a.label("L_chkb", flush=False)
        a(f"global_load_dwordx4 v[{KR+4}:{KR+7}], v{GA}, s[{sWS}:{sWS+1}] {lf}")
        chk(KR)
        a("s_cbranch_vccnz L_retry")
        a.label("L_got", flush=False)
        a("s_mov_b64 exec, -1\n s_nop 1")
    else:
        a.label("L_retry", flush=False)
        if ab > 1: a(f"s_sub_u32 s{sVL}, s{sVL}, 1\n s_cselect_b32 s{sT}, 0x400, 0\n v_xor_b32 v{GA}, s{sT}, v{GA}")
        a(f"""
        s_mov_b32 exec_hi, 0xffff
        s_sub_u32 s{sBUD}, s{sBUD}, 16
        s_cbranch_scc1 L_end
        global_load_dwordx4 v[{GB}:{GB+3}], v{GA}, s[{sWS}:{sWS+1}] {lf}
        s_mov_b64 exec, -1
        s_branch L_chkb
        """)
        a.label("L_win", flush=False)
        mms(3)
        if diag == 3: a("s_mov_b32 m0, 30")
        a.label("L_chkb", flush=False)
        if diag == 3:
            a("s_waitcnt vmcnt(0)")
            stampm()
            a(f"s_min_u32 m0, m0, 50")
        a(f"""
        s_waitcnt vmcnt(0)
        v_cmp_ne_u32 vcc, v{EP}, v{GB+1}
        s_cbranch_vccnz L_retry
        """)
    stampc(62)
    a(f"""
    v_add_f32_dpp v{GB}, v{GB}, v{GB} row_bcast:15 row_mask:0xa bank_mask:0xf
    v_permlane16_swap_b32 v{GB+2}, v{GB+3}
    s_nop 0
    v_add_f32_dpp v{GB}, v{GB}, v{GB} row_bcast:31 row_mask:0xc bank_mask:0xf
    v_add_f32 v{GB+2}, v{GB+2}, v{GB+3}
    v_add_f32 v{GB}, v{GB}, v{T}
    v_cndmask_b32_e64 v{ACC}, v{ACC}, v{AC1}, s[{sM3}:{sM3+1}]
    v_add_f32 v{GB+3}, v{GB+2}, v{ACC}
    v_permlane32_swap_b32 v{GB+1}, v{GB+2}
    v_rcp_f32 v{GB}, v{GB}
    s_mov_b32 exec_lo, 0
    v_add_f32 v{GB+3}, v{GB+3}, v{GB+1}
    v_mul_f32 v{GB+3}, v{GB+3}, v{GB}
    v_cvt_pk_bf16_f32 v{GB+3}, v{GB+3}, v{GB+3}
    global_store_short v{cOUT}, v{GB+3}, s[{sOUT}:{sOUT+1}]
    """)
    if diag:
        a("s_mov_b64 exec, -1")
        stampc(5)
        a.label("L_fin")
        a(f"s_memrealtime s[{sRAW}:{sRAW+1}]")
        a(f"s_getreg_b32 s76, hwreg(HW_REG_XCC_ID)")
        a("s_waitcnt lgkmcnt(0)")
        a(f"v_writelane_b32 v{DG}, s{sRAW}, 7")
        a(f"v_writelane_b32 v{DG}, s76, 63")
        a(f"""
        s_mul_i32 s{sT}, s2, 5
        s_lshr_b32 s{sT2}, s{sW}, 6
        s_add_u32 s{sT}, s{sT}, s{sT2}
        s_lshl_b32 s{sT}, s{sT}, 8
        s_add_u32 s{sT}, s{sT}, 0x100000
        v_lshl_add_u32 v{T}, v{LANE}, 2, s{sT}
        global_store_dword v{T}, v{DG}, s[{sWS}:{sWS+1}]
        """)
    if amp:
        a.label("L_amp", flush=False)
        a(f"""
        s_cmp_eq_u32 s2, 100
        s_cbranch_scc0 L_end
        s_waitcnt lgkmcnt(0)
        s_sub_u32 s76, s76, s74
        s_mul_i32 s76, s76, 10
        s_add_u32 s76, s76, 3000
        s_min_u32 s76, s76, 40000
        """)
        a.label("L_amp1", flush=False)
        a(f"""
        s_memrealtime s[72:73]
        s_waitcnt lgkmcnt(0)
        s_sub_u32 s72, s72, s74
        s_cmp_lt_u32 s72, s76
        s_cbranch_scc1 L_amp1
        """)
    a.label("L_end", flush=False)
    a("s_endpgm")
    a.label("L_qpost")
    a(f"v_mov_b32 v{T+2}, {hex(f2u(1e-6) - (3 << 23))}")
    a(f"s_mov_b32 s{sT}, {hex(f2u(0.015625))}")
    for i in range(8):
        x = PH + i
        a(f"""
        v_lshlrev_b32 v{T}, 16, v{x}
        v_and_b32 v{T+1}, s{sMASK}, v{x}
        v_fma_f32 v{T}, v{T}, s{sT}, v{T+2}
        v_fma_f32 v{T+1}, v{T+1}, s{sT}, v{T+2}
        v_cvt_pk_bf16_f32 v{PQ+i}, v{T}, v{T+1}
        """)
    a(f"v_mfma_f32_16x16x32_bf16 v[{C}:{C+3}], v[{ONES}:{ONES+3}], v[{PQ}:{PQ+3}], 0")
    a(f"s_add_u32 s{sEP}, s{sEP}, 0x9e3779b9")
    a(f"v_mfma_f32_16x16x32_bf16 v[{C}:{C+3}], v[{ONES}:{ONES+3}], v[{PQ+4}:{PQ+7}], v[{C}:{C+3}]")
    a(f"""
    {"" if pfk else f"s_lshl_b32 s{sTHR}, s{sW}, 2"}
    v_mov_b32 v{EP}, s{sEP}
    s_cmp_eq_u32 s{sEP}, s{sCT+1}
    s_cselect_b32 s{sT}, 4, s{sC}
    s_cmp_lg_u32 s{sT}, 0
    s_cbranch_scc1 L_c2
    s_mov_b64 exec, 1
    v_mov_b32 v{CT}, 0
    v_mov_b32 v{CT+1}, s{sEP}
    v_mov_b32 v{CT+2}, s{sCT}
    v_mov_b32 v{CT+3}, s{sCT+1}
    global_atomic_cmpswap_x2 v{cAT}, v[{CT}:{CT+3}], s[{sWS}:{sWS+1}] sc1
    s_mov_b64 exec, -1
    """)
    a.label("L_c2", flush=False)
    if pw == 4: a(f"global_load_dword v{DUM}, v{cWS}, s[{sWS}:{sWS+1}] offset:1024")
    if to == 2: a(f"s_mov_b32 exec_lo, 0\n global_load_ushort v{DUM+2}, v{cOUT}, s[{sOUT}:{sOUT+1}]\n s_mov_b32 exec_lo, -1")
    a("s_nop 1")
    for i in range(4): a(f"v_mul_f32 v{C+i}, {hex(f2u(1e-6) + (3 << 23))}, v{C+i}")
    stampc(3)
    if amp == "q": a("s_memrealtime s[76:77]")
    a.flush()
    a("s_branch L_loop")
    a.raw("L_codeend:")
    a.raw(f""".section .rodata,"a"
.p2align 6
.amdhsa_kernel {NAME}_kernel
  .amdhsa_next_free_vgpr 256
  .amdhsa_next_free_sgpr {100 if pm else 80}
  .amdhsa_accum_offset 256
  .amdhsa_group_segment_fixed_size 0
  .amdhsa_kernarg_size 56
  .amdhsa_user_sgpr_count 2
  .amdhsa_user_sgpr_kernarg_segment_ptr 1
  .amdhsa_system_sgpr_workgroup_id_x 1
.end_amdhsa_kernel""")
    return a

if __name__ == "__main__":
    out = sys.argv[1]
    kw = dict(x.split("=") for x in sys.argv[2:])
    for key in ("nt",):
        if key in kw: kw[key] = "" if kw[key] == "0" else " " + kw[key].replace("+", " ")
    a8 = kw.pop("a8", "1")
    a = gen(**kw)
    t = a.text()
    if a8 == "1": t = align8(t, "L_loop", "L_vl")
    if a8 == "2": t = align8(t)
    open(out, "w").write(t)
    print("wrote", out, "nops inserted:", a.nops)
```

```python
import sys, struct
from asmlib import Asm, interleave, align8
import amap

NAME = "standalone__linear_kernel_rfa__decode"
def f2u(x): return struct.unpack("<I", struct.pack("<f", x))[0]

def gen(nt=" nt", diag="0", al="12", N="17", el="3", K0="4", SL="11", pk="0", bp="3", pr="3", cpr="0", gr="1", amp="", pfk="1", fp="26", so="1", po="0", ev="2", pm="0", pp="0", sf="sc1", lf="sc1", pw="3", ab="12", af="", xc="1", tv="0", to="0", fb="12", fd="31", fe="256", ff="sc0", fs="", fx="1", fbt="", fl="2", fo="1", fw="1", fu="2",
        m="w4.g0.k0.i0.g1.i2.k1.i1.k2+w3.k1+k4.k3+w2.w3.w2.w5.w7.w0.w6.w1+w2"):
    ev = int(ev); pm = int(pm); pp = int(pp); sf = sf.replace('+', ' '); lf = lf.replace('+', ' '); pw = int(pw); ab = int(ab); xc = int(xc) and ab > 1; tv = int(tv); fb = int(fb); fd = int(fd); fl = int(fl); fo = int(fo); fw = int(fw); fu = int(fu); assert not fu or fl == 2 and int(fe); assert fl < 2 or (fd <= 31 and int(N) <= 17); assert xc or not fl; fx = int(fx) if fb else 0; fbt = sum(2 * int(x) << 8 * i for i, x in enumerate(fbt.split('.'))) if fbt else 0; ff = ff.replace('+', ' ').replace('-', ''); fs = fs.replace('+', ' '); to = int(to); af = af.replace('+', ' ')
    if not fb: fl = fu = 0; N = '16' if N == '17' else N
    cols = amap.parse(m); amap.check(cols); PV = amap.derived(cols)
    P = (lambda n: "s%d" % (76 + amap.ORDER.index(n))) if pm else (lambda n: hex(PV[n]))
    WF = {(amap.xor(cols[10:18], w) ^ cols[18]) & PV["F"] for w in range(256)}
    bias = 4096 if pm or any(amap.xor(cols[:4], g + 4 * i) ^ x < 1024 * i for g in range(4) for i in range(4) for x in WF) else 0
    wf = pm or WF != {0}
    so = int(so); po = int(po)
    pfk = int(pfk); fp = int(fp)
    gr = int(gr)
    diag = int(diag); N = int(N); el = int(el); K0 = int(K0); SL = int(SL); pk = int(pk); bp = int(bp); cpr = int(cpr)
    a = Asm()
    OMB = 131072; LND = 147712; PRG = LND + 256; RED = 151552; WB = RED + 4096 + 256
    LDS = WB + 2048
    EPOCH = 0x80000; STEP = 32768
    SK, SV, SO, SQ = 4, 8, 12, 16
    sOUT, sWS = 20, 24
    sW, sHEAD, sPART, sT, sT2, sX, sBUD = 26, 27, 28, 29, 30, 31, 32
    sL, sKO, sM, sC0, sJ, sTAB, sWB, sSH = 33, 34, 36, 49, 37, 38, 40, 41
    VK = [176, 177, 178, 179]; VV = [5, 6, 17, 18]; vLN = 8; vPA = 9; vT = 10; vP = 11; vTA = 12; vEL = 15; v64 = 16; vTB = 20
    sC, sXR, sTHR, sMASK, sSCALE, sL2E, sEP = 33, 34, 35, 36, 38, 40, 42
    sMS = 44; sM3 = 46; sDG = 48; sP = 56; sVT = 57; sVL = 58
    sCT = 62
    RK = [8, 9, 10, 11]; TV = 12; cWW = 14; cWA = 15; cPA = 16
    NH = 20; LANE = 21; cLN = 1; cPR = 2; cW = 4; EP = 151; DENR = 150; cRD = 5; cWS = 6; cOUT = 22; cAT = 161
    ONES = 24; C = 28; PQ = 32; WPK = 40; WD = 44; SQD = 52; SQA = 60
    KR = 64; PR = 96; PH = 128; T = 144; ACC = 152; AC1 = 156; DUM = 160; DG = 164; DEN = 168
    CT = 180; GA = 186; OM = 192; GB = 172
    sRAW = 72
    px, py = amap.partbits(cols)
    partc = "" if pm else f"s_bfe_u32 s{sPART}, s2, {hex(0x20000 + px)}" if py == px + 1 else f"s_bfe_u32 s{sPART}, s2, {hex(0x10000 + py)}\n s_bitcmp1_b32 s2, {px}\n s_addc_u32 s{sPART}, s{sPART}, s{sPART}"
    def stampc(i):
        if diag:
            a(f"s_memrealtime s[{sRAW}:{sRAW+1}]")
            a("s_waitcnt lgkmcnt(0)")
            a(f"v_writelane_b32 v{DG}, s{sRAW}, {i}")
    def stampm():
        if diag:
            a(f"{'s_memtime' if diag == 2 else 's_memrealtime'} s[{sRAW}:{sRAW+1}]")
            a("s_waitcnt lgkmcnt(0)")
            a(f"v_writelane_b32 v{DG}, s{sRAW}, m0")
            a("s_add_u32 m0, m0, 1")
    npoll = [0]
    def poll(adr, thr, reg):
        l = "L_poll%d" % npoll[0]; npoll[0] += 1
        a.label(l, flush=False)
        a(f"""
        ds_read_b32 v{reg}, v{adr}
        s_sub_u32 s{sBUD}, s{sBUD}, 1
        s_cbranch_scc1 L_end
        s_waitcnt lgkmcnt(0)
        v_cmp_gt_u32 vcc, {thr}, v{reg}
        s_cbranch_vccnz {l}
        """)

    hdr = open("cdna_kernels/%s.s.ref" % NAME).read().split("; Override launch")[0]
    a.raw(hdr.rstrip())
    a.raw("; @launch grid=(256,1,1) block=(320,1,1) lds=%d" % LDS)
    a.raw('.amdgcn_target "amdgcn-amd-amdhsa--gfx950"\n.text\n.globl %s_kernel\n.p2align %s\n.p2align 8\n.type %s_kernel,@function' % (NAME, al, NAME))
    a.label(NAME + "_kernel")
    if diag or amp: a("s_memrealtime s[74:75]")
    a(f"""
    s_load_dwordx2 s[{SK}:{SK+1}], s[0:1], 8
    s_load_dwordx2 s[{SO}:{SO+1}], s[0:1], 24
    s_load_dwordx2 s[{SQ}:{SQ+1}], s[0:1], 0
    """)
    if pm: a("s_load_dwordx16 s[76:91], s[0:1], 56\n s_load_dwordx8 s[92:99], s[0:1], 120")
    a("s_getpc_b64 s[60:61]")
    a.label("L_pc", flush=False)
    a(f"""
    v_subrev_u32 v7, 64, v0
    v_lshlrev_b32 v7, 7, v7
    v_cmp_gt_u32 vcc, L_codeend-L_pc-3, v7
    v_mov_b32 v{DUM+3}, s61
    s_cbranch_vccz L_nopf
    s_mov_b64 exec, vcc
    v_add_co_u32 v{DUM+2}, vcc, s60, v7
    v_addc_co_u32 v{DUM+3}, vcc, 0, v{DUM+3}, vcc
    global_load_dword v{DUM}, v[{DUM+2}:{DUM+3}], off
    s_mov_b64 exec, -1
    """)
    a.label("L_nopf", flush=False)
    a(f"""
    v_readfirstlane_b32 s{sW}, v0
    v_bfe_u32 v22, v0, 4, 2                    ; q = lane>>4
    v_and_b32 v23, 15, v0                      ; n = lane&15
    s_cmp_ge_u32 s2, 256
    s_cbranch_scc1 L_end
    v_xor_b32 v7, v22, v23
    v_lshlrev_b32 v7, 4, v7
    """)
    if pm:
        a(f"s_waitcnt lgkmcnt(0)\n s_mov_b32 s{sKO}, {P('c')}")
        for j in range(8): a(f"s_bitcmp1_b32 s2, {j}\n s_cselect_b32 s{sT}, {P('w%d' % j)}, 0\n s_xor_b32 s{sKO}, s{sKO}, s{sT}")
        a(f"s_lshr_b32 s{sPART}, s{sKO}, 26\n s_and_b32 s{sKO}, s{sKO}, 0x3ffffff")
    else:
        for n, (am, mul, rm) in enumerate(amap.plan(cols[10:18])):
            d = sT if n else sKO; src = 2
            if am != 0xff: a(f"s_and_b32 s{d}, s2, {hex(am)}"); src = d
            if mul & (mul - 1): a(f"s_mul_i32 s{d}, s{src}, {hex(mul)}")
            else: a(f"s_lshl_b32 s{d}, s{src}, {mul.bit_length() - 1}")
            if rm != 0xffffffff: a(f"s_and_b32 s{d}, s{d}, {hex(rm)}")
            if n: a(f"s_xor_b32 s{sKO}, s{sKO}, s{sT}")
        if PV["c"]: a(f"s_xor_b32 s{sKO}, s{sKO}, {P('c')}")
    a(f"""
    s_lshr_b32 s{sHEAD}, s{sKO}, 20
    s_cmp_lg_u32 s{sW}, 0
    s_cbranch_scc1 L_cons
    """)
    gm = PV["g0"] | PV["g1"] >> 1; gr_ = PV["g0"] | PV["g1"]
    if not pm and all(q * gm & gr_ == amap.xor(cols[:2], q) for q in range(4)):
        gcode = f"v_mul_u32_u24 v19, {hex(gm)}, v22\n v_and_b32 v19, {hex(gr_)}, v19"
    else:
        gcode = f"""v_bfe_i32 v19, v0, 4, 1
        v_bfe_i32 v{vTB}, v0, 5, 1
        v_and_b32 v19, {P('g0')}, v19
        v_and_b32 v{vTB}, {P('g1')}, v{vTB}
        v_xor_b32 v19, v19, v{vTB}"""
    a(f"""
    s_setprio {pr}
    {f"s_mov_b32 s{SK+2}, {hex(2**26 + bias)}" if bias else f"s_brev_b32 s{SK+2}, 32"}
    s_mov_b32 s{SK+3}, 0x20000
    s_mov_b32 m0, 0
    {gcode}
    s_mov_b32 s{sTAB}, {P('tab0')}
    s_mov_b32 s{sTAB+1}, {P('tab1')}
    """)
    if wf: a(f"s_and_b32 s{sT}, s{sKO}, {P('F')}\n v_xor_b32 v19, s{sT}, v19\n s_xor_b32 s{sKO}, s{sKO}, s{sT}")
    def rows(R, sw):
        a(f"v_or_b32 v{R[0]}, v19, v7")
        busy = PV["g0"] | PV["g1"]
        for x in WF: busy |= x
        if not bias and all(not (PV["i%d" % i] | PV["i%d" % i] - 1024 * i) & busy for i in range(1, 4)):
            for i in range(1, 4): a(f"v_xor_b32 v{R[i]}, {hex(PV['i%d' % i] - 1024 * i | sw(i))}, v{R[0]}")
            return
        for i in range(1, 4):
            if pm: a(f"v_xor_b32 v{R[i]}, {P('i%d' % i)}, v{R[0]}\n v_xor_b32 v{R[i]}, {sw(i)}, v{R[i]}")
            else: a(f"v_xor_b32 v{R[i]}, {hex(PV['i%d' % i] | sw(i))}, v{R[0]}")
        for i in range(4):
            if bias - 1024 * i: a(f"v_add_u32 v{R[i]}, {hex((bias - 1024 * i) & 0xffffffff)}, v{R[i]}")
    rows(VK, lambda i: 64 * i)
    a(f"s_mov_b32 s{sWB}, s{sKO}")
    if diag:
        a("s_waitcnt lgkmcnt(0)")
        a(f"v_mov_b32 v{DG}, 0")
        a(f"v_writelane_b32 v{DG}, s74, 0")
        stampc(1)
    a("s_waitcnt lgkmcnt(0)")
    if bias: a(f"s_sub_u32 s{SK}, s{SK}, {bias}\n s_subb_u32 s{SK+1}, s{SK+1}, 0")
    a.label("L_k0", flush=False)
    for i in range(4): a(f"buffer_load_dwordx4 v{VK[i]}, s[{SK}:{SK+3}], s{sKO} offen offset:{1024*i}{nt} lds")
    a(f"""
    s_and_b32 s{sT}, s{sTAB}, 0xfff
    s_addk_i32 m0, 4096
    s_lshl_b32 s{sT}, s{sT}, 8
    s_lshr_b64 s[{sTAB}:{sTAB+1}], s[{sTAB}:{sTAB+1}], 12
    s_xor_b32 s{sKO}, s{sKO}, s{sT}
    s_cmpk_lt_u32 m0, {3*8192}
    s_cbranch_scc1 L_k0
    s_branch L_setup
    """)
    a.label("L_cons")
    a(f"""
    v_lshl_add_u32 v{VK[0]}, v22, 8, v7
    v_xor_b32 v{VK[1]}, 64, v{VK[0]}
    v_xor_b32 v{VK[2]}, 0x80, v{VK[0]}
    v_xor_b32 v{VK[3]}, 64, v{VK[2]}
    v_and_b32 v{LANE}, 63, v0
    s_lshl_b32 s{sT}, s{sHEAD}, 8
    v_lshl_add_u32 v{KR}, v{LANE}, 2, s{sT}
    s_lshl_b32 s{sT2}, s{sW}, 6
    s_add_u32 m0, s{sT2}, {OMB - 4096}
    s_addk_i32 s{sT2}, -4096
    s_movk_i32 s{SO+2}, 16384
    s_mov_b32 s{SO+3}, 0x20000
    s_waitcnt lgkmcnt(0)
    """)
    for i in range(4): a(f"buffer_load_dwordx4 v{VK[i]}, s[{SO}:{SO+3}], s{sT2} offen offset:{1024*i} lds")
    a(f"""
    global_load_dword v{KR}, v{KR}, s[{SQ}:{SQ+1}]
    s_load_dwordx2 s[{sWS}:{sWS+1}], s[0:1], 48
    s_load_dwordx2 s[{sOUT}:{sOUT+1}], s[0:1], 32
    {f"s_setprio {cpr}" if cpr else ""}
    s_lshr_b32 s{sC}, s{sT2}, 12
    {partc}
    s_mov_b32 s{sBUD}, 0x100000
    v_lshlrev_b32 v{cLN}, 2, v{LANE}
    v_add_u32 v{cLN}, {LND}, v{cLN}
    s_lshl_b32 s{sT2}, s{sC}, 8
    v_add_u32 v{cPR}, s{sT2}, v{cLN}
    v_mov_b32 v{ACC}, 0
    ds_write_b32 v{cPR}, v{ACC} offset:256
    s_lshl_b32 s{sT2}, s{sC}, 13
    v_lshl_add_u32 v7, v23, 8, v7              ; n*256 + ((q^n)*16)
    v_add_u32 v{RK[0]}, s{sT2}, v7
    v_xor_b32 v{RK[1]}, 64, v{RK[0]}
    v_xor_b32 v{RK[2]}, 0x80, v{RK[0]}
    v_xor_b32 v{RK[3]}, 0xc0, v{RK[0]}
    v_add_u32 v{T+4}, {OMB}, v7
    v_xor_b32 v{T+5}, 64, v{T+4}
    v_xor_b32 v{T+6}, 0x80, v{T+4}
    v_xor_b32 v{T+7}, 0xc0, v{T+4}
    v_lshrrev_b32 v7, 2, v{LANE}
    v_and_b32 v{TV}, 7, v7
    v_lshlrev_b32 v{TV}, 5, v{TV}
    v_lshl_add_u32 v{TV}, v7, 8, v{TV}
    v_and_b32 v7, 3, v{LANE}
    v_lshl_add_u32 v{TV}, v7, 3, v{TV}
    s_add_u32 s{sT2}, s{sT}, {EPOCH}
    v_mov_b32 v{cAT}, s{sT2}
    s_add_u32 s{sX}, s{sT2}, 128
    s_waitcnt lgkmcnt(0)
    s_load_dword s{sEP}, s[{sWS}:{sWS+1}], s{sX}
    s_load_dwordx2 s[{sCT}:{sCT+1}], s[{sWS}:{sWS+1}], s{sT2}
    """)
    if diag:
        a(f"v_mov_b32 v{DG}, 0")
        a(f"v_writelane_b32 v{DG}, s74, 0")
        a("s_mov_b32 m0, 8")
    a(f"""
    v_lshlrev_b32 v{PH+3}, 4, v22
    s_lshl_b32 s{sT2}, s{sC}, 8
    v_lshl_add_u32 v{cRD}, v23, 4, s{sT2}       ; 256c + 16n
    v_add_u32 v7, 1, v22
    v_xor_b32 v7, s{sPART}, v7
    s_lshl2_add_u32 s{sT2}, s{sC}, -4
    s_lshl4_add_u32 s{sT}, s{sT2}, s{sT}
    v_lshl_add_u32 v{cOUT}, v{LANE}, 1, s{sT}
    s_lshl_b32 s{sT}, s{sHEAD}, {SL+2}
    v_lshl_add_u32 v{GA}, v7, {SL}, s{sT}
    v_add_u32 v{GA}, v{GA}, v{cRD}
    {f"v_or_b32 v{GA}, 0x400, v{GA}" if ab > 1 else ""}
    s_lshl_b32 s{sT}, s{sC}, 6
    v_xor_b32 v{TV}, s{sT}, v{TV}
    v_xor_b32 v{TV+1}, 32, v{TV}
    v_add_u32 v{cWA}, {WB - 256}, v{PH+3}
    v_add_u32 v{cWW}, s{sT}, v{cWA}
    s_lshl_b32 s{sT}, s{sC}, 10
    s_add_u32 s{sT}, s{sT}, {RED}
    v_add_u32 v{PH+3}, s{sT}, v{PH+3}
    v_lshl_add_u32 v{PH+2}, v{LANE}, 2, s{sT}
    s_lshl2_add_u32 s{sT}, s{sHEAD}, s{sPART}
    s_lshl_b32 s{sT}, s{sT}, {SL}
    v_add_u32 v{cWS}, s{sT}, v{cRD}
    s_mov_b32 s{sMASK}, 0xffff0000
    s_mov_b32 s{sSCALE}, {hex(f2u(128.0 ** -0.25))}
    s_mov_b32 s{sL2E}, 0x3fb8aa3b
    v_mov_b32 v{NH}, -0.5
    s_mov_b32 s{sMS}, 0x00010001
    s_mov_b32 s{sMS+1}, s{sMS}
    s_mov_b32 s{sXR}, 0x8000
    """)
    if gr:
        a(f"s_mov_b32 s{sDG}, 0x00100001\n s_mov_b32 s{sDG+1}, 0x10000100")
        for r in range(1, 4): a(f"s_lshl_b64 s[{sDG+2*r}:{sDG+2*r+1}], s[{sDG}:{sDG+1}], {r}")
    if pk: a(f"s_mov_b32 s{sSCALE+1}, s{sSCALE}\n s_mov_b32 s{sL2E+1}, s{sL2E}")
    a(f"v_mov_b32 v{ONES}, 0x3f803f80")
    for i in range(1, 4): a(f"v_mov_b32 v{ONES+i}, v{ONES}")
    for i in range(1, 4): a(f"v_mov_b32 v{ACC+i}, 0")
    for i in range(4): a(f"v_mov_b32 v{AC1+i}, 0")
    for i in range(4): a(f"v_mov_b32 v{DEN+i}, 0")
    a(f"s_movk_i32 s{sVT}, {36*256}\n s_movk_i32 s{sVL}, {(36+4*ev if ev else 64)*256}")
    stampc(1)
    a(f"""
    {f"s_lshl_b32 s{sTHR}, s{sW}, 2" if pfk else f"s_mov_b32 s{sTHR}, 0"}
    s_waitcnt vmcnt(0)
    v_lshlrev_b32 v{T}, 16, v{KR}
    v_and_b32 v{T+1}, s{sMASK}, v{KR}
    v_mul_f32 v{T}, s{sSCALE}, v{T}
    v_mul_f32 v{T+1}, s{sSCALE}, v{T+1}
    v_cvt_pk_bf16_f32 v{T}, v{T}, v{T+1}
    s_barrier
    ds_write_b32 v{PH+2}, v{T}
    s_waitcnt lgkmcnt(0)
    """)
    for jj in range(4): a(f"ds_read_b128 v[{KR+4*jj}:{KR+4*jj+3}], v{PH+3} offset:{64*jj}")
    for j in range(4):
        for t in range(4):
            r = OM + 16 * t + 4 * j
            a(f"ds_read_b128 v[{r}:{r+3}], v{T+4+j} offset:{4096*t}")
    stampc(2)
    for j in range(4):
        a(f"s_waitcnt lgkmcnt({12-4*j})")
        k = KR + 4 * j
        a(f"v_mfma_f32_16x16x32_bf16 v[{SQD}:{SQD+3}], v[{k}:{k+3}], v[{k}:{k+3}], " + (f"v[{SQD}:{SQD+3}]" if j else "0"))
        for t in range(4):
            d = PR + 4 * t; om = OM + 16 * t + 4 * j
            a(f"v_mfma_f32_16x16x32_bf16 v[{d}:{d+3}], v[{om}:{om+3}], v[{k}:{k+3}], " + (f"v[{d}:{d+3}]" if j else "0"))
    a(f"v_mul_f32 v{SQD}, -0.5, v{SQD}")
    a.flush()
    a("s_branch L_phi0")
    a.label("L_setup")
    a(f"""
    s_load_dwordx2 s[{SV}:{SV+1}], s[0:1], 16
    s_load_dwordx2 s[{sWS}:{sWS+1}], s[0:1], 48
    {"s_load_dwordx2 s[44:45], s[0:1], 40" if fb else ""}
    s_mov_b32 s{sBUD}, 0x100000
    s_movk_i32 s{sL}, 256
    s_movk_i32 s{sM}, {3*8192}
    v_lshlrev_b32 v7, 1, v22
    v_xor_b32 v7, v7, v23
    v_lshlrev_b32 v7, 4, v7
    v_mov_b32 v{vTB}, s{sWB}
    """)
    for j in range(5): a(f"v_bfe_i32 v{vT}, v0, {j}, 1\n v_and_b32 v{vT}, {P('k%d' % j)}, v{vT}\n v_xor_b32 v{vTB}, v{vTB}, v{vT}")
    rows(VV, lambda i: 128 * (i & 1))
    xcc = f"""s_getreg_b32 s{sSH}, hwreg(HW_REG_XCC_ID, 0, 3)
    s_lshl1_add_u32 s{sSH}, s{sSH}, 16
    s_mov_b32 s{sC0}, 64
    s_bitset1_b32 s{sC0}, s{sSH}
    v_mov_b32 v{v64}, s{sC0}""" if xc else f"v_mov_b32 v{v64}, 64"
    a(f"""
    v_readlane_b32 s{sKO}, v{vTB}, 3
    s_mov_b32 s{sJ}, 3
    v_lshlrev_b32 v{vLN}, 2, v0
    v_add_u32 v{vLN}, {LND}, v{vLN}
    v_and_b32 v7, 3, v0
    v_lshl_add_u32 v{vPA}, v7, 8, v{vLN}
    s_lshl_b32 s{sT}, s{sHEAD}, 8
    s_add_u32 s{sT}, s{sT}, {EPOCH}
    v_mov_b32 v{vTA}, s{sT}
    {xcc}
    s_movk_i32 s{sC0}, 0xc0
    s_add_u32 s50, s{sT}, 128
    v_mov_b32 v{vEL}, 0
    """)
    if diag: a("s_mov_b32 s52, 8")
    if fu:
        a(f"""
        s_lshr_b32 s56, s2, 3
        s_mov_b32 s46, {128 if fu == 1 else 0}
        s_mov_b32 s47, 0x20000
        v_mov_b32 v24, 0
        v_lshlrev_b32 v25, 2, v0
        v_lshl_add_u32 v26, v0, 5, s56
        v_lshlrev_b32 v26, 2, v26
        s_waitcnt lgkmcnt(0)
        {"s_load_dword s54, s[44:45], 0" if fu > 1 else ""}
        """)
        for i in range(5): a(f"buffer_load_dword v27, v25, s[44:47], 0 offen offset:128")
    elif fb:
        a(f"""
        s_lshr_b32 s46, s2, 3
        v_mov_b32 v24, 0
        v_and_b32 v25, 31, v0
        v_lshlrev_b32 v25, 2, v25
        v_lshlrev_b32_e64 v26, 2, s46
        v_writelane_b32 v24, 1, s46
        {f"s_mov_b32 s54, {hex(fbt & 0xffffffff)}" if fbt else ""}
        {f"s_mov_b32 s55, {hex(fbt >> 32)}" if fbt else ""}
        {f"s_lshl_b32 s48, s2, 3" if fbt else ""}
        {f"s_lshr_b64 s[54:55], s[54:55], s48" if fbt else ""}
        {f"s_and_b32 s48, s54, 0xff" if fbt else ""}
        {f"s_and_b32 s47, s2, 7" if fx & 4 else ""}
        {f"s_lshl_b32 s47, s47, 8" if fx & 4 else ""}
        {f"v_add_u32 v25, s47, v25" if fx & 4 else ""}
        {f"v_add_u32 v26, s47, v26" if fx & 4 else ""}
        s_waitcnt lgkmcnt(0)
        global_load_dword v27, v25, s[44:45]
        global_load_dword v27, v25, s[44:45]
        global_load_dword v27, v25, s[44:45]
        global_load_dword v27, v25, s[44:45]
        {"global_load_dword v27, v25, s[44:45]" if fl == 2 else ""}
        """)
    a.label("L_k")
    a(f"""
    s_mov_b32 m0, s{sM}
    s_xor_b32 s{sT}, s{sKO}, {P('ci2')}
    s_add_u32 s{sJ}, s{sJ}, 1
    """)
    if fu:
        a(f"""
        v_readlane_b32 s57, v24, s56
        s_sub_u32 s55, s{sL}, 256
        s_addk_i32 s57, {fe}
        v_cmp_le_u32 vcc, s57, v24
        s_waitcnt vmcnt({fd})
        s_bcnt1_i32_b32 s57, vcc_lo
        s_cmp_ge_u32 s57, {fb}
        s_cbranch_scc1 L_deep
        s_mov_b32 s55, s{sL}
        s_waitcnt vmcnt({N+4})
        """)
        a.label("L_deep", flush=False)
    elif fb:
        a(f"""
        v_readlane_b32 s47, v24, s46
        {f"s_sub_u32 s55, s{sL}, 256" if fl == 2 else ""}
        s_add_u32 s47, s47, {fe}
        v_cmp_le_u32 vcc, s47, v24
        s_bcnt1_i32_b64 s47, vcc
        s_cmp_ge_u32 s47, {'s48' if fbt else 2*fb}
        s_waitcnt vmcnt({fd})
        s_cbranch_scc1 L_deep
        {f"s_mov_b32 s55, s{sL}" if fl == 2 else ""}
        s_waitcnt vmcnt({N+4})
        """)
        a.label("L_deep", flush=False)
    else: a(f"s_waitcnt vmcnt({N})")
    for i in range(4): a(f"buffer_load_dwordx4 v{VK[i]}, s[{SK}:{SK+3}], s{sKO} offen offset:{1024*i}{nt} lds")
    a(f"s_addk_i32 m0, 4096")
    a(f"s_addk_i32 s{sM}, 8192")
    for i in range(4): a(f"buffer_load_dwordx4 v{VK[i]}, s[{SK}:{SK+3}], s{sT} offen offset:{1024*i}{nt} lds")
    if fu: a(f"v_mov_b32 v28, s{55 if fo else sL}\n buffer_store_dword v28, v26, s[44:47], 0 offen\n buffer_load_dword v24, v25, s[44:47], 0 offen {ff}")
    elif fb: a(f"v_mov_b32 v28, s{55 if fo else sL}\n s_mov_b64 exec, 1\n {'' if fl == 2 else f's_waitcnt vmcnt({28 + 10 * fl})'}\n {'global_load_dword v27, v26, s[44:45]' if fx & 2 else 'global_store_dword v26, v28, s[44:45] ' + fs}\n s_mov_b64 exec, -1\n global_load_dword v24, v25, s[44:45] {ff}")
    elif N > 16: a("s_waitcnt vmcnt(24)")
    a(f"""
    {f"v_bfe_u32 v{vT}, v{vEL}, s{sSH}, 2" if xc else f"v_mov_b32 v{vT}, s{sL}"}
    v_readlane_b32 s{sKO}, v{vTB}, s{sJ}
    {f"s_sub_u32 s55, s{sL}, 256" if fl == 1 else ""}
    {f"v_or_b32 v{vT}, s{55 if fl else sL}, v{vT}" if xc else ""}
    s_bitset0_b32 s{sM}, 17
    v_and_or_b32 v{vT}, v{vEL}, s{sC0}, v{vT}
    s_addk_i32 s{sL}, 256
    s_sub_u32 s{sT2}, s{sL}, {13*256}
    ds_write_b32 v{vLN}, v{vT}
    s_cbranch_scc0 L_poll0
    s_cmpk_lg_u32 s{sL}, {(K0-1)*256}
    s_cbranch_scc1 L_k
    s_waitcnt lgkmcnt(0)
    {f"s_load_dword s54, s[{SV}:{SV+1}], s{sWB}" if tv & 1 else ""}
    {"s_movk_i32 s46, 128" if fu == 2 else ""}
    {f"s_mov_b64 exec, 1" if tv & 2 else ""}
    {f"global_load_dword v{vP+2}, v{vTB}, s[{SV}:{SV+1}] nt" if tv & 2 else ""}
    {f"s_mov_b64 exec, -1" if tv & 2 else ""}
    s_barrier
    s_branch L_k
    """)
    assert npoll[0] == 0
    a.flush()
    l = "L_poll0"; npoll[0] = 1
    a.label(l, flush=False)
    a(f"""
    ds_read_b32 v{vP}, v{vPA} offset:256
    s_sub_u32 s{sBUD}, s{sBUD}, 1
    s_cbranch_scc1 L_end
    {"s_movk_i32 s46, 128" if fu == 3 else ""}
    s_bitcmp1_b32 s{sJ}, 5
    s_waitcnt lgkmcnt(0)
    v_cmp_gt_u32 vcc, s{sT2}, v{vP}
    s_cbranch_vccnz {l}
    """)
    if diag:
        a(f"""
        s_cselect_b32 s53, 1, 0
        s_memrealtime s[{sRAW}:{sRAW+1}]
        s_mov_b32 m0, s52
        s_add_u32 s52, s52, 1
        s_waitcnt lgkmcnt(0)
        v_writelane_b32 v{DG}, s{sRAW}, m0
        s_cmp_eq_u32 s53, 1
        """)
    a(f"""
    s_cbranch_scc1 L_flip
    s_cmpk_lg_u32 s{sL}, {(64-el-2)*256}
    s_cbranch_scc1 L_k
    s_mov_b64 exec, 1
    {"s_waitcnt vmcnt(31)" if fl and fw else ""}
    global_atomic_add v{vEL}, v{vTA}, v{v64}, s[{sWS}:{sWS+1}] sc0 sc1
    s_mov_b64 exec, -1
    s_branch L_k
    """)
    a.label("L_flip")
    a(f"s_mov_b32 s{sJ}, 0")
    if bias: a(f"s_sub_u32 s{SK}, s{SV}, {bias}\n s_subb_u32 s{SK+1}, s{SV+1}, 0")
    else: a(f"s_mov_b64 s[{SK}:{SK+1}], s[{SV}:{SV+1}]")
    for i in range(4): a(f"v_mov_b32 v{VK[i]}, v{VV[i]}")
    a(f"""
    s_bitcmp1_b32 s{sL}, 13
    s_cbranch_scc0 L_k
    """)
    stampc(4)
    def lfin():
        if diag:
            stampc(5)
            a(f"s_sub_u32 s{sT}, 0x100000, s{sBUD}")
            a(f"v_writelane_b32 v{DG}, s{sT}, 6")
            a(f"s_or_b32 s{sX}, s{sX}, 32")
            a(f"v_writelane_b32 v{DG}, s{sX}, 2")
            a(f"v_mov_b32 v{LANE}, v0")
            a.flush()
            a("s_branch L_fin")
        else:
            a("s_endpgm")
    if fl:
        a(f"""
        s_waitcnt vmcnt(30)
        v_bfe_u32 v{vT}, v{vEL}, s{sSH}, 2
        v_or_b32 v{vT}, {61*256}, v{vT}
        v_and_or_b32 v{vT}, v{vEL}, s{sC0}, v{vT}
        ds_write_b32 v{vLN}, v{vT}
        s_waitcnt lgkmcnt(0)
        """)
    a(f"""
    v_readfirstlane_b32 s{sX}, v{vEL}
    s_mov_b32 s51, 0x9e3779b9
    {f"s_and_b32 s{sX}, s{sX}, s{sC0}" if xc else ""}
    s_cmp_eq_u32 s{sX}, s{sC0}
    s_barrier
    s_cbranch_scc0 L_lnw
    s_atomic_add s51, s[{sWS}:{sWS+1}], s50
    """)
    a.label("L_lnw", flush=False)
    for p in range(2, -1, -1):
        a(f"s_waitcnt vmcnt({(10 if fb else 8)*p + (2 if fx & 1 else 0)})")
        a("s_barrier")
    lfin()
    def putw(mid=""):
        for i in range(4): a(f"v_cvt_pk_bf16_f32 v{WPK+i}, v{WD+2*i}, v{WD+2*i+1}")
        if mid: a(mid)
        a(f"""
        s_mov_b64 exec, s[{sMS}:{sMS+1}]
        ds_write_b128 v{cWW}, v[{WPK}:{WPK+3}]
        s_mov_b64 exec, -1
        """)
    def kreads():
        for tl in range(2):
            for j in range(4): a(f"ds_read_b128 v[{KR+16*tl+4*j}:{KR+16*tl+4*j+3}], v{RK[j]} offset:{4096*tl}")
    if pfk:
        a.label("L_rp")
        a(f"""
        ds_read_b32 v{cW}, v{cLN}
        s_sub_u32 s{sBUD}, s{sBUD}, 1
        s_cbranch_scc0 L_pk
        s_endpgm
        """)
    a.label("L_loop")
    if pfk: stampm()
    else:
        poll(cLN, f"s{sTHR}", cW)
        stampm()
        kreads()
        a(f"""
        s_add_u32 s{sT}, s{sTHR}, 768
        s_min_u32 s{sT}, s{sT}, 8192
        """)
        putw()
        a(f"v_mov_b32 v{cW}, s{sT}")
        for j in range(4): a(f"v_xor_b32 v{RK[j]}, s{sXR}, v{RK[j]}")
        a(f"""
        v_add_u32 v{cWW}, 256, v{cWW}
        s_xor_b32 s{sXR}, s{sXR}, 0x10000
        s_waitcnt lgkmcnt(1)
        ds_write_b32 v{cPR}, v{cW} offset:256
        """)
    def scale(tl, j):
        o = []
        for r0 in range(0, 4, so):
            st = [[], [], []]
            for r in range(r0, r0 + so):
                x = KR + 16 * tl + 4 * j + r
                t0 = T + 2 * (r & 1); t1 = t0 + 1
                st[0] += [f"v_lshlrev_b32 v{t0}, 16, v{x}", f"v_and_b32 v{t1}, s{sMASK}, v{x}"]
                if pk & 1: st[1] += [f"v_pk_mul_f32 v[{t0}:{t1}], v[{t0}:{t1}], s[{sSCALE}:{sSCALE+1}]"]
                else: st[1] += [f"v_mul_f32 v{t0}, s{sSCALE}, v{t0}", f"v_mul_f32 v{t1}, s{sSCALE}, v{t1}"]
                st[2] += [f"v_cvt_pk_bf16_f32 v{x}, v{t0}, v{t1}"]
            o += st[0] + st[1] + st[2]
        for r in range(0 if gr else 4):
            x = KR + 16 * tl + 4 * j + r
            acc = SQA + 2 * tl + (r & 1)
            if j == 0 and r < 2: o.append(f"v_dot2_f32_bf16 v{acc}, v{x}, v{x}, 0")
            else: o.append(f"v_dot2_f32_bf16 v{acc}, v{x}, v{x}, v{acc}")
        return o
    def projm(tl, j):
        o = []
        if gr:
            d = SQD + 4 * tl; k = KR + 16 * tl + 4 * j
            o.append(f"v_mfma_f32_16x16x32_bf16 v[{d}:{d+3}], v[{k}:{k+3}], v[{k}:{k+3}], " + (f"v[{d}:{d+3}]" if j else "0"))
        for t in range(4):
            d = PR + 16 * tl + 4 * t
            om = OM + 16 * t + 4 * j
            k = KR + 16 * tl + 4 * j
            c = "0" if j == 0 else f"v[{d}:{d+3}]"
            o.append(f"v_mfma_f32_16x16x32_bf16 v[{d}:{d+3}], v[{om}:{om+3}], v[{k}:{k+3}], {c}")
        return o
    def sqsum(tl):
        acc = SQA + 2 * tl; d = SQD + 4 * tl
        if gr: return [f"v_cndmask_b32_e64 v{acc}, {f'v{acc}' if r else 0}, v{d+r}, s[{sDG+2*r}:{sDG+2*r+1}]" for r in range(4)]
        return [f"v_add_f32 v{acc}, v{acc}, v{acc+1}"]
    def sqm(tl):
        acc = SQA + 2 * tl; d = SQD + 4 * tl
        return [f"v_mfma_f32_16x16x4_f32 v[{d}:{d+3}], v{NH}, v{acc}, 0"]
    def phi(tl):
        d = SQD + 4 * tl
        o = [f"v_cvt_pk_bf16_f32 v{d}, 0, v{d}"]
        for t in range(4):
            p = [PR + 16 * tl + 4 * t + r for r in range(4)]
            for x in p: o.append(f"v_cvt_pk_bf16_f32 v{x}, 0, v{x}")
            if pk & 2:
                for x in p[::2]: o.append(f"v_pk_add_f32 v[{x}:{x+1}], v[{x}:{x+1}], v[{d}:{d+1}] op_sel_hi:[1,0]")
            else:
                for x in p: o.append(f"v_add_f32 v{x}, v{d}, v{x}")
            for x in p: o.append(f"v_cvt_pk_bf16_f32 v{x}, 0, v{x}")
            if pk & 2:
                for x in p[::2]: o.append(f"v_pk_mul_f32 v[{x}:{x+1}], v[{x}:{x+1}], s[{sL2E}:{sL2E+1}]")
            else:
                for x in p: o.append(f"v_mul_f32 v{x}, s{sL2E}, v{x}")
            for x in p: o.append(f"v_exp_f32 v{x}, v{x}")
            h = PH + 8 * tl + 2 * t
            o.append(f"v_cvt_pk_bf16_f32 v{h}, v{p[0]}, v{p[1]}")
            o.append(f"v_cvt_pk_bf16_f32 v{h+1}, v{p[2]}, v{p[3]}")
        if po:
            n = (len(o) - 1) // 4
            for t in range(3):
                e = 1 + n * (t + 1)
                o[e-2:e+4] = o[e:e+4] + o[e-2:e]
        return o
    def wm(tl):
        d = WD + 4 * tl; h = PH + 8 * tl
        return [f"v_mfma_f32_16x16x32_bf16 v[{d}:{d+3}], v[{h}:{h+3}], v[{PQ}:{PQ+3}], v[{C}:{C+3}]",
                f"v_mfma_f32_16x16x32_bf16 v[{d}:{d+3}], v[{h+4}:{h+7}], v[{PQ+4}:{PQ+7}], v[{d}:{d+3}]"]
    steps = [(tl, j) for tl in range(2) for j in range(4)]
    body = scale(0, 0); n0 = len(body)
    for i in range(1, 8):
        tl, j = steps[i]
        side = projm(*steps[i - 1])
        main = scale(tl, j)
        if gr:
            if steps[i - 1] == (0, 3): main = main + sqsum(0)
            if steps[i - 1] == (1, 0): side = side + sqm(0)
            body += interleave(main, side, 3 if pk & 1 or len(side) > 5 else 4, lead=2)
            continue
        if steps[i - 1] == (0, 3):
            main = main[:4] + sqsum(0) + main[4:]
            side = side + sqm(0)
        body += interleave(main, side, 4 if pk & 1 else 5, lead=2)
    ph0 = phi(0)
    ph0 = ph0[:14] + sqsum(1) + ph0[14:] if gr else ph0[:4] + sqsum(1) + ph0[4:]
    for n, x in enumerate(body):
        if pfk and n == n0: putw(x)
        else: a(x)
        if pfk and n == n0 + 1: a(f"v_add_u32 v{cWW}, 256, v{cWW}")
    a.label("L_phi0", flush=False)
    ph0 = interleave(ph0, projm(1, 3) + sqm(1), 4, lead=2 if gr else 1)
    if pfk:
        a(f"ds_read_b32 v{cW}, v{cLN}")
        f4 = next(i for i, x in enumerate(ph0) if x.startswith(("v_add", "v_exp")))
        for x in ph0[:f4] + [f"s_cmpk_gt_u32 s{sTHR}, 8192"] + ph0[f4:fp]: a(x)
        a("s_cbranch_scc1 L_nf")
        a.label("L_pk", flush=False)
        a(f"""
        s_waitcnt lgkmcnt(0)
        v_cmp_gt_u32 vcc, s{sTHR}, v{cW}
        s_cbranch_vccnz L_rp
        """)
        kreads()
        for j in range(4): a(f"v_xor_b32 v{RK[j]}, s{sXR}, v{RK[j]}")
        a(f"""
        s_xor_b32 s{sXR}, s{sXR}, 0x10000
        s_add_u32 s{sP}, s{sTHR}, 768
        s_min_u32 s{sP}, s{sP}, 8192
        """)
        a.hist = a.hist[:-18]
        a.label("L_nf", flush=False)
        a(f"s_addk_i32 s{sTHR}, 1024")
        for x in ph0[fp:]: a(x)
        a(f"""
        s_cmpk_le_u32 s{sTHR}, 2048
        s_waitcnt vmcnt(0) lgkmcnt(0)
        v_mov_b32 v{cW}, s{sP}
        ds_write_b32 v{cPR}, v{cW} offset:256
        """)
    else:
        for x in ph0: a(x)
        a(f"s_cmp_eq_u32 s{sTHR}, 0")
    a.flush()
    a("s_cbranch_scc1 L_qpost")
    ph1 = interleave(phi(1), wm(0), 6, lead=3)
    if pfk: ph1 = ph1 + [wm(1)[0], f"s_cmp_le_u32 s{sTHR}, {8192 if ev else 9216}"]
    for x in ph1: a(x)
    if pfk:
        a(wm(1)[1])
    else:
        a(f"s_addk_i32 s{sTHR}, 1024")
        a(wm(1)[0])
        a(f"s_cmpk_le_u32 s{sTHR}, 8192")
        a(wm(1)[1])
        a("s_waitcnt vmcnt(0)")
    a("s_cbranch_scc1 L_loop")
    putw()
    if pw == 3: a(f"global_load_dword v{DUM}, v{cWS}, s[{sWS}:{sWS+1}] offset:1024")
    if to == 1: a(f"s_mov_b32 exec_lo, 0\n global_load_ushort v{DUM+2}, v{cOUT}, s[{sOUT}:{sOUT+1}]\n s_mov_b32 exec_lo, -1")
    stampm()
    if amp == "d": a("s_memrealtime s[76:77]")
    AR = PH
    def areads():
        for u in range(4): a(f"ds_read_b128 v[{AR+4*u}:{AR+4*u+3}], v{cWA} offset:{256+64*u}")
    def denm(u): a(f"v_mfma_f32_16x16x32_bf16 v[{DEN}:{DEN+3}], v[{AR+4*u}:{AR+4*u+3}], v[{ONES}:{ONES+3}], v[{DEN}:{DEN+3}]")
    def trs(j):
        r = PR + 8 * j
        for h in range(2):
            a(f"ds_read_b64_tr_b16 v[{r+4*h}:{r+4*h+1}], v{TV+h} offset:{8192*j}")
            a(f"ds_read_b64_tr_b16 v[{r+4*h+2}:{r+4*h+3}], v{TV+h} offset:{8192*j+4096}")
    def mms(j, left=0):
        r = PR + 8 * j
        for h in range(2):
            d = (ACC, AC1)[h]
            a(f"s_waitcnt lgkmcnt({left+2-2*h})")
            a(f"v_mfma_f32_16x16x32_bf16 v[{d}:{d+3}], v[{AR+4*j}:{AR+4*j+3}], v[{r+4*h}:{r+4*h+3}], v[{d}:{d+3}]")
    a.label("L_vl", flush=False)
    poll(cLN, f"s{sVT}", cW)
    stampm()
    areads()
    for j in range(3): trs(j)
    a(f"""
    v_mov_b32 v{cW}, s{sVT}
    s_mov_b32 s{sP}, s{sVT}
    v_add_u32 v{cWA}, 256, v{cWA}
    s_addk_i32 s{sVT}, 1024
    s_waitcnt lgkmcnt(12)
    """)
    trs(3)
    for u in range(4): denm(u)
    a(f"""
    v_xor_b32 v{TV}, s{sXR}, v{TV}
    v_xor_b32 v{TV+1}, s{sXR}, v{TV+1}
    s_xor_b32 s{sXR}, s{sXR}, 0x10000
    s_cmp_lt_u32 s{sVT}, s{sVL}
    """)
    for j in range(4): mms(j, 12 - 4 * j)
    a(f"ds_write_b32 v{cPR}, v{cW} offset:256")
    a("s_cbranch_scc1 L_vl")
    if ev:
        a(f"""
        s_movk_i32 s{sVL}, {64*256}
        s_cmpk_le_u32 s{sTHR}, 9216
        s_cbranch_scc1 L_loop
        """)
    areads()
    a(f"""
    v_mov_b32 v{GB}, 0
    v_mov_b32 v{GB+1}, v{EP}
    v_mov_b32 v{GB+2}, 0
    v_mov_b32 v{GB+3}, 0
    s_mov_b32 s{sM3}, 0
    {f"s_mov_b32 s{sVL}, {ab}" if ab > 1 and not xc else ""}
    s_mov_b32 s{sM3+1}, s{sMASK}
    s_waitcnt lgkmcnt(0)
    """)
    for u in range(4): denm(u)
    if pw in (1, 2):
        a("s_mov_b64 exec, 0xffff")
        if pw == 1: a(f"global_load_dword v{KR+8}, v{cWS}, s[{sWS}:{sWS+1}] {lf}")
        else: a(f"v_not_b32 v{KR+9}, v{EP}\n global_store_dwordx4 v{cWS}, v[{KR+8}:{KR+11}], s[{sWS}:{sWS+1}] {sf}")
        a("s_mov_b64 exec, -1")
    stampc(58)
    a("s_barrier")
    stampc(59)
    ng = [0]
    def gload(B):
        a(f"s_mov_b32 exec_hi, 0xffff")
        a(f"global_load_dwordx4 v[{B}:{B+3}], v{GA}, s[{sWS}:{sWS+1}] {lf}")
        a(f"s_mov_b64 exec, -1")
    def wload():
        l = "L_nb%d" % ng[0]; ng[0] += 1
        a(f"s_cbranch_scc0 {l}")
        gload(KR if pp else GB)
        a.label(l, flush=False)
    a(f"ds_read_b32 v{cW}, v{cLN}")
    trs(0)
    a(f"""
    v_mov_b32 v{DENR}, v{DEN}
    v_add_f32 v{T}, {hex(f2u(1e-6))}, v{DEN}
    s_waitcnt lgkmcnt(4)
    v_readfirstlane_b32 s{sX}, v{cW}
    {f"s_andn2_b32 s{sT}, 3, s{sX}" if xc else ""}
    {f"s_cselect_b32 s{sT}, 0x400, 0" if xc else ""}
    {f"s_cselect_b32 s{sVL}, -1, {ab}" if xc else ""}
    {f"v_xor_b32 v{GA}, s{sT}, v{GA}" if xc else ""}
    s_and_b32 s{sT2}, s{sX}, 0xc0
    s_cmpk_eq_u32 s{sT2}, 0xc0
    """)
    if bp == 0: wload()
    mms(0)
    a("s_barrier")
    trs(1)
    if bp == 1: wload()
    mms(1)
    a("s_barrier")
    if bp == 2: wload()
    trs(2)
    mms(2)
    if bp == 3: wload()
    stampc(61)
    if amp == "e": a("s_memrealtime s[76:77]")
    a("s_barrier")
    trs(3)
    a("s_cbranch_scc1 L_win")
    mms(3)
    a(f"s_mov_b64 exec, 0xffff")
    a(f"v_mov_b32 v{ACC+1}, v{AC1}")
    if ab > 1: a(f"global_store_dwordx4 v{cWS}, v[{DENR}:{DENR+3}], s[{sWS}:{sWS+1}] offset:1024 {af}")
    a(f"global_store_dwordx4 v{cWS}, v[{DENR}:{DENR+3}], s[{sWS}:{sWS+1}] {sf}")
    if ab == 1: a(f"global_store_dwordx4 v{cWS}, v[{DENR}:{DENR+3}], s[{sWS}:{sWS+1}] {af}")
    if diag: a("s_mov_b64 exec, -1")
    a("s_branch L_fin" if diag else "s_branch L_amp" if amp else "s_endpgm")
    if pp:
        def chk(B):
            a(f"""
            s_waitcnt vmcnt(1)
            v_cmp_ne_u32 vcc, v{EP}, v{B+1}
            v_mov_b32 v{GB}, v{B}
            v_mov_b32 v{GB+2}, v{B+2}
            v_mov_b32 v{GB+3}, v{B+3}
            """)
        a.label("L_retry", flush=False)
        if ab > 1: a(f"s_sub_u32 s{sVL}, s{sVL}, 1\n s_cselect_b32 s{sT}, 0x400, 0\n v_xor_b32 v{GA}, s{sT}, v{GA}")
        a(f"""
        {"s_mov_b64 exec, vcc" if pp & 1 else ""}
        s_sub_u32 s{sBUD}, s{sBUD}, 16
        s_cbranch_scc1 L_end
        global_load_dwordx4 v[{KR}:{KR+3}], v{GA}, s[{sWS}:{sWS+1}] {lf}
        """)
        chk(KR + 4)
        a(f"""
        s_cbranch_vccz L_got
        {"s_mov_b64 exec, vcc" if pp & 1 else ""}
        s_branch L_chkb
        """)
        a.label("L_win", flush=False)
        mms(3)
        a("s_mov_b32 exec_hi, 0xffff")
        a.label("L_chkb", flush=False)
        a(f"global_load_dwordx4 v[{KR+4}:{KR+7}], v{GA}, s[{sWS}:{sWS+1}] {lf}")
        chk(KR)
        a("s_cbranch_vccnz L_retry")
        a.label("L_got", flush=False)
        a("s_mov_b64 exec, -1\n s_nop 1")
    else:
        a.label("L_retry", flush=False)
        if ab > 1: a(f"s_sub_u32 s{sVL}, s{sVL}, 1\n s_cselect_b32 s{sT}, 0x400, 0\n v_xor_b32 v{GA}, s{sT}, v{GA}")
        a(f"""
        s_mov_b32 exec_hi, 0xffff
        s_sub_u32 s{sBUD}, s{sBUD}, 16
        s_cbranch_scc1 L_end
        global_load_dwordx4 v[{GB}:{GB+3}], v{GA}, s[{sWS}:{sWS+1}] {lf}
        s_mov_b64 exec, -1
        s_branch L_chkb
        """)
        a.label("L_win", flush=False)
        mms(3)
        if diag == 3: a("s_mov_b32 m0, 30")
        a.label("L_chkb", flush=False)
        if diag == 3:
            a("s_waitcnt vmcnt(0)")
            stampm()
            a(f"s_min_u32 m0, m0, 50")
        a(f"""
        s_waitcnt vmcnt(0)
        v_cmp_ne_u32 vcc, v{EP}, v{GB+1}
        s_cbranch_vccnz L_retry
        """)
    stampc(62)
    a(f"""
    v_add_f32_dpp v{GB}, v{GB}, v{GB} row_bcast:15 row_mask:0xa bank_mask:0xf
    v_permlane16_swap_b32 v{GB+2}, v{GB+3}
    s_nop 0
    v_add_f32_dpp v{GB}, v{GB}, v{GB} row_bcast:31 row_mask:0xc bank_mask:0xf
    v_add_f32 v{GB+2}, v{GB+2}, v{GB+3}
    v_add_f32 v{GB}, v{GB}, v{T}
    v_cndmask_b32_e64 v{ACC}, v{ACC}, v{AC1}, s[{sM3}:{sM3+1}]
    v_add_f32 v{GB+3}, v{GB+2}, v{ACC}
    v_permlane32_swap_b32 v{GB+1}, v{GB+2}
    v_rcp_f32 v{GB}, v{GB}
    s_mov_b32 exec_lo, 0
    v_add_f32 v{GB+3}, v{GB+3}, v{GB+1}
    v_mul_f32 v{GB+3}, v{GB+3}, v{GB}
    v_cvt_pk_bf16_f32 v{GB+3}, v{GB+3}, v{GB+3}
    global_store_short v{cOUT}, v{GB+3}, s[{sOUT}:{sOUT+1}]
    """)
    if diag:
        a("s_mov_b64 exec, -1")
        stampc(5)
        a.label("L_fin")
        a(f"s_memrealtime s[{sRAW}:{sRAW+1}]")
        a(f"s_getreg_b32 s76, hwreg(HW_REG_XCC_ID)")
        a("s_waitcnt lgkmcnt(0)")
        a(f"v_writelane_b32 v{DG}, s{sRAW}, 7")
        a(f"v_writelane_b32 v{DG}, s76, 63")
        a(f"""
        s_mul_i32 s{sT}, s2, 5
        s_lshr_b32 s{sT2}, s{sW}, 6
        s_add_u32 s{sT}, s{sT}, s{sT2}
        s_lshl_b32 s{sT}, s{sT}, 8
        s_add_u32 s{sT}, s{sT}, 0x100000
        v_lshl_add_u32 v{T}, v{LANE}, 2, s{sT}
        global_store_dword v{T}, v{DG}, s[{sWS}:{sWS+1}]
        """)
    if amp:
        a.label("L_amp", flush=False)
        a(f"""
        s_cmp_eq_u32 s2, 100
        s_cbranch_scc0 L_end
        s_waitcnt lgkmcnt(0)
        s_sub_u32 s76, s76, s74
        s_mul_i32 s76, s76, 10
        s_add_u32 s76, s76, 3000
        s_min_u32 s76, s76, 40000
        """)
        a.label("L_amp1", flush=False)
        a(f"""
        s_memrealtime s[72:73]
        s_waitcnt lgkmcnt(0)
        s_sub_u32 s72, s72, s74
        s_cmp_lt_u32 s72, s76
        s_cbranch_scc1 L_amp1
        """)
    a.label("L_end", flush=False)
    a("s_endpgm")
    a.label("L_qpost")
    a(f"v_mov_b32 v{T+2}, {hex(f2u(1e-6) - (3 << 23))}")
    a(f"s_mov_b32 s{sT}, {hex(f2u(0.015625))}")
    for i in range(8):
        x = PH + i
        a(f"""
        v_lshlrev_b32 v{T}, 16, v{x}
        v_and_b32 v{T+1}, s{sMASK}, v{x}
        v_fma_f32 v{T}, v{T}, s{sT}, v{T+2}
        v_fma_f32 v{T+1}, v{T+1}, s{sT}, v{T+2}
        v_cvt_pk_bf16_f32 v{PQ+i}, v{T}, v{T+1}
        """)
    a(f"v_mfma_f32_16x16x32_bf16 v[{C}:{C+3}], v[{ONES}:{ONES+3}], v[{PQ}:{PQ+3}], 0")
    a(f"s_add_u32 s{sEP}, s{sEP}, 0x9e3779b9")
    a(f"v_mfma_f32_16x16x32_bf16 v[{C}:{C+3}], v[{ONES}:{ONES+3}], v[{PQ+4}:{PQ+7}], v[{C}:{C+3}]")
    a(f"""
    {"" if pfk else f"s_lshl_b32 s{sTHR}, s{sW}, 2"}
    v_mov_b32 v{EP}, s{sEP}
    s_cmp_eq_u32 s{sEP}, s{sCT+1}
    s_cselect_b32 s{sT}, 4, s{sC}
    s_cmp_lg_u32 s{sT}, 0
    s_cbranch_scc1 L_c2
    s_mov_b64 exec, 1
    v_mov_b32 v{CT}, 0
    v_mov_b32 v{CT+1}, s{sEP}
    v_mov_b32 v{CT+2}, s{sCT}
    v_mov_b32 v{CT+3}, s{sCT+1}
    global_atomic_cmpswap_x2 v{cAT}, v[{CT}:{CT+3}], s[{sWS}:{sWS+1}] sc1
    s_mov_b64 exec, -1
    """)
    a.label("L_c2", flush=False)
    if pw == 4: a(f"global_load_dword v{DUM}, v{cWS}, s[{sWS}:{sWS+1}] offset:1024")
    if to == 2: a(f"s_mov_b32 exec_lo, 0\n global_load_ushort v{DUM+2}, v{cOUT}, s[{sOUT}:{sOUT+1}]\n s_mov_b32 exec_lo, -1")
    a("s_nop 1")
    for i in range(4): a(f"v_mul_f32 v{C+i}, {hex(f2u(1e-6) + (3 << 23))}, v{C+i}")
    stampc(3)
    if amp == "q": a("s_memrealtime s[76:77]")
    a.flush()
    a("s_branch L_loop")
    a.raw("L_codeend:")
    a.raw(f""".section .rodata,"a"
.p2align 6
.amdhsa_kernel {NAME}_kernel
  .amdhsa_next_free_vgpr 256
  .amdhsa_next_free_sgpr {100 if pm else 80}
  .amdhsa_accum_offset 256
  .amdhsa_group_segment_fixed_size 0
  .amdhsa_kernarg_size 56
  .amdhsa_user_sgpr_count 2
  .amdhsa_user_sgpr_kernarg_segment_ptr 1
  .amdhsa_system_sgpr_workgroup_id_x 1
.end_amdhsa_kernel""")
    return a

if __name__ == "__main__":
    out = sys.argv[1]
    kw = dict(x.split("=") for x in sys.argv[2:])
    for key in ("nt",):
        if key in kw: kw[key] = "" if kw[key] == "0" else " " + kw[key].replace("+", " ")
    a8 = kw.pop("a8", "1")
    a = gen(**kw)
    t = a.text()
    if a8 == "1": t = align8(t, "L_loop", "L_vl")
    if a8 == "2": t = align8(t)
    open(out, "w").write(t)
    print("wrote", out, "nops inserted:", a.nops)
```

```python
import sys, struct
from asmlib import Asm, interleave, align8
import amap

NAME = "standalone__linear_kernel_rfa__decode"
def f2u(x): return struct.unpack("<I", struct.pack("<f", x))[0]

def gen(nt=" nt", diag="0", al="12", N="17", el="3", K0="5", SL="11", pk="0", bp="3", pr="3", cpr="0", gr="1", amp="", pfk="1", fp="26", so="1", po="0", ev="2", pm="0", pp="1", sf="sc1", lf="sc1", pw="3", ab="12", af="", xc="1", tv="0", to="0", fb="12", fd="31", fe="256", ff="sc0", fs="", fx="1", fbt="", fl="2", fo="1", fw="1", fu="2", f2="12", fg="512", e0="2", e1="2", th="0", fh="256", fv="11", gx="0", gt="0", ge="0", gn="4", gw="1",
        m="i2.g0.k0.i0.g1.i1.k1.w3.k2.k1+k4.k3+w2.w4.w2.w5.w7.w0.w6.w1+w2"):
    ev = int(ev); pm = int(pm); pp = int(pp); sf = sf.replace('+', ' '); lf = lf.replace('+', ' '); pw = int(pw); ab = int(ab); xc = int(xc) and ab > 1; tv = int(tv); fb = int(fb); fd = int(fd); fl = int(fl); fo = int(fo); fw = int(fw); fu = int(fu); f2 = int(f2); th = int(th); e0 = int(e0); e1 = int(e1); gx = int(gx); gn = int(gn); ge = int(ge); gw = int(gw); OP = 11 if gx else 10; assert gw <= 3; assert not fu or fl == 2 and int(fe); assert fl < 2 or (fd <= 31 and int(N) <= 17); assert xc or not fl; fx = int(fx) if fb else 0; fbt = sum(2 * int(x) << 8 * i for i, x in enumerate(fbt.split('.'))) if fbt else 0; ff = ff.replace('+', ' ').replace('-', ''); fs = fs.replace('+', ' '); to = int(to); af = af.replace('+', ' ')
    if gx: N = 2 * OP + gw - 4; fd = 3 * OP + gw
    if not fb: fl = fu = e0 = e1 = 0; K0 = 4; N = '16' if N == '17' else N
    cols = amap.parse(m); amap.check(cols); PV = amap.derived(cols)
    P = (lambda n: "s%d" % (76 + amap.ORDER.index(n))) if pm else (lambda n: hex(PV[n]))
    WF = {(amap.xor(cols[10:18], w) ^ cols[18]) & PV["F"] for w in range(256)}
    bias = 4096 if pm or any(amap.xor(cols[:4], g + 4 * i) ^ x < 1024 * i for g in range(4) for i in range(4) for x in WF) else 0
    wf = pm or WF != {0}
    so = int(so); po = int(po)
    pfk = int(pfk); fp = int(fp)
    gr = int(gr)
    diag = int(diag); N = int(N); el = int(el); K0 = int(K0); SL = int(SL); pk = int(pk); bp = int(bp); cpr = int(cpr)
    a = Asm()
    OMB = 131072; LND = 147712; PRG = LND + 256; RED = 151552; WB = RED + 4096 + 256
    LDS = WB + 2048
    EPOCH = 0x80000; STEP = 32768
    SK, SV, SO, SQ = 4, 8, 12, 16
    sOUT, sWS = 20, 24
    sW, sHEAD, sPART, sT, sT2, sX, sBUD = 26, 27, 28, 29, 30, 31, 32
    sL, sKO, sM, sC0, sJ, sTAB, sWB, sSH = 33, 34, 36, 49, 37, 38, 40, 41
    VK = [176, 177, 178, 179]; VV = [5, 6, 17, 18]; vLN = 8; vPA = 9; vT = 10; vP = 11; vTA = 12; vEL = 15; v64 = 16; vTB = 20
    sC, sXR, sTHR, sMASK, sSCALE, sL2E, sEP = 33, 34, 35, 36, 38, 40, 42
    sMS = 44; sM3 = 46; sDG = 48; sP = 56; sVT = 57; sVL = 58
    sCT = 62
    RK = [8, 9, 10, 11]; TV = 12; cWW = 14; cWA = 15; cPA = 16
    NH = 20; LANE = 21; cLN = 1; cPR = 2; cW = 4; EP = 151; DENR = 150; cRD = 5; cWS = 6; cOUT = 22; cAT = 161
    ONES = 24; C = 28; PQ = 32; WPK = 40; WD = 44; SQD = 52; SQA = 60
    KR = 64; PR = 96; PH = 128; T = 144; ACC = 152; AC1 = 156; DUM = 160; DG = 164; DEN = 168
    CT = 180; GA = 186; OM = 192; GB = 172
    sRAW = 72
    px, py = amap.partbits(cols)
    partc = "" if pm else f"s_bfe_u32 s{sPART}, s2, {hex(0x20000 + px)}" if py == px + 1 else f"s_bfe_u32 s{sPART}, s2, {hex(0x10000 + py)}\n s_bitcmp1_b32 s2, {px}\n s_addc_u32 s{sPART}, s{sPART}, s{sPART}"
    def stampc(i):
        if diag:
            a(f"s_memrealtime s[{sRAW}:{sRAW+1}]")
            a("s_waitcnt lgkmcnt(0)")
            a(f"v_writelane_b32 v{DG}, s{sRAW}, {i}")
    def stampm():
        if diag:
            a(f"{'s_memtime' if diag == 2 else 's_memrealtime'} s[{sRAW}:{sRAW+1}]")
            a("s_waitcnt lgkmcnt(0)")
            a(f"v_writelane_b32 v{DG}, s{sRAW}, m0")
            a("s_add_u32 m0, m0, 1")
    npoll = [0]
    def poll(adr, thr, reg):
        l = "L_poll%d" % npoll[0]; npoll[0] += 1
        a.label(l, flush=False)
        a(f"""
        ds_read_b32 v{reg}, v{adr}
        s_sub_u32 s{sBUD}, s{sBUD}, 1
        s_cbranch_scc1 L_end
        s_waitcnt lgkmcnt(0)
        v_cmp_gt_u32 vcc, {thr}, v{reg}
        s_cbranch_vccnz {l}
        """)

    hdr = open("cdna_kernels/%s.s.ref" % NAME).read().split("; Override launch")[0]
    a.raw(hdr.rstrip())
    a.raw("; @launch grid=(256,1,1) block=(320,1,1) lds=%d" % LDS)
    a.raw('.amdgcn_target "amdgcn-amd-amdhsa--gfx950"\n.text\n.globl %s_kernel\n.p2align %s\n.p2align 8\n.type %s_kernel,@function' % (NAME, al, NAME))
    a.label(NAME + "_kernel")
    if diag or amp: a("s_memrealtime s[74:75]")
    a(f"""
    s_load_dwordx2 s[{SK}:{SK+1}], s[0:1], 8
    s_load_dwordx2 s[{SO}:{SO+1}], s[0:1], 24
    s_load_dwordx2 s[{SQ}:{SQ+1}], s[0:1], 0
    """)
    if pm: a("s_load_dwordx16 s[76:91], s[0:1], 56\n s_load_dwordx8 s[92:99], s[0:1], 120")
    a("s_getpc_b64 s[60:61]")
    a.label("L_pc", flush=False)
    a(f"""
    v_subrev_u32 v7, 64, v0
    v_lshlrev_b32 v7, 7, v7
    v_cmp_gt_u32 vcc, L_codeend-L_pc-3, v7
    v_mov_b32 v{DUM+3}, s61
    s_cbranch_vccz L_nopf
    s_mov_b64 exec, vcc
    v_add_co_u32 v{DUM+2}, vcc, s60, v7
    v_addc_co_u32 v{DUM+3}, vcc, 0, v{DUM+3}, vcc
    global_load_dword v{DUM}, v[{DUM+2}:{DUM+3}], off
    s_mov_b64 exec, -1
    """)
    a.label("L_nopf", flush=False)
    a(f"""
    v_readfirstlane_b32 s{sW}, v0
    v_bfe_u32 v22, v0, 4, 2                    ; q = lane>>4
    v_and_b32 v23, 15, v0                      ; n = lane&15
    s_cmp_ge_u32 s2, 256
    s_cbranch_scc1 L_end
    v_xor_b32 v7, v22, v23
    v_lshlrev_b32 v7, 4, v7
    """)
    if pm:
        a(f"s_waitcnt lgkmcnt(0)\n s_mov_b32 s{sKO}, {P('c')}")
        for j in range(8): a(f"s_bitcmp1_b32 s2, {j}\n s_cselect_b32 s{sT}, {P('w%d' % j)}, 0\n s_xor_b32 s{sKO}, s{sKO}, s{sT}")
        a(f"s_lshr_b32 s{sPART}, s{sKO}, 26\n s_and_b32 s{sKO}, s{sKO}, 0x3ffffff")
    else:
        for n, (am, mul, rm) in enumerate(amap.plan(cols[10:18])):
            d = sT if n else sKO; src = 2
            if am != 0xff: a(f"s_and_b32 s{d}, s2, {hex(am)}"); src = d
            if mul & (mul - 1): a(f"s_mul_i32 s{d}, s{src}, {hex(mul)}")
            else: a(f"s_lshl_b32 s{d}, s{src}, {mul.bit_length() - 1}")
            if rm != 0xffffffff: a(f"s_and_b32 s{d}, s{d}, {hex(rm)}")
            if n: a(f"s_xor_b32 s{sKO}, s{sKO}, s{sT}")
        if PV["c"]: a(f"s_xor_b32 s{sKO}, s{sKO}, {P('c')}")
    a(f"""
    s_lshr_b32 s{sHEAD}, s{sKO}, 20
    s_cmp_lg_u32 s{sW}, 0
    s_cbranch_scc1 L_cons
    """)
    gm = PV["g0"] | PV["g1"] >> 1; gr_ = PV["g0"] | PV["g1"]
    if not pm and all(q * gm & gr_ == amap.xor(cols[:2], q) for q in range(4)):
        gcode = f"v_mul_u32_u24 v19, {hex(gm)}, v22\n v_and_b32 v19, {hex(gr_)}, v19"
    else:
        gcode = f"""v_bfe_i32 v19, v0, 4, 1
        v_bfe_i32 v{vTB}, v0, 5, 1
        v_and_b32 v19, {P('g0')}, v19
        v_and_b32 v{vTB}, {P('g1')}, v{vTB}
        v_xor_b32 v19, v19, v{vTB}"""
    a(f"""
    s_setprio {pr}
    {f"s_mov_b32 s{SK+2}, {hex(2**26 + bias)}" if bias else f"s_brev_b32 s{SK+2}, 32"}
    s_mov_b32 s{SK+3}, 0x20000
    s_mov_b32 m0, 0
    {gcode}
    s_mov_b32 s{sTAB}, {P('tab0')}
    s_mov_b32 s{sTAB+1}, {P('tab1')}
    """)
    if wf: a(f"s_and_b32 s{sT}, s{sKO}, {P('F')}\n v_xor_b32 v19, s{sT}, v19\n s_xor_b32 s{sKO}, s{sKO}, s{sT}")
    def rows(R, sw):
        a(f"v_or_b32 v{R[0]}, v19, v7")
        busy = PV["g0"] | PV["g1"]
        for x in WF: busy |= x
        if not bias and all(not (PV["i%d" % i] | PV["i%d" % i] - 1024 * i) & busy for i in range(1, 4)):
            for i in range(1, 4): a(f"v_xor_b32 v{R[i]}, {hex(PV['i%d' % i] - 1024 * i | sw(i))}, v{R[0]}")
            return
        for i in range(1, 4):
            if pm: a(f"v_xor_b32 v{R[i]}, {P('i%d' % i)}, v{R[0]}\n v_xor_b32 v{R[i]}, {sw(i)}, v{R[i]}")
            else: a(f"v_xor_b32 v{R[i]}, {hex(PV['i%d' % i] | sw(i))}, v{R[0]}")
        for i in range(4):
            if bias - 1024 * i: a(f"v_add_u32 v{R[i]}, {hex((bias - 1024 * i) & 0xffffffff)}, v{R[i]}")
    rows(VK, lambda i: 64 * i)
    a(f"s_mov_b32 s{sWB}, s{sKO}")
    if diag:
        a("s_waitcnt lgkmcnt(0)")
        a(f"v_mov_b32 v{DG}, 0")
        a(f"v_writelane_b32 v{DG}, s74, 0")
        stampc(1)
    a("s_waitcnt lgkmcnt(0)")
    if bias: a(f"s_sub_u32 s{SK}, s{SK}, {bias}\n s_subb_u32 s{SK+1}, s{SK+1}, 0")
    a.label("L_k0", flush=False)
    for i in range(4): a(f"buffer_load_dwordx4 v{VK[i]}, s[{SK}:{SK+3}], s{sKO} offen offset:{1024*i}{nt} lds")
    a(f"""
    s_and_b32 s{sT}, s{sTAB}, 0xfff
    s_addk_i32 m0, 4096
    s_lshl_b32 s{sT}, s{sT}, 8
    s_lshr_b64 s[{sTAB}:{sTAB+1}], s[{sTAB}:{sTAB+1}], 12
    s_xor_b32 s{sKO}, s{sKO}, s{sT}
    s_cmpk_lt_u32 m0, {3*8192}
    s_cbranch_scc1 L_k0
    s_branch L_setup
    """)
    a.label("L_cons")
    a(f"""
    v_lshl_add_u32 v{VK[0]}, v22, 8, v7
    v_xor_b32 v{VK[1]}, 64, v{VK[0]}
    v_xor_b32 v{VK[2]}, 0x80, v{VK[0]}
    v_xor_b32 v{VK[3]}, 64, v{VK[2]}
    v_and_b32 v{LANE}, 63, v0
    s_lshl_b32 s{sT}, s{sHEAD}, 8
    v_lshl_add_u32 v{KR}, v{LANE}, 2, s{sT}
    s_lshl_b32 s{sT2}, s{sW}, 6
    s_add_u32 m0, s{sT2}, {OMB - 4096}
    s_addk_i32 s{sT2}, -4096
    s_movk_i32 s{SO+2}, 16384
    s_mov_b32 s{SO+3}, 0x20000
    s_waitcnt lgkmcnt(0)
    """)
    for i in range(4): a(f"buffer_load_dwordx4 v{VK[i]}, s[{SO}:{SO+3}], s{sT2} offen offset:{1024*i} lds")
    a(f"""
    global_load_dword v{KR}, v{KR}, s[{SQ}:{SQ+1}]
    s_load_dwordx2 s[{sWS}:{sWS+1}], s[0:1], 48
    s_load_dwordx2 s[{sOUT}:{sOUT+1}], s[0:1], 32
    {f"s_setprio {cpr}" if cpr else ""}
    s_lshr_b32 s{sC}, s{sT2}, 12
    {partc}
    s_mov_b32 s{sBUD}, 0x100000
    v_lshlrev_b32 v{cLN}, 2, v{LANE}
    v_add_u32 v{cLN}, {LND}, v{cLN}
    s_lshl_b32 s{sT2}, s{sC}, 8
    v_add_u32 v{cPR}, s{sT2}, v{cLN}
    v_mov_b32 v{ACC}, 0
    ds_write_b32 v{cPR}, v{ACC} offset:256
    s_lshl_b32 s{sT2}, s{sC}, 13
    v_lshl_add_u32 v7, v23, 8, v7              ; n*256 + ((q^n)*16)
    v_add_u32 v{RK[0]}, s{sT2}, v7
    v_xor_b32 v{RK[1]}, 64, v{RK[0]}
    v_xor_b32 v{RK[2]}, 0x80, v{RK[0]}
    v_xor_b32 v{RK[3]}, 0xc0, v{RK[0]}
    v_add_u32 v{T+4}, {OMB}, v7
    v_xor_b32 v{T+5}, 64, v{T+4}
    v_xor_b32 v{T+6}, 0x80, v{T+4}
    v_xor_b32 v{T+7}, 0xc0, v{T+4}
    v_lshrrev_b32 v7, 2, v{LANE}
    v_and_b32 v{TV}, 7, v7
    v_lshlrev_b32 v{TV}, 5, v{TV}
    v_lshl_add_u32 v{TV}, v7, 8, v{TV}
    v_and_b32 v7, 3, v{LANE}
    v_lshl_add_u32 v{TV}, v7, 3, v{TV}
    s_add_u32 s{sT2}, s{sT}, {EPOCH}
    v_mov_b32 v{cAT}, s{sT2}
    s_add_u32 s{sX}, s{sT2}, 128
    s_waitcnt lgkmcnt(0)
    s_load_dword s{sEP}, s[{sWS}:{sWS+1}], s{sX}
    s_load_dwordx2 s[{sCT}:{sCT+1}], s[{sWS}:{sWS+1}], s{sT2}
    """)
    if diag:
        a(f"v_mov_b32 v{DG}, 0")
        a(f"v_writelane_b32 v{DG}, s74, 0")
        a("s_mov_b32 m0, 8")
    a(f"""
    v_lshlrev_b32 v{PH+3}, 4, v22
    s_lshl_b32 s{sT2}, s{sC}, 8
    v_lshl_add_u32 v{cRD}, v23, 4, s{sT2}       ; 256c + 16n
    v_add_u32 v7, 1, v22
    v_xor_b32 v7, s{sPART}, v7
    s_lshl2_add_u32 s{sT2}, s{sC}, -4
    s_lshl4_add_u32 s{sT}, s{sT2}, s{sT}
    v_lshl_add_u32 v{cOUT}, v{LANE}, 1, s{sT}
    s_lshl_b32 s{sT}, s{sHEAD}, {SL+2}
    v_lshl_add_u32 v{GA}, v7, {SL}, s{sT}
    v_add_u32 v{GA}, v{GA}, v{cRD}
    {f"v_or_b32 v{GA}, 0x400, v{GA}" if ab > 1 else ""}
    s_lshl_b32 s{sT}, s{sC}, 6
    v_xor_b32 v{TV}, s{sT}, v{TV}
    v_xor_b32 v{TV+1}, 32, v{TV}
    v_add_u32 v{cWA}, {WB - 256}, v{PH+3}
    v_add_u32 v{cWW}, s{sT}, v{cWA}
    s_lshl_b32 s{sT}, s{sC}, 10
    s_add_u32 s{sT}, s{sT}, {RED}
    v_add_u32 v{PH+3}, s{sT}, v{PH+3}
    v_lshl_add_u32 v{PH+2}, v{LANE}, 2, s{sT}
    s_lshl2_add_u32 s{sT}, s{sHEAD}, s{sPART}
    s_lshl_b32 s{sT}, s{sT}, {SL}
    v_add_u32 v{cWS}, s{sT}, v{cRD}
    {f"s_lshl_b32 s{sT2}, s{sC}, 8" if pw == 5 else ""}
    {f"s_add_u32 s{sT}, s{sT}, s{sT2}" if pw == 5 else ""}
    {f"s_add_u32 s{sT2}, s{sT}, 1024" if pw == 5 else ""}
    {f"s_addk_i32 s{sT}, 1152" if pw == 5 else ""}
    {f"s_load_dword s60, s[{sWS}:{sWS+1}], s{sT2}     ; bring the hand-off lines into L2" if pw == 5 else ""}
    {f"s_load_dword s61, s[{sWS}:{sWS+1}], s{sT}" if pw == 5 else ""}
    s_mov_b32 s{sMASK}, 0xffff0000
    s_mov_b32 s{sSCALE}, {hex(f2u(128.0 ** -0.25))}
    s_mov_b32 s{sL2E}, 0x3fb8aa3b
    v_mov_b32 v{NH}, -0.5
    s_mov_b32 s{sMS}, 0x00010001
    s_mov_b32 s{sMS+1}, s{sMS}
    s_mov_b32 s{sXR}, 0x8000
    """)
    if gr:
        a(f"s_mov_b32 s{sDG}, 0x00100001\n s_mov_b32 s{sDG+1}, 0x10000100")
        for r in range(1, 4): a(f"s_lshl_b64 s[{sDG+2*r}:{sDG+2*r+1}], s[{sDG}:{sDG+1}], {r}")
    if pk: a(f"s_mov_b32 s{sSCALE+1}, s{sSCALE}\n s_mov_b32 s{sL2E+1}, s{sL2E}")
    a(f"v_mov_b32 v{ONES}, 0x3f803f80")
    for i in range(1, 4): a(f"v_mov_b32 v{ONES+i}, v{ONES}")
    for i in range(1, 4): a(f"v_mov_b32 v{ACC+i}, 0")
    for i in range(4): a(f"v_mov_b32 v{AC1+i}, 0")
    for i in range(4): a(f"v_mov_b32 v{DEN+i}, 0")
    a(f"s_movk_i32 s{sVT}, {36*256}\n s_movk_i32 s{sVL}, {(36+4*ev if ev else 64)*256}")
    stampc(1)
    a(f"""
    {f"s_lshl_b32 s{sTHR}, s{sW}, 2" if pfk else f"s_mov_b32 s{sTHR}, 0"}
    s_waitcnt vmcnt(0)
    v_lshlrev_b32 v{T}, 16, v{KR}
    v_and_b32 v{T+1}, s{sMASK}, v{KR}
    v_mul_f32 v{T}, s{sSCALE}, v{T}
    v_mul_f32 v{T+1}, s{sSCALE}, v{T+1}
    v_cvt_pk_bf16_f32 v{T}, v{T}, v{T+1}
    s_barrier
    ds_write_b32 v{PH+2}, v{T}
    s_waitcnt lgkmcnt(0)
    """)
    for jj in range(4): a(f"ds_read_b128 v[{KR+4*jj}:{KR+4*jj+3}], v{PH+3} offset:{64*jj}")
    for j in range(4):
        for t in range(4):
            r = OM + 16 * t + 4 * j
            a(f"ds_read_b128 v[{r}:{r+3}], v{T+4+j} offset:{4096*t}")
    stampc(2)
    for j in range(4):
        a(f"s_waitcnt lgkmcnt({12-4*j})")
        k = KR + 4 * j
        a(f"v_mfma_f32_16x16x32_bf16 v[{SQD}:{SQD+3}], v[{k}:{k+3}], v[{k}:{k+3}], " + (f"v[{SQD}:{SQD+3}]" if j else "0"))
        for t in range(4):
            d = PR + 4 * t; om = OM + 16 * t + 4 * j
            a(f"v_mfma_f32_16x16x32_bf16 v[{d}:{d+3}], v[{om}:{om+3}], v[{k}:{k+3}], " + (f"v[{d}:{d+3}]" if j else "0"))
    a(f"v_mul_f32 v{SQD}, -0.5, v{SQD}")
    a.flush()
    a("s_branch L_phi0")
    a.label("L_setup")
    a(f"""
    s_load_dwordx2 s[{SV}:{SV+1}], s[0:1], 16
    s_load_dwordx2 s[{sWS}:{sWS+1}], s[0:1], 48
    {"s_load_dwordx2 s[44:45], s[0:1], 40" if fb else ""}
    s_mov_b32 s{sBUD}, 0x100000
    s_movk_i32 s{sL}, 256
    s_movk_i32 s{sM}, {3*8192}
    v_lshlrev_b32 v7, 1, v22
    v_xor_b32 v7, v7, v23
    v_lshlrev_b32 v7, 4, v7
    v_mov_b32 v{vTB}, s{sWB}
    """)
    for j in range(5): a(f"v_bfe_i32 v{vT}, v0, {j}, 1\n v_and_b32 v{vT}, {P('k%d' % j)}, v{vT}\n v_xor_b32 v{vTB}, v{vTB}, v{vT}")
    rows(VV, lambda i: 128 * (i & 1))
    xcc = f"""s_getreg_b32 s{sSH}, hwreg(HW_REG_XCC_ID, 0, 3)
    s_lshl1_add_u32 s{sSH}, s{sSH}, 16
    s_mov_b32 s{sC0}, 64
    s_bitset1_b32 s{sC0}, s{sSH}
    v_mov_b32 v{v64}, s{sC0}""" if xc else f"v_mov_b32 v{v64}, 64"
    a(f"""
    v_readlane_b32 s{sKO}, v{vTB}, 3
    s_mov_b32 s{sJ}, 3
    v_lshlrev_b32 v{vLN}, 2, v0
    v_add_u32 v{vLN}, {LND}, v{vLN}
    v_and_b32 v7, 3, v0
    v_lshl_add_u32 v{vPA}, v7, 8, v{vLN}
    s_lshl_b32 s{sT}, s{sHEAD}, 8
    s_add_u32 s{sT}, s{sT}, {EPOCH}
    v_mov_b32 v{vTA}, s{sT}
    {xcc}
    s_movk_i32 s{sC0}, 0xc0
    s_add_u32 s50, s{sT}, 128
    v_mov_b32 v{vEL}, 0
    """)
    if diag: a("s_mov_b32 s52, 8")
    if fu:
        a(f"""
        s_lshr_b32 s56, s2, 3
        s_mov_b32 s46, {128 if fu == 1 else 0}
        s_mov_b32 s47, 0x20000
        v_mov_b32 v24, 0
        v_lshlrev_b32 v25, 2, v0
        v_lshl_add_u32 v26, v0, 5, s56
        v_lshlrev_b32 v26, 2, v26
        s_waitcnt lgkmcnt(0)
        {"s_load_dword s60, s[44:45], 0" if fu > 1 else ""}
        """)
        if gx:
            a(f"""
            s_cmp_lt_u32 s2, 8
            s_cselect_b32 s66, 1024, -1
            s_mov_b32 s68, {gx - 8}
            s_mov_b32 s63, 0
            v_mov_b32 v29, 0
            v_mov_b32 v30, -16
            v_mov_b32 v31, 1
            """)
        for i in range(N + 4 - 16): a(f"buffer_load_dword v27, v25, s[44:47], 0 offen offset:128")
    elif fb:
        a(f"""
        s_lshr_b32 s46, s2, 3
        v_mov_b32 v24, 0
        v_and_b32 v25, 31, v0
        v_lshlrev_b32 v25, 2, v25
        v_lshlrev_b32_e64 v26, 2, s46
        v_writelane_b32 v24, 1, s46
        {f"s_mov_b32 s54, {hex(fbt & 0xffffffff)}" if fbt else ""}
        {f"s_mov_b32 s55, {hex(fbt >> 32)}" if fbt else ""}
        {f"s_lshl_b32 s48, s2, 3" if fbt else ""}
        {f"s_lshr_b64 s[54:55], s[54:55], s48" if fbt else ""}
        {f"s_and_b32 s48, s54, 0xff" if fbt else ""}
        {f"s_and_b32 s47, s2, 7" if fx & 4 else ""}
        {f"s_lshl_b32 s47, s47, 8" if fx & 4 else ""}
        {f"v_add_u32 v25, s47, v25" if fx & 4 else ""}
        {f"v_add_u32 v26, s47, v26" if fx & 4 else ""}
        s_waitcnt lgkmcnt(0)
        global_load_dword v27, v25, s[44:45]
        global_load_dword v27, v25, s[44:45]
        global_load_dword v27, v25, s[44:45]
        global_load_dword v27, v25, s[44:45]
        {"global_load_dword v27, v25, s[44:45]" if fl == 2 else ""}
        """)
    a.label("L_k")
    a(f"""
    s_mov_b32 m0, s{sM}
    s_xor_b32 s{sT}, s{sKO}, {P('ci2')}
    s_add_u32 s{sJ}, s{sJ}, 1
    """)
    gcode2 = f"""v_readlane_b32 s54, v24, 0
        s_bitcmp1_b32 s54, 0
        s_cselect_b32 s62, {gt}, {fb}""" if gx else ""
    if e0 or e1:
        gcode2 = f"s_sub_u32 s62, s{sL}, {256 * (1 + e0)}\n s_cmpk_ge_u32 s62, {256 * (61 - e1 - e0)}\n s_cselect_b32 s62, 0, {fb}"
    if fu and f2:
        a(f"""
        {gcode2}
        v_readlane_b32 s57, v24, s56
        s_sub_u32 s55, s{sL}, 512
        {"s_bitset0_b32 s57, 0" if gx else ""}
        {f"s_sub_u32 s64, s57, {fh}" if th else ""}
        {f"v_cmp_le_i32_e64 s[64:65], s64, v24" if th else ""}
        s_add_u32 s54, s57, {fg}
        s_addk_i32 s57, {fe}
        v_cmp_le_u32_e64 s[58:59], s54, v24
        v_cmp_le_u32 vcc, s57, v24
        s_bcnt1_i32_b32 s54, s58
        s_bcnt1_i32_b32 s57, vcc_lo
        s_cmp_ge_u32 s54, {f2}
        s_waitcnt vmcnt({fd+OP})
        s_cbranch_scc1 L_deep
        s_addk_i32 s55, 256
        s_cmp_ge_u32 s57, {"s62" if gx or e0 or e1 else fb}
        s_waitcnt vmcnt({fd})
        s_cbranch_scc1 L_deep
        s_addk_i32 s55, 256
        {f"s_bcnt1_i32_b32 s64, s64" if th else ""}
        {f"s_cmp_gt_u32 s64, {th}" if th else ""}
        s_waitcnt vmcnt({N+4})
        {f"s_cbranch_scc1 L_deep" if th else ""}
        {f"s_waitcnt vmcnt({fv})" if th else ""}
        """)
        a.label("L_deep", flush=False)
    elif fu:
        a(f"""
        v_readlane_b32 s57, v24, s56
        s_sub_u32 s55, s{sL}, 256
        s_addk_i32 s57, {fe}
        v_cmp_le_u32 vcc, s57, v24
        s_waitcnt vmcnt({fd})
        s_bcnt1_i32_b32 s57, vcc_lo
        s_cmp_ge_u32 s57, {fb}
        s_cbranch_scc1 L_deep
        s_mov_b32 s55, s{sL}
        s_waitcnt vmcnt({N+4})
        """)
        a.label("L_deep", flush=False)
    elif fb:
        a(f"""
        v_readlane_b32 s47, v24, s46
        {f"s_sub_u32 s55, s{sL}, 256" if fl == 2 else ""}
        s_add_u32 s47, s47, {fe}
        v_cmp_le_u32 vcc, s47, v24
        s_bcnt1_i32_b64 s47, vcc
        s_cmp_ge_u32 s47, {'s48' if fbt else 2*fb}
        s_waitcnt vmcnt({fd})
        s_cbranch_scc1 L_deep
        {f"s_mov_b32 s55, s{sL}" if fl == 2 else ""}
        s_waitcnt vmcnt({N+4})
        """)
        a.label("L_deep", flush=False)
    else: a(f"s_waitcnt vmcnt({N})")
    for i in range(4): a(f"buffer_load_dwordx4 v{VK[i]}, s[{SK}:{SK+3}], s{sKO} offen offset:{1024*i}{nt} lds")
    a(f"s_addk_i32 m0, 4096")
    a(f"s_addk_i32 s{sM}, 8192")
    for i in range(4): a(f"buffer_load_dwordx4 v{VK[i]}, s[{SK}:{SK+3}], s{sT} offen offset:{1024*i}{nt} lds")
    if gx:
        a(f"""
        s_or_b32 s54, s63, s55
        v_mov_b32 v28, s54
        s_cmp_lt_u32 s55, s66
        buffer_store_dword v28, v26, s[44:47], 0 offen
        buffer_load_dword v24, v25, s[44:47], 0 offen {ff}
        s_cbranch_scc0 L_rep
        buffer_load_dword v27, v25, s[44:47], 0 offen offset:128
        """)
        a.label("L_back", flush=False)
        a(f"""
        """)
    elif fu: a(f"v_mov_b32 v28, s{55 if fo else sL}\n buffer_store_dword v28, v26, s[44:47], 0 offen\n buffer_load_dword v24, v25, s[44:47], 0 offen {ff}")
    elif fb: a(f"v_mov_b32 v28, s{55 if fo else sL}\n s_mov_b64 exec, 1\n {'' if fl == 2 else f's_waitcnt vmcnt({28 + 10 * fl})'}\n {'global_load_dword v27, v26, s[44:45]' if fx & 2 else 'global_store_dword v26, v28, s[44:45] ' + fs}\n s_mov_b64 exec, -1\n global_load_dword v24, v25, s[44:45] {ff}")
    elif N > 16: a("s_waitcnt vmcnt(24)")
    a(f"""
    {f"v_bfe_u32 v{vT}, v{vEL}, s{sSH}, 2" if xc else f"v_mov_b32 v{vT}, s{sL}"}
    v_readlane_b32 s{sKO}, v{vTB}, s{sJ}
    {f"s_sub_u32 s55, s{sL}, 256" if fl == 1 else ""}
    {f"v_or_b32 v{vT}, s{55 if fl else sL}, v{vT}" if xc else ""}
    s_bitset0_b32 s{sM}, 17
    v_and_or_b32 v{vT}, v{vEL}, s{sC0}, v{vT}
    s_addk_i32 s{sL}, 256
    s_sub_u32 s{sT2}, s{sL}, {13*256}
    ds_write_b32 v{vLN}, v{vT}
    s_cbranch_scc0 L_poll0
    s_cmpk_lg_u32 s{sL}, {(K0-1)*256}
    s_cbranch_scc1 L_k
    s_waitcnt lgkmcnt(0)
    {f"s_load_dword s54, s[{SV}:{SV+1}], s{sWB}" if tv & 1 else ""}
    {"s_movk_i32 s46, 128" if fu == 2 else ""}
    {f"s_mov_b64 exec, 1" if tv & 2 else ""}
    {f"global_load_dword v{vP+2}, v{vTB}, s[{SV}:{SV+1}] nt" if tv & 2 else ""}
    {f"s_mov_b64 exec, -1" if tv & 2 else ""}
    s_barrier
    s_branch L_k
    """)
    assert npoll[0] == 0
    a.flush()
    l = "L_poll0"; npoll[0] = 1
    a.label(l, flush=False)
    a(f"""
    ds_read_b32 v{vP}, v{vPA} offset:256
    s_sub_u32 s{sBUD}, s{sBUD}, 1
    s_cbranch_scc1 L_end
    {"s_movk_i32 s46, 128" if fu == 3 else ""}
    s_bitcmp1_b32 s{sJ}, 5
    s_waitcnt lgkmcnt(0)
    v_cmp_gt_u32 vcc, s{sT2}, v{vP}
    s_cbranch_vccnz {l}
    """)
    if diag:
        a(f"""
        s_cselect_b32 s53, 1, 0
        s_memrealtime s[{sRAW}:{sRAW+1}]
        s_mov_b32 m0, s52
        s_add_u32 s52, s52, 1
        s_waitcnt lgkmcnt(0)
        v_writelane_b32 v{DG}, s{sRAW}, m0
        s_cmp_eq_u32 s53, 1
        """)
    a(f"""
    s_cbranch_scc1 L_flip
    s_cmpk_lg_u32 s{sL}, {(64-el-2)*256}
    s_cbranch_scc1 L_k
    s_mov_b64 exec, 1
    {f"s_waitcnt vmcnt({fd})" if fl and fw else ""}
    global_atomic_add v{vEL}, v{vTA}, v{v64}, s[{sWS}:{sWS+1}] sc0 sc1
    s_mov_b64 exec, -1
    s_branch L_k
    """)
    if gx:
        a.label("L_rep")
        a(f"""
        s_mov_b64 exec, 1
        v_cmp_le_i32 vcc, s68, v30
        s_addk_i32 s66, {256 * gn}
        s_add_u32 s68, s68, 8
        global_atomic_add v30, v29, v31, s[44:45] offset:128 sc0 sc1
        s_mov_b64 exec, -1
        s_mov_b32 s63, vcc_lo
        s_branch L_back
        """)
    a.label("L_flip")
    a(f"s_mov_b32 s{sJ}, 0")
    if bias: a(f"s_sub_u32 s{SK}, s{SV}, {bias}\n s_subb_u32 s{SK+1}, s{SV+1}, 0")
    else: a(f"s_mov_b64 s[{SK}:{SK+1}], s[{SV}:{SV+1}]")
    for i in range(4): a(f"v_mov_b32 v{VK[i]}, v{VV[i]}")
    a(f"""
    s_bitcmp1_b32 s{sL}, 13
    s_cbranch_scc0 L_k
    """)
    stampc(4)
    def lfin():
        if diag:
            stampc(5)
            a(f"s_sub_u32 s{sT}, 0x100000, s{sBUD}")
            a(f"v_writelane_b32 v{DG}, s{sT}, 6")
            a(f"s_or_b32 s{sX}, s{sX}, 32")
            a(f"v_writelane_b32 v{DG}, s{sX}, 2")
            a(f"v_mov_b32 v{LANE}, v0")
            a.flush()
            a("s_branch L_fin")
        else:
            a("s_endpgm")
    if fu and f2: a(f"v_mov_b32 v{vT}, {60*256}\n s_waitcnt vmcnt({5 * OP - 8})\n ds_write_b32 v{vLN}, v{vT}")
    if fl:
        a(f"""
        s_waitcnt vmcnt({3 * OP})
        v_bfe_u32 v{vT}, v{vEL}, s{sSH}, 2
        v_or_b32 v{vT}, {61*256}, v{vT}
        v_and_or_b32 v{vT}, v{vEL}, s{sC0}, v{vT}
        ds_write_b32 v{vLN}, v{vT}
        s_waitcnt lgkmcnt(0)
        """)
    a(f"""
    v_readfirstlane_b32 s{sX}, v{vEL}
    s_mov_b32 s51, 0x9e3779b9
    {f"s_and_b32 s{sX}, s{sX}, s{sC0}" if xc else ""}
    s_cmp_eq_u32 s{sX}, s{sC0}
    s_barrier
    s_cbranch_scc0 L_lnw
    s_atomic_add s51, s[{sWS}:{sWS+1}], s50
    """)
    a.label("L_lnw", flush=False)
    for p in range(2, -1, -1):
        a(f"s_waitcnt vmcnt({(OP if fb else 8)*p + (OP - 8 if fx & 1 else 0)})")
        a("s_barrier")
    lfin()
    def putw(mid=""):
        for i in range(4): a(f"v_cvt_pk_bf16_f32 v{WPK+i}, v{WD+2*i}, v{WD+2*i+1}")
        if mid: a(mid)
        a(f"""
        s_mov_b64 exec, s[{sMS}:{sMS+1}]
        ds_write_b128 v{cWW}, v[{WPK}:{WPK+3}]
        s_mov_b64 exec, -1
        """)
    def kreads():
        for tl in range(2):
            for j in range(4): a(f"ds_read_b128 v[{KR+16*tl+4*j}:{KR+16*tl+4*j+3}], v{RK[j]} offset:{4096*tl}")
    if pfk:
        a.label("L_rp")
        a(f"""
        ds_read_b32 v{cW}, v{cLN}
        s_sub_u32 s{sBUD}, s{sBUD}, 1
        s_cbranch_scc0 L_pk
        s_endpgm
        """)
    a.label("L_loop")
    if pfk: stampm()
    else:
        poll(cLN, f"s{sTHR}", cW)
        stampm()
        kreads()
        a(f"""
        s_add_u32 s{sT}, s{sTHR}, 768
        s_min_u32 s{sT}, s{sT}, 8192
        """)
        putw()
        a(f"v_mov_b32 v{cW}, s{sT}")
        for j in range(4): a(f"v_xor_b32 v{RK[j]}, s{sXR}, v{RK[j]}")
        a(f"""
        v_add_u32 v{cWW}, 256, v{cWW}
        s_xor_b32 s{sXR}, s{sXR}, 0x10000
        s_waitcnt lgkmcnt(1)
        ds_write_b32 v{cPR}, v{cW} offset:256
        """)
    def scale(tl, j):
        o = []
        for r0 in range(0, 4, so):
            st = [[], [], []]
            for r in range(r0, r0 + so):
                x = KR + 16 * tl + 4 * j + r
                t0 = T + 2 * (r & 1); t1 = t0 + 1
                st[0] += [f"v_lshlrev_b32 v{t0}, 16, v{x}", f"v_and_b32 v{t1}, s{sMASK}, v{x}"]
                if pk & 1: st[1] += [f"v_pk_mul_f32 v[{t0}:{t1}], v[{t0}:{t1}], s[{sSCALE}:{sSCALE+1}]"]
                else: st[1] += [f"v_mul_f32 v{t0}, s{sSCALE}, v{t0}", f"v_mul_f32 v{t1}, s{sSCALE}, v{t1}"]
                st[2] += [f"v_cvt_pk_bf16_f32 v{x}, v{t0}, v{t1}"]
            o += st[0] + st[1] + st[2]
        for r in range(0 if gr else 4):
            x = KR + 16 * tl + 4 * j + r
            acc = SQA + 2 * tl + (r & 1)
            if j == 0 and r < 2: o.append(f"v_dot2_f32_bf16 v{acc}, v{x}, v{x}, 0")
            else: o.append(f"v_dot2_f32_bf16 v{acc}, v{x}, v{x}, v{acc}")
        return o
    def projm(tl, j):
        o = []
        if gr:
            d = SQD + 4 * tl; k = KR + 16 * tl + 4 * j
            o.append(f"v_mfma_f32_16x16x32_bf16 v[{d}:{d+3}], v[{k}:{k+3}], v[{k}:{k+3}], " + (f"v[{d}:{d+3}]" if j else "0"))
        for t in range(4):
            d = PR + 16 * tl + 4 * t
            om = OM + 16 * t + 4 * j
            k = KR + 16 * tl + 4 * j
            c = "0" if j == 0 else f"v[{d}:{d+3}]"
            o.append(f"v_mfma_f32_16x16x32_bf16 v[{d}:{d+3}], v[{om}:{om+3}], v[{k}:{k+3}], {c}")
        return o
    def sqsum(tl):
        acc = SQA + 2 * tl; d = SQD + 4 * tl
        if gr: return [f"v_cndmask_b32_e64 v{acc}, {f'v{acc}' if r else 0}, v{d+r}, s[{sDG+2*r}:{sDG+2*r+1}]" for r in range(4)]
        return [f"v_add_f32 v{acc}, v{acc}, v{acc+1}"]
    def sqm(tl):
        acc = SQA + 2 * tl; d = SQD + 4 * tl
        return [f"v_mfma_f32_16x16x4_f32 v[{d}:{d+3}], v{NH}, v{acc}, 0"]
    def phi(tl):
        d = SQD + 4 * tl
        o = [f"v_cvt_pk_bf16_f32 v{d}, 0, v{d}"]
        for t in range(4):
            p = [PR + 16 * tl + 4 * t + r for r in range(4)]
            for x in p: o.append(f"v_cvt_pk_bf16_f32 v{x}, 0, v{x}")
            if pk & 2:
                for x in p[::2]: o.append(f"v_pk_add_f32 v[{x}:{x+1}], v[{x}:{x+1}], v[{d}:{d+1}] op_sel_hi:[1,0]")
            else:
                for x in p: o.append(f"v_add_f32 v{x}, v{d}, v{x}")
            for x in p: o.append(f"v_cvt_pk_bf16_f32 v{x}, 0, v{x}")
            if pk & 2:
                for x in p[::2]: o.append(f"v_pk_mul_f32 v[{x}:{x+1}], v[{x}:{x+1}], s[{sL2E}:{sL2E+1}]")
            else:
                for x in p: o.append(f"v_mul_f32 v{x}, s{sL2E}, v{x}")
            for x in p: o.append(f"v_exp_f32 v{x}, v{x}")
            h = PH + 8 * tl + 2 * t
            o.append(f"v_cvt_pk_bf16_f32 v{h}, v{p[0]}, v{p[1]}")
            o.append(f"v_cvt_pk_bf16_f32 v{h+1}, v{p[2]}, v{p[3]}")
        if po:
            n = (len(o) - 1) // 4
            for t in range(3):
                e = 1 + n * (t + 1)
                o[e-2:e+4] = o[e:e+4] + o[e-2:e]
        return o
    def wm(tl):
        d = WD + 4 * tl; h = PH + 8 * tl
        return [f"v_mfma_f32_16x16x32_bf16 v[{d}:{d+3}], v[{h}:{h+3}], v[{PQ}:{PQ+3}], v[{C}:{C+3}]",
                f"v_mfma_f32_16x16x32_bf16 v[{d}:{d+3}], v[{h+4}:{h+7}], v[{PQ+4}:{PQ+7}], v[{d}:{d+3}]"]
    steps = [(tl, j) for tl in range(2) for j in range(4)]
    body = scale(0, 0); n0 = len(body)
    for i in range(1, 8):
        tl, j = steps[i]
        side = projm(*steps[i - 1])
        main = scale(tl, j)
        if gr:
            if steps[i - 1] == (0, 3): main = main + sqsum(0)
            if steps[i - 1] == (1, 0): side = side + sqm(0)
            body += interleave(main, side, 3 if pk & 1 or len(side) > 5 else 4, lead=2)
            continue
        if steps[i - 1] == (0, 3):
            main = main[:4] + sqsum(0) + main[4:]
            side = side + sqm(0)
        body += interleave(main, side, 4 if pk & 1 else 5, lead=2)
    ph0 = phi(0)
    ph0 = ph0[:14] + sqsum(1) + ph0[14:] if gr else ph0[:4] + sqsum(1) + ph0[4:]
    for n, x in enumerate(body):
        if pfk and n == n0: putw(x)
        else: a(x)
        if pfk and n == n0 + 1: a(f"v_add_u32 v{cWW}, 256, v{cWW}")
    a.label("L_phi0", flush=False)
    ph0 = interleave(ph0, projm(1, 3) + sqm(1), 4, lead=2 if gr else 1)
    if pfk:
        a(f"ds_read_b32 v{cW}, v{cLN}")
        f4 = next(i for i, x in enumerate(ph0) if x.startswith(("v_add", "v_exp")))
        for x in ph0[:f4] + [f"s_cmpk_gt_u32 s{sTHR}, 8192"] + ph0[f4:fp]: a(x)
        a("s_cbranch_scc1 L_nf")
        a.label("L_pk", flush=False)
        a(f"""
        s_waitcnt lgkmcnt(0)
        v_cmp_gt_u32 vcc, s{sTHR}, v{cW}
        s_cbranch_vccnz L_rp
        """)
        kreads()
        for j in range(4): a(f"v_xor_b32 v{RK[j]}, s{sXR}, v{RK[j]}")
        a(f"""
        s_xor_b32 s{sXR}, s{sXR}, 0x10000
        s_add_u32 s{sP}, s{sTHR}, 768
        s_min_u32 s{sP}, s{sP}, 8192
        """)
        a.hist = a.hist[:-18]
        a.label("L_nf", flush=False)
        a(f"s_addk_i32 s{sTHR}, 1024")
        for x in ph0[fp:]: a(x)
        a(f"""
        s_cmpk_le_u32 s{sTHR}, 2048
        s_waitcnt vmcnt(0) lgkmcnt(0)
        v_mov_b32 v{cW}, s{sP}
        ds_write_b32 v{cPR}, v{cW} offset:256
        """)
    else:
        for x in ph0: a(x)
        a(f"s_cmp_eq_u32 s{sTHR}, 0")
    a.flush()
    a("s_cbranch_scc1 L_qpost")
    ph1 = interleave(phi(1), wm(0), 6, lead=3)
    if pfk: ph1 = ph1 + [wm(1)[0], f"s_cmp_le_u32 s{sTHR}, {8192 if ev else 9216}"]
    for x in ph1: a(x)
    if pfk:
        a(wm(1)[1])
    else:
        a(f"s_addk_i32 s{sTHR}, 1024")
        a(wm(1)[0])
        a(f"s_cmpk_le_u32 s{sTHR}, 8192")
        a(wm(1)[1])
        a("s_waitcnt vmcnt(0)")
    a("s_cbranch_scc1 L_loop")
    putw()
    if pw in (3, 6, 7): a(f"global_load_dword v{DUM}, v{cWS}, s[{sWS}:{sWS+1}] offset:1024 {['', 'nt', 'sc1'][max(pw - 5, 0)]}")
    if to == 1: a(f"s_mov_b32 exec_lo, 0\n global_load_ushort v{DUM+2}, v{cOUT}, s[{sOUT}:{sOUT+1}]\n s_mov_b32 exec_lo, -1")
    stampm()
    if amp == "d": a("s_memrealtime s[76:77]")
    AR = PH
    def areads():
        for u in range(4): a(f"ds_read_b128 v[{AR+4*u}:{AR+4*u+3}], v{cWA} offset:{256+64*u}")
    def denm(u): a(f"v_mfma_f32_16x16x32_bf16 v[{DEN}:{DEN+3}], v[{AR+4*u}:{AR+4*u+3}], v[{ONES}:{ONES+3}], v[{DEN}:{DEN+3}]")
    def trs(j):
        r = PR + 8 * j
        for h in range(2):
            a(f"ds_read_b64_tr_b16 v[{r+4*h}:{r+4*h+1}], v{TV+h} offset:{8192*j}")
            a(f"ds_read_b64_tr_b16 v[{r+4*h+2}:{r+4*h+3}], v{TV+h} offset:{8192*j+4096}")
    def mms(j, left=0):
        r = PR + 8 * j
        for h in range(2):
            d = (ACC, AC1)[h]
            a(f"s_waitcnt lgkmcnt({left+2-2*h})")
            a(f"v_mfma_f32_16x16x32_bf16 v[{d}:{d+3}], v[{AR+4*j}:{AR+4*j+3}], v[{r+4*h}:{r+4*h+3}], v[{d}:{d+3}]")
    a.label("L_vl", flush=False)
    poll(cLN, f"s{sVT}", cW)
    stampm()
    areads()
    for j in range(3): trs(j)
    a(f"""
    v_mov_b32 v{cW}, s{sVT}
    s_mov_b32 s{sP}, s{sVT}
    v_add_u32 v{cWA}, 256, v{cWA}
    s_addk_i32 s{sVT}, 1024
    s_waitcnt lgkmcnt(12)
    """)
    trs(3)
    for u in range(4): denm(u)
    a(f"""
    v_xor_b32 v{TV}, s{sXR}, v{TV}
    v_xor_b32 v{TV+1}, s{sXR}, v{TV+1}
    s_xor_b32 s{sXR}, s{sXR}, 0x10000
    s_cmp_lt_u32 s{sVT}, s{sVL}
    """)
    for j in range(4): mms(j, 12 - 4 * j)
    a(f"ds_write_b32 v{cPR}, v{cW} offset:256")
    a("s_cbranch_scc1 L_vl")
    if ev:
        a(f"""
        s_movk_i32 s{sVL}, {64*256}
        s_cmpk_le_u32 s{sTHR}, 9216
        s_cbranch_scc1 L_loop
        """)
    areads()
    a(f"""
    v_mov_b32 v{GB}, 0
    v_mov_b32 v{GB+1}, v{EP}
    v_mov_b32 v{GB+2}, 0
    v_mov_b32 v{GB+3}, 0
    s_mov_b32 s{sM3}, 0
    {f"s_mov_b32 s{sVL}, {ab}" if ab > 1 and not xc else ""}
    s_mov_b32 s{sM3+1}, s{sMASK}
    s_waitcnt lgkmcnt(0)
    """)
    for u in range(4): denm(u)
    if pw in (1, 2):
        a("s_mov_b64 exec, 0xffff")
        if pw == 1: a(f"global_load_dword v{KR+8}, v{cWS}, s[{sWS}:{sWS+1}] {lf}")
        else: a(f"v_not_b32 v{KR+9}, v{EP}\n global_store_dwordx4 v{cWS}, v[{KR+8}:{KR+11}], s[{sWS}:{sWS+1}] {sf}")
        a("s_mov_b64 exec, -1")
    stampc(58)
    a("s_barrier")
    stampc(59)
    ng = [0]
    def gload(B):
        a(f"s_mov_b32 exec_hi, 0xffff")
        a(f"global_load_dwordx4 v[{B}:{B+3}], v{GA}, s[{sWS}:{sWS+1}] {lf}")
        a(f"s_mov_b64 exec, -1")
    def wload():
        l = "L_nb%d" % ng[0]; ng[0] += 1
        a(f"s_cbranch_scc0 {l}")
        gload(KR if pp else GB)
        a.label(l, flush=False)
    a(f"ds_read_b32 v{cW}, v{cLN}")
    trs(0)
    a(f"""
    v_mov_b32 v{DENR}, v{DEN}
    v_add_f32 v{T}, {hex(f2u(1e-6))}, v{DEN}
    s_waitcnt lgkmcnt(4)
    v_readfirstlane_b32 s{sX}, v{cW}
    {f"s_andn2_b32 s{sT}, 3, s{sX}" if xc else ""}
    {f"s_cselect_b32 s{sT}, 0x400, 0" if xc else ""}
    {f"s_cselect_b32 s{sVL}, -1, {ab}" if xc else ""}
    {f"v_xor_b32 v{GA}, s{sT}, v{GA}" if xc else ""}
    s_and_b32 s{sT2}, s{sX}, 0xc0
    s_cmpk_eq_u32 s{sT2}, 0xc0
    """)
    if bp == 0: wload()
    mms(0)
    a("s_barrier")
    trs(1)
    if bp == 1: wload()
    mms(1)
    a("s_barrier")
    if bp == 2: wload()
    trs(2)
    mms(2)
    if bp == 3: wload()
    stampc(61)
    if amp == "e": a("s_memrealtime s[76:77]")
    a("s_barrier")
    trs(3)
    a("s_cbranch_scc1 L_win")
    mms(3)
    a(f"s_mov_b64 exec, 0xffff")
    a(f"v_mov_b32 v{ACC+1}, v{AC1}")
    if ab > 1: a(f"global_store_dwordx4 v{cWS}, v[{DENR}:{DENR+3}], s[{sWS}:{sWS+1}] offset:1024 {af}")
    a(f"global_store_dwordx4 v{cWS}, v[{DENR}:{DENR+3}], s[{sWS}:{sWS+1}] {sf}")
    if ab == 1: a(f"global_store_dwordx4 v{cWS}, v[{DENR}:{DENR+3}], s[{sWS}:{sWS+1}] {af}")
    if diag: a("s_mov_b64 exec, -1")
    a("s_branch L_fin" if diag else "s_branch L_amp" if amp else "s_endpgm")
    if pp:
        def chk(B):
            a(f"""
            s_waitcnt vmcnt(1)
            v_cmp_ne_u32 vcc, v{EP}, v{B+1}
            v_mov_b32 v{GB}, v{B}
            v_mov_b32 v{GB+2}, v{B+2}
            v_mov_b32 v{GB+3}, v{B+3}
            """)
        a.label("L_retry", flush=False)
        if ab > 1: a(f"s_sub_u32 s{sVL}, s{sVL}, 1\n s_cselect_b32 s{sT}, 0x400, 0\n v_xor_b32 v{GA}, s{sT}, v{GA}")
        a(f"""
        {"s_mov_b64 exec, vcc" if pp & 1 else ""}
        s_sub_u32 s{sBUD}, s{sBUD}, 16
        s_cbranch_scc1 L_end
        global_load_dwordx4 v[{KR}:{KR+3}], v{GA}, s[{sWS}:{sWS+1}] {lf}
        """)
        chk(KR + 4)
        a(f"""
        s_cbranch_vccz L_got
        {"s_mov_b64 exec, vcc" if pp & 1 else ""}
        s_branch L_chkb
        """)
        a.label("L_win", flush=False)
        mms(3)
        a("s_mov_b32 exec_hi, 0xffff")
        a.label("L_chkb", flush=False)
        a(f"global_load_dwordx4 v[{KR+4}:{KR+7}], v{GA}, s[{sWS}:{sWS+1}] {lf}")
        chk(KR)
        a("s_cbranch_vccnz L_retry")
        a.label("L_got", flush=False)
        a("s_mov_b64 exec, -1\n s_nop 1")
    else:
        a.label("L_retry", flush=False)
        if ab > 1: a(f"s_sub_u32 s{sVL}, s{sVL}, 1\n s_cselect_b32 s{sT}, 0x400, 0\n v_xor_b32 v{GA}, s{sT}, v{GA}")
        a(f"""
        s_mov_b32 exec_hi, 0xffff
        s_sub_u32 s{sBUD}, s{sBUD}, 16
        s_cbranch_scc1 L_end
        global_load_dwordx4 v[{GB}:{GB+3}], v{GA}, s[{sWS}:{sWS+1}] {lf}
        s_mov_b64 exec, -1
        s_branch L_chkb
        """)
        a.label("L_win", flush=False)
        mms(3)
        if diag == 3: a("s_mov_b32 m0, 30")
        a.label("L_chkb", flush=False)
        if diag == 3:
            a("s_waitcnt vmcnt(0)")
            stampm()
            a(f"s_min_u32 m0, m0, 50")
        a(f"""
        s_waitcnt vmcnt(0)
        v_cmp_ne_u32 vcc, v{EP}, v{GB+1}
        s_cbranch_vccnz L_retry
        """)
    stampc(62)
    a(f"""
    v_add_f32_dpp v{GB}, v{GB}, v{GB} row_bcast:15 row_mask:0xa bank_mask:0xf
    v_permlane16_swap_b32 v{GB+2}, v{GB+3}
    s_nop 0
    v_add_f32_dpp v{GB}, v{GB}, v{GB} row_bcast:31 row_mask:0xc bank_mask:0xf
    v_add_f32 v{GB+2}, v{GB+2}, v{GB+3}
    v_add_f32 v{GB}, v{GB}, v{T}
    v_cndmask_b32_e64 v{ACC}, v{ACC}, v{AC1}, s[{sM3}:{sM3+1}]
    v_add_f32 v{GB+3}, v{GB+2}, v{ACC}
    v_permlane32_swap_b32 v{GB+1}, v{GB+2}
    v_rcp_f32 v{GB}, v{GB}
    s_mov_b32 exec_lo, 0
    v_add_f32 v{GB+3}, v{GB+3}, v{GB+1}
    v_mul_f32 v{GB+3}, v{GB+3}, v{GB}
    v_cvt_pk_bf16_f32 v{GB+3}, v{GB+3}, v{GB+3}
    global_store_short v{cOUT}, v{GB+3}, s[{sOUT}:{sOUT+1}]
    """)
    if diag:
        a("s_mov_b64 exec, -1")
        stampc(5)
        a.label("L_fin")
        a(f"s_memrealtime s[{sRAW}:{sRAW+1}]")
        a(f"s_getreg_b32 s76, hwreg(HW_REG_XCC_ID)")
        a("s_waitcnt lgkmcnt(0)")
        a(f"v_writelane_b32 v{DG}, s{sRAW}, 7")
        a(f"v_writelane_b32 v{DG}, s76, 63")
        a(f"""
        s_mul_i32 s{sT}, s2, 5
        s_lshr_b32 s{sT2}, s{sW}, 6
        s_add_u32 s{sT}, s{sT}, s{sT2}
        s_lshl_b32 s{sT}, s{sT}, 8
        s_add_u32 s{sT}, s{sT}, 0x100000
        v_lshl_add_u32 v{T}, v{LANE}, 2, s{sT}
        global_store_dword v{T}, v{DG}, s[{sWS}:{sWS+1}]
        """)
    if amp:
        a.label("L_amp", flush=False)
        a(f"""
        s_cmp_eq_u32 s2, 100
        s_cbranch_scc0 L_end
        s_waitcnt lgkmcnt(0)
        s_sub_u32 s76, s76, s74
        s_mul_i32 s76, s76, 10
        s_add_u32 s76, s76, 3000
        s_min_u32 s76, s76, 40000
        """)
        a.label("L_amp1", flush=False)
        a(f"""
        s_memrealtime s[72:73]
        s_waitcnt lgkmcnt(0)
        s_sub_u32 s72, s72, s74
        s_cmp_lt_u32 s72, s76
        s_cbranch_scc1 L_amp1
        """)
    a.label("L_end", flush=False)
    a("s_endpgm")
    a.label("L_qpost")
    a(f"v_mov_b32 v{T+2}, {hex(f2u(1e-6) - (3 << 23))}")
    a(f"s_mov_b32 s{sT}, {hex(f2u(0.015625))}")
    for i in range(8):
        x = PH + i
        a(f"""
        v_lshlrev_b32 v{T}, 16, v{x}
        v_and_b32 v{T+1}, s{sMASK}, v{x}
        v_fma_f32 v{T}, v{T}, s{sT}, v{T+2}
        v_fma_f32 v{T+1}, v{T+1}, s{sT}, v{T+2}
        v_cvt_pk_bf16_f32 v{PQ+i}, v{T}, v{T+1}
        """)
    a(f"v_mfma_f32_16x16x32_bf16 v[{C}:{C+3}], v[{ONES}:{ONES+3}], v[{PQ}:{PQ+3}], 0")
    a(f"s_add_u32 s{sEP}, s{sEP}, 0x9e3779b9")
    a(f"v_mfma_f32_16x16x32_bf16 v[{C}:{C+3}], v[{ONES}:{ONES+3}], v[{PQ+4}:{PQ+7}], v[{C}:{C+3}]")
    a(f"""
    {"" if pfk else f"s_lshl_b32 s{sTHR}, s{sW}, 2"}
    v_mov_b32 v{EP}, s{sEP}
    s_cmp_eq_u32 s{sEP}, s{sCT+1}
    s_cselect_b32 s{sT}, 4, s{sC}
    s_cmp_lg_u32 s{sT}, 0
    s_cbranch_scc1 L_c2
    s_mov_b64 exec, 1
    v_mov_b32 v{CT}, 0
    v_mov_b32 v{CT+1}, s{sEP}
    v_mov_b32 v{CT+2}, s{sCT}
    v_mov_b32 v{CT+3}, s{sCT+1}
    global_atomic_cmpswap_x2 v{cAT}, v[{CT}:{CT+3}], s[{sWS}:{sWS+1}] sc1
    s_mov_b64 exec, -1
    """)
    a.label("L_c2", flush=False)
    if pw == 4: a(f"global_load_dword v{DUM}, v{cWS}, s[{sWS}:{sWS+1}] offset:1024")
    if to == 2: a(f"s_mov_b32 exec_lo, 0\n global_load_ushort v{DUM+2}, v{cOUT}, s[{sOUT}:{sOUT+1}]\n s_mov_b32 exec_lo, -1")
    a("s_nop 1")
    for i in range(4): a(f"v_mul_f32 v{C+i}, {hex(f2u(1e-6) + (3 << 23))}, v{C+i}")
    stampc(3)
    if amp == "q": a("s_memrealtime s[76:77]")
    a.flush()
    a("s_branch L_loop")
    a.raw("L_codeend:")
    a.raw(f""".section .rodata,"a"
.p2align 6
.amdhsa_kernel {NAME}_kernel
  .amdhsa_next_free_vgpr 256
  .amdhsa_next_free_sgpr {100 if pm else 80}
  .amdhsa_accum_offset 256
  .amdhsa_group_segment_fixed_size 0
  .amdhsa_kernarg_size 56
  .amdhsa_user_sgpr_count 2
  .amdhsa_user_sgpr_kernarg_segment_ptr 1
  .amdhsa_system_sgpr_workgroup_id_x 1
.end_amdhsa_kernel""")
    return a

if __name__ == "__main__":
    out = sys.argv[1]
    kw = dict(x.split("=") for x in sys.argv[2:])
    for key in ("nt",):
        if key in kw: kw[key] = "" if kw[key] == "0" else " " + kw[key].replace("+", " ")
    a8 = kw.pop("a8", "1")
    a = gen(**kw)
    t = a.text()
    if a8 == "1": t = align8(t, "L_loop", "L_vl")
    if a8 == "2": t = align8(t)
    open(out, "w").write(t)
    print("wrote", out, "nops inserted:", a.nops)
```
